```python
import torch

def _softmax(x, axis=-1):
    return torch.softmax(x, dim=axis)
def _gelu(x):
    return torch.nn.functional.gelu(x, approximate="tanh")
def _silu(x):
    return torch.nn.functional.silu(x)
def _sigmoid(x):
    return torch.sigmoid(x)
def _layernorm(x, axis=-1, eps=1e-5):
    m = x.mean(dim=axis, keepdim=True)
    v = x.var(dim=axis, keepdim=True, unbiased=False)
    return (x - m) / torch.sqrt(v + eps)
def _scatter_add(tgt, idx, src, axis=0):
    return tgt.clone().index_add_(axis, idx, src)
def _segment_sum(src, seg, n):
    out = torch.zeros((n,) + src.shape[1:], dtype=src.dtype)
    return out.index_add_(0, seg, src)
def _pad(x, pw):
    flat = tuple(v for pair in reversed(pw) for v in pair)
    return torch.nn.functional.pad(x, flat)

kernel_name = 'concat_heads__linear_attn_block__ssm_conv_s4d__prompt'

def setup_inputs():

    _w = (lambda a: (lambda t: t.to(torch.bfloat16) if t.is_floating_point() else t)(torch.as_tensor(a)))
    def _A_setup():
        B, S, D = 1, 2048, 448
        return {
            "x": _w((lambda *s: torch.randn(*s, dtype=torch.bfloat16) * 0.05)(B, S, D)),
            "wqkv": _w((lambda *s: torch.randn(*s, dtype=torch.bfloat16) * 0.8)(D, 3 * D)),
            "wo": _w((lambda *s: torch.randn(*s, dtype=torch.bfloat16) * 0.05)(D, D)),
        }
    _A_in = _A_setup()

    def _B_setup():
        Bsz, L, D, N = 1, 2048, 448, 256
        return {
            "u": _w((lambda *s: torch.randn(*s, dtype=torch.bfloat16) * 0.05)(Bsz, L, D)),
            "log_A_real": _w((lambda *s: torch.randn(*s, dtype=torch.bfloat16) * 3.2)(D, N) * 0.5),
            "A_imag": _w((lambda *s: torch.randn(*s, dtype=torch.bfloat16) * 0.05)(D, N) * 3.14),
            "C_real": _w((lambda *s: torch.randn(*s, dtype=torch.bfloat16) * 0.2)(D, N) / N ** 0.5),
            "C_imag": _w((lambda *s: torch.randn(*s, dtype=torch.bfloat16) * 0.4)(D, N) / N ** 0.5),
            "log_dt": _w((lambda *s: torch.randn(*s, dtype=torch.bfloat16) * 0.05)(D) * 0.5 - 4.0),
            "D_skip": _w((lambda *s: torch.randn(*s, dtype=torch.bfloat16) * 0.05)(D)),
        }
    _B_in = _B_setup()

    return {
        "A_x": _A_in["x"],
        "A_wqkv": _A_in["wqkv"],
        "A_wo": _A_in["wo"],
        "B_u": _B_in["u"],
        "B_log_A_real": _B_in["log_A_real"],
        "B_A_imag": _B_in["A_imag"],
        "B_C_real": _B_in["C_real"],
        "B_C_imag": _B_in["C_imag"],
        "B_log_dt": _B_in["log_dt"],
        "B_D_skip": _B_in["D_skip"],
    }

def reference(A_x, A_wqkv, A_wo, B_u, B_log_A_real, B_A_imag, B_C_real, B_C_imag, B_log_dt, B_D_skip):
    def _A_ref(x, wqkv, wo):
        B, S, D = x.shape
        H = 16; Dh = D // H
        qkv = (lambda x, *d: x.permute(*d))((x @ wqkv).reshape(B, S, 3, H, Dh), 2, 0, 3, 1, 4)
        q, k, v = qkv[0], qkv[1], qkv[2]
        phi = lambda t: torch.where(t > 0, t + 1, torch.exp(t)) + 1e-6
        pq, pk = phi(q), phi(k)
        kv = torch.einsum("bhsd,bhse->bhde", pk, v)
        z = torch.einsum("bhsd->bhd", pk)
        num = torch.einsum("bhqd,bhde->bhqe", pq, kv)
        den = torch.einsum("bhqd,bhd->bhq", pq, z)[..., None] + 1e-6
        o = num / den
        return (lambda x, *d: x.permute(*d))(o, 0, 2, 1, 3).reshape(B, S, D) @ wo

    def _B_ref(u, log_A_real, A_imag, C_real, C_imag, log_dt, D_skip):
        L = u.shape[1]
        dt = torch.exp(log_dt)
        A = -torch.exp(log_A_real) + 1j * A_imag
        C = (C_real + 1j * C_imag) * dt[:, None]
        pos = (lambda x, dt: x.to(dt))(torch.arange(L), log_dt.dtype)
        P = torch.exp((A * dt[:, None])[:, :, None] * pos[None, None, :])
        K = 2.0 * torch.einsum("dn,dnl->dl", C, P).real
        L2 = 2 * L
        u_t = (lambda x, *d: x.permute(*d))(u, 0, 2, 1)
        Kf = (lambda x, *a, **k: torch.fft.rfft(x.float(), *a, **k))(K, L2)
        Uf = (lambda x, *a, **k: torch.fft.rfft(x.float(), *a, **k))(u_t, L2)
        y = (lambda x, *a, **k: torch.fft.irfft(x, *a, **k).to(torch.bfloat16))(Uf * Kf[None, :, :], L2)[:, :, :L]
        y = (lambda x, *d: x.permute(*d))(y, 0, 2, 1)
        return y + u * D_skip[None, None, :]

    a = _A_ref(A_x, A_wqkv, A_wo)
    b = _B_ref(B_u, B_log_A_real, B_A_imag, B_C_real, B_C_imag, B_log_dt, B_D_skip)
    return torch.concatenate([a, b], axis=-1)
```

```python
import re

TRANS = ("v_exp_f32", "v_log_f32", "v_rcp_f32", "v_rsq_f32", "v_sqrt_f32", "v_sin_f32", "v_cos_f32")

def _regs(tok):
    tok = tok.strip()
    tok = tok.lstrip("-")
    m = re.match(r"^abs\((.*)\)$", tok)
    if m: tok = m.group(1)
    tok = tok.strip("|")
    m = re.match(r"^([vs])(\d+)$", tok)
    if m: return [(m.group(1), int(m.group(2)))]
    m = re.match(r"^([vs])\[(\d+):(\d+)\]$", tok)
    if m: return [(m.group(1), i) for i in range(int(m.group(2)), int(m.group(3)) + 1)]
    if tok in ("vcc", "vcc_lo", "vcc_hi"): return [("vcc", 0)]
    if tok in ("exec",): return [("exec", 0)]
    if tok == "m0": return [("m0", 0)]
    return []

def split_ops(s):
    out, depth, cur = [], 0, ""
    for ch in s:
        if ch in "[(": depth += 1
        if ch in "])": depth -= 1
        if ch == "," and depth == 0:
            out.append(cur); cur = ""
        else: cur += ch
    if cur.strip(): out.append(cur)
    res = []
    for i, o in enumerate(out):
        o = o.strip()
        res.append(o.split()[0] if o else o)
    return res

class Asm:
    def __init__(self):
        self.lines = []
        self.pos = 0
        self.w = {}
        self.rc = {}
        self.st = {}
        self.vm = []
        self.nlabel = 0
    def raw(self, s): self.lines.append(s)
    def comment(self, s): self.lines.append("    ; " + s)
    def label(self, name):
        self.lines.append(name + ":")
    def newlabel(self, p="L"):
        self.nlabel += 1
        return "%s_%d" % (p, self.nlabel)
    def nop(self, n):
        while n > 0:
            k = min(n, 16)
            self.lines.append("    s_nop %d" % (k - 1)); self.pos += k; n -= k
    def fence(self, n=16):
        self.nop(n)
    def __call__(self, text):
        for ln in text.strip().split("\n"):
            ln = ln.strip()
            if ln: self.emit(ln)
    def emit(self, ins):
        code = ins.split(";")[0].strip()
        parts = code.split(None, 1)
        mn = parts[0]
        ops = split_ops(parts[1]) if len(parts) > 1 else []
        R = [_regs(o) for o in ops]
        dst, src = [], []
        kind = "salu"
        srcC = []
        if mn.startswith("v_mfma"):
            kind = "mfma"; dst = R[0]; src = R[1] + R[2]; srcC = R[3] if len(R) > 3 else []
        elif mn.startswith("v_cmp"):
            kind = "valu"; dst = R[0]; src = sum(R[1:], [])
        elif mn.startswith("v_permlane"):
            kind = "valu"; dst = R[0] + R[1]; src = R[0] + R[1]
        elif mn.startswith("v_"):
            kind = "trans" if mn.replace("_e32", "").replace("_e64", "") in TRANS else "valu"
            dst = R[0]; src = sum(R[1:], [])
            if mn.startswith(("v_fmac", "v_writelane")) or "_dpp" in mn: src = src + R[0]
            if mn.startswith(("v_add_co", "v_sub_co", "v_addc_co")): dst = R[0] + R[1]; src = sum(R[2:], [])
        elif mn.startswith("ds_"):
            kind = "ds"
            if mn.startswith(("ds_read", "ds_bpermute", "ds_permute", "ds_swizzle")):
                dst = R[0]; src = sum(R[1:], [])
                if "d16" in mn: src = src + R[0]
            else: src = sum(R, [])
            if "addtid" in mn: src = src + [("m0", 0)]
        elif mn.startswith(("buffer_", "global_")):
            kind = "vmem"
            islds = re.search(r"\blds\b", code) or "_lds_" in mn
            if "_load" in mn and not islds: dst = R[0]; src = sum(R[1:], [])
            else: src = sum(R, [])
            if islds: src = src + [("m0", 0)]
            if "atomic" in mn and re.search(r"\bsc0\b", code): dst = R[0]
        elif mn.startswith("s_"):
            kind = "salu"
            if mn.startswith(("s_cmp", "s_cbranch", "s_branch", "s_waitcnt", "s_barrier", "s_nop", "s_sleep", "s_endpgm", "s_setprio")):
                src = sum(R, [])
            else:
                dst = R[0] if R else []; src = sum(R[1:], [])
        need = 0
        def req(p, n):
            nonlocal need
            need = max(need, n - (self.pos - p - 1))
        isdpp = "_dpp" in mn or "row_" in code
        for r in src + srcC:
            if r not in self.w: continue
            p, k, wd = self.w[r]
            isC = r in srcC and r not in src
            if r[0] == "v":
                if k in ("valu", "trans"):
                    if kind == "mfma": req(p, 2)
                    if k == "trans" and kind in ("valu", "mfma", "ds", "vmem"): req(p, 1)
                    if isdpp or mn.startswith("v_permlane"): req(p, 2)
                    if mn.startswith(("v_readlane", "v_readfirstlane")): req(p, 1)
                if k == "mfma":
                    if kind == "mfma" and isC:
                        if wd != tuple(srcC): req(p, 6)
                    else: req(p, 8)
            elif r[0] in ("s", "vcc"):
                if k in ("valu", "trans"):
                    if kind in ("valu", "trans"): req(p, 4 if mn.startswith(("v_readlane", "v_writelane")) else 2)
                    if kind == "vmem": req(p, 5)
                    if kind == "salu": req(p, 1)
            elif r[0] == "m0":
                if kind in ("ds", "vmem"): req(p, 1)
        for r in dst:
            if r[0] == "v":
                if r in self.w and self.w[r][1] == "mfma" and kind != "mfma": req(self.w[r][0], 8)
                if r in self.w and self.w[r][1] == "mfma" and kind == "mfma" and not (srcC and self.w[r][2] == tuple(srcC)): req(self.w[r][0], 6)
                if r in self.rc and kind in ("valu", "trans"): req(self.rc[r], 3)
                if r in self.st: req(self.st[r], 2)
        if need > 0: self.nop(need)
        self.lines.append("    " + ins)
        for r in dst: self.w[r] = (self.pos, kind, tuple(dst))
        for r in srcC: self.rc[r] = self.pos
        if kind == "vmem" and "store" in mn and ("x4" in mn or "x3" in mn):
            for r in R[0] if mn.startswith("buffer_") else R[1]: self.st[r] = self.pos
        if mn == "s_nop": self.pos += int(ops[0]) + 1
        else: self.pos += 1
    def vmop(self, text, tag):
        self.emit(text); self.vm.append(tag)
    def vmwait(self, *tags, extra=""):
        last = -1
        for i, t in enumerate(self.vm):
            if t in tags: last = i
        n = len(self.vm) - 1 - last
        if last >= 0:
            assert n <= 63
            self.emit("s_waitcnt vmcnt(%d)%s" % (n, extra))
            self.vm = self.vm[last + 1:]
        elif extra:
            self.emit("s_waitcnt%s" % extra)
    def vmwait_all(self, extra=""):
        self.emit("s_waitcnt vmcnt(0)%s" % extra); self.vm = []
    def text(self): return "\n".join(self.lines) + "\n"

def vr(a, n=1): return "v%d" % a if n == 1 else "v[%d:%d]" % (a, a + n - 1)
def sr(a, n=1): return "s%d" % a if n == 1 else "s[%d:%d]" % (a, a + n - 1)
```

```python
from asmlib import *
from gen import *

def gen_b(G):
    a = G.a
    LANE = 7
    S_J, S_GAM, S_RBK, S_CQ, S_D, S_S, S_KB, S_UB = 8, 9, 10, 11, 12, 13, 14, 15
    LA, AI, CR, CI, DT, DS, KA, KT = 10, 12, 14, 16, 18, 19, 20, 21
    FY, FX0, FX1, FX2 = 22, 23, 24, 25
    ACC = 28
    w0, w1, w2, w3, w4, w5, w6, w7, w8, w9, w10, t3, t5, t7 = [40 + 2 * k for k in range(14)]
    s_ = [68 + 2 * k for k in range(9)]
    S3a, S3b, S4a, S4b = 86, 88, 90, 92
    TP = [94 + 2 * k for k in range(6)]
    hw3, hw4, ht3, hw5, hw6, ht5, hw7, hw8, ht7 = range(106, 115)
    hs = list(range(115, 124)); hS3a, hS3b, hS4a, hS4b = range(124, 128)
    PT = list(range(128, 144))
    PR = list(range(144, 160))
    YF = 160; XF = 176
    UR = 224
    RS = 288

    a("s_mul_i32 s%d, s%d, 28" % (S_J, XCD)); a("s_add_u32 s%d, s%d, s%d" % (S_J, S_J, SLOT)); a("s_sub_u32 s%d, s%d, 30" % (S_J, S_J))
    a("s_lshr_b32 s%d, s%d, 5" % (S_GAM, S_J)); a("s_and_b32 s%d, s%d, 31" % (S_RBK, S_J)); a("s_lshr_b32 s%d, s%d, 1" % (S_CQ, S_J))
    a("s_lshl_b32 s%d, s%d, 2" % (S_D, S_CQ)); a("s_add_u32 s%d, s%d, s%d" % (S_D, S_D, WAVE))
    a("s_lshl_b32 s%d, s%d, 14" % (S_KB, WAVE)); a("s_lshl_b32 s%d, s%d, 12" % (S_UB, WAVE)); a("s_add_u32 s%d, s%d, 65536" % (S_UB, S_UB))
    a("v_and_b32 v1, 15, v%d" % LANE); a("v_lshrrev_b32 v2, 4, v%d" % LANE)
    a("v_lshrrev_b32 v3, 3, v%d" % LANE); a("s_lshl_b32 s6, s%d, 4" % WAVE); a("v_add_u32 v3, s6, v3"); a("v_mul_u32_u24 v3, 896, v3")
    a("v_and_b32 v4, 7, v%d" % LANE); a("v_lshl_add_u32 v3, v4, 4, v3")
    a("s_mul_i32 s6, s%d, %d" % (S_RBK, 64 * 896)); a("s_lshl_b32 s7, s%d, 7" % S_GAM); a("s_add_u32 s6, s6, s7")
    a("v_lshlrev_b32 v4, 3, v%d" % LANE); a("s_lshl_b32 s7, s%d, 9" % S_D); a("v_add_u32 v4, s7, v4")
    a("s_lshl_b32 s7, s%d, 1" % S_D); a("v_mov_b32 v5, s7")
    a("s_waitcnt lgkmcnt(0)")
    G.srd(SU, P_U, 1835008); G.srd(SUT, P_WS, 1835008, WS_UT); G.srd(SDBG, P_DBG, 256); G.srd(SOUT, P_OUT, 3670016)
    G.stamp(0)
    a("s_lshl_b32 s7, s%d, 11" % WAVE)
    for n in range(2):
        a("s_add_u32 m0, s7, %d" % (65536 + n * 1024))
        if n: a("s_add_u32 s6, s6, %d" % (8 * 896))
        a.vmop("buffer_load_dwordx4 v3, s[%d:%d], s6 offen lds" % (SU, SU + 3), "UT")
    for r, p in ((LA, P_LA), (AI, P_AI), (CR, P_CR), (CI, P_CI)):
        a.vmop("global_load_dwordx2 %s, v4, s[%d:%d]" % (vr(r, 2), p, p + 1), "PAR")
    a.vmop("global_load_ushort v%d, v5, s[%d:%d]" % (DT, P_DT, P_DT + 1), "PAR")
    a.vmop("global_load_ushort v%d, v5, s[%d:%d]" % (DS, P_DS, P_DS + 1), "PAR")
    a("v_bfe_u32 v3, v%d, 2, 2" % LANE); a("v_lshl_add_u32 v3, v2, 3, v3"); a("v_lshlrev_b32 v3, 7, v3")
    a("v_and_b32 v4, 3, v%d" % LANE); a("v_lshl_add_u32 v3, v4, 3, v3")
    a("s_lshl_b32 s6, s%d, 5" % WAVE); a("s_add_u32 s6, s6, 65536"); a("v_add_u32 v3, s6, v3")
    a("s_lshl_b32 s6, s%d, 6" % S_GAM); a("s_lshl_b32 s7, s%d, 4" % WAVE); a("s_add_u32 s6, s6, s7"); a("s_lshl_b32 s6, s6, 12")
    a("s_lshl_b32 s7, s%d, 7" % S_RBK); a("s_add_u32 s6, s6, s7")
    a("v_lshlrev_b32 v4, 12, v1"); a("v_lshl_add_u32 v4, v2, 4, v4")
    a("v_mul_u32_u24 v5, %d, v1" % RS); a("v_lshl_add_u32 v5, v2, 4, v5"); a("v_add_u32 v%d, s%d, v5" % (FY, S_KB))
    a("v_min_u32 v6, 8, v1"); a("v_mul_u32_u24 v6, %d, v6" % RS); a("v_lshl_add_u32 v6, v2, 4, v6"); a("v_add_u32 v%d, s%d, v6" % (FX2, S_KB))
    a.vmwait("UT"); a("s_barrier")
    for s2 in range(2):
        for hh in range(2):
            a("ds_read_b64_tr_b16 %s, v3 offset:%d" % (vr(YF + 4 * s2 + 2 * hh, 2), s2 * 4096 + hh * 512))
    a("s_waitcnt lgkmcnt(0)")
    for s2 in range(2):
        a.vmop("buffer_store_dwordx4 %s, v4, s[%d:%d], s6 offen offset:%d sc1" % (vr(YF + 4 * s2, 4), SUT, SUT + 3, 64 * s2), "UTS")
    G.stamp(1)
    a.vmwait("PAR")
    a("v_lshlrev_b32 v%d, 16, v%d" % (DT, DT)); a("v_lshlrev_b32 v%d, 16, v%d" % (DS, DS))
    a("v_mul_f32 v%d, 0x%x, v%d" % (DT, LOG2E, DT)); a("v_exp_f32 v%d, v%d" % (DT, DT))
    a("s_mov_b32 s6, 0x7fff7fff")
    a("v_and_b32 v3, s6, v%d" % CR); a("v_and_b32 v4, s6, v%d" % (CR + 1)); a("v_and_b32 v5, s6, v%d" % CI); a("v_and_b32 v6, s6, v%d" % (CI + 1))
    a("v_pk_max_u16 v3, v3, v4"); a("v_pk_max_u16 v5, v5, v6"); a("v_pk_max_u16 v3, v3, v5")
    a("v_lshrrev_b32 v4, 16, v3"); a("v_and_b32 v3, 0xffff, v3"); a("v_max_u32 v3, v3, v4")
    a("v_cvt_pk_bf16_f32 v%d, v%d, v%d" % (DT, DT, DT)); a("v_lshlrev_b32 v%d, 16, v%d" % (DT, DT))
    for sh in (1, 2, 4, 8): a("v_max_u32_dpp v3, v3, v3 row_shr:%d row_mask:0xf bank_mask:0xf" % sh)
    a("v_max_u32_dpp v3, v3, v3 row_bcast:15 row_mask:0xa bank_mask:0xf")
    a("v_max_u32_dpp v3, v3, v3 row_bcast:31 row_mask:0xc bank_mask:0xf")
    a("v_mul_f32 v%d, 0x%x, v%d" % (KA, LOG2E | 0x80000000, DT)); a("v_mul_f32 v%d, 0.15915494, v%d" % (KT, DT))
    a("v_readlane_b32 s6, v3, 63")
    a("s_lshr_b32 s6, s6, 7"); a("s_sub_u32 s%d, 136, s6" % S_S)
    a("s_mov_b32 m0, s%d" % S_KB); a("v_mov_b32 v3, 0x3c00")
    a("ds_write_addtid_b32 v3 offset:0")

    def cmul_batch(lst):
        assert len(lst) <= len(TP)
        for (d, x, y), t in zip(lst, TP): a("v_pk_mul_f32 %s, %s, %s op_sel:[0,0] op_sel_hi:[0,1]" % (vr(t, 2), vr(x, 2), vr(y, 2)))
        for (d, x, y), t in zip(lst, TP): a("v_pk_fma_f32 %s, %s, %s, %s op_sel:[1,1,0] op_sel_hi:[1,0,1] neg_lo:[1,0,0]" % (vr(d, 2), vr(x, 2), vr(y, 2), vr(t, 2)))
    def cvt(h, x, conj=False): a("v_cvt_pk_f16_f32 v%d, v%d, %sv%d" % (h, x, "-" if conj else "", x + 1))
    def wr(reg, row): a("ds_write_addtid_b32 v%d offset:%d" % (reg, row * RS))
    def prod_batch(lst):
        assert len(lst) <= 16
        for k, (row, x, y) in enumerate(lst): a("v_pk_mul_f16 v%d, v%d, v%d op_sel:[0,0] op_sel_hi:[0,1]" % (PT[k], x, y))
        for k, (row, x, y) in enumerate(lst):
            a("v_pk_fma_f16 v%d, v%d, v%d, v%d op_sel:[1,1,0] op_sel_hi:[1,0,1] neg_lo:[1,0,0]" % (PR[k], x, y, PT[k]))
            if k >= 2: wr(PR[k - 2], lst[k - 2][0])
        for k in range(max(0, len(lst) - 2), len(lst)): wr(PR[k], lst[k][0])
    X0, X1, X2 = 16, 32, 48
    for rho in range(4):
        def unp(d, r):
            if rho & 1: a("v_and_b32 v%d, 0xffff0000, v%d" % (d, r + (rho >> 1)))
            else: a("v_lshlrev_b32 v%d, 16, v%d" % (d, r + (rho >> 1)))
        unp(3, LA); unp(4, AI); unp(5, CR); unp(6, CI)
        a("v_mul_f32 v3, 0x%x, v3" % LOG2E); a("v_exp_f32 v3, v3")
        a("v_mul_f32 v4, v4, v%d" % KT)
        a("v_ldexp_f32 v%d, v5, s%d" % (s_[0], S_S)); a("v_ldexp_f32 v%d, v6, s%d" % (s_[0] + 1, S_S))
        a("v_cvt_pk_bf16_f32 v3, v3, v3"); a("v_lshlrev_b32 v3, 16, v3"); a("v_mul_f32 v3, v3, v%d" % KA)
        m = [TP[0], TP[0] + 1, TP[1]]; ph = [TP[1] + 1, TP[2], TP[2] + 1]
        a("v_mul_f32 v%d, 0x41000000, v4" % ph[1]); a("v_mul_f32 v%d, 0x43000000, v4" % ph[2])
        a("v_fract_f32 v%d, v4" % ph[0]); a("v_fract_f32 v%d, v%d" % (ph[1], ph[1])); a("v_fract_f32 v%d, v%d" % (ph[2], ph[2]))
        a("v_mul_f32 v%d, 0x41000000, v3" % m[1]); a("v_mul_f32 v%d, 0x43000000, v3" % m[2])
        W = [w0, w3, w7]
        for k in range(3): a("v_cos_f32 v%d, v%d" % (W[k], ph[k])); a("v_sin_f32 v%d, v%d" % (W[k] + 1, ph[k]))
        a("v_exp_f32 v%d, v3" % m[0]); a("v_exp_f32 v%d, v%d" % (m[1], m[1])); a("v_exp_f32 v%d, v%d" % (m[2], m[2]))
        cvt(hs[0], s_[0])
        for k in range(3): a("v_mul_f32 v%d, v%d, v%d" % (W[k], W[k], m[k])); a("v_mul_f32 v%d, v%d, v%d" % (W[k] + 1, W[k] + 1, m[k]))
        wr(hs[0], X2 + 8)
        cmul_batch([(w4, w3, w3), (w8, w7, w7), (s_[1], s_[0], w0), (w1, w0, w0)])
        cvt(hw3, w3, True); cvt(hw7, w7); wr(hw3, 1)
        cmul_batch([(w5, w4, w4), (w9, w8, w8), (s_[2], s_[1], w0), (s_[3], s_[1], w1), (w2, w1, w1), (t3, w3, w4)])
        cvt(hw4, w4, True); cvt(hw8, w8); cvt(hs[1], s_[1]); wr(hw4, 2); wr(hs[1], X0 + 0)
        cmul_batch([(w6, w5, w5), (w10, w9, w9), (s_[4], s_[2], w1), (t7, w7, w8), (s_[5], s_[1], w2), (s_[6], s_[2], w2)])
        cvt(hw5, w5, True); cvt(ht3, t3, True); cvt(hs[2], s_[2]); cvt(hs[3], s_[3])
        wr(hw5, 4); wr(ht3, 3); wr(hs[2], X0 + 1); wr(hs[3], X0 + 2)
        cmul_batch([(t5, w5, w6), (s_[7], s_[3], w2), (s_[8], s_[4], w2), (S3a, s_[4], w9)])
        cvt(hw6, w6, True); cvt(ht7, t7); cvt(hs[4], s_[4]); cvt(hs[5], s_[5]); cvt(hs[6], s_[6])
        wr(hw6, 8); wr(hs[4], X0 + 3); wr(hs[5], X0 + 4); wr(hs[6], X0 + 5)
        cmul_batch([(S3b, s_[8], w9), (S4a, s_[8], w10)])
        cvt(ht5, t5, True); cvt(hs[7], s_[7]); cvt(hs[8], s_[8]); cvt(hS3a, S3a)
        wr(ht5, 12); wr(hs[7], X0 + 6); wr(hs[8], X0 + 7); wr(hS3a, X1 + 8)
        cmul_batch([(S4b, S3b, w10)])
        lo = [None, hw3, hw4, ht3]; hi = [None, hw5, hw6, ht5]; M = [None, hw7, hw8, ht7]
        prod_batch([(m0 + 4 * m1, lo[m0], hi[m1]) for m1 in (1, 2, 3) for m0 in (1, 2, 3)])
        cvt(hS3b, S3b); cvt(hS4a, S4a); cvt(hS4b, S4b)
        wr(hS3b, X1 + 9); wr(hS4a, X2 + 0); wr(hS4b, X2 + 4)
        prod_batch([(X0 + 8 + k, hs[k + 1], hw7) for k in range(8)] + [(X1 + k, hs[2 * k + 2], hw8) for k in range(4)] + [(X1 + 4 + k, hs[2 * k + 2], ht7) for k in range(4)])
        for ks in range(4):
            a("ds_read_b128 %s, v%d offset:%d" % (vr(YF + 4 * ks, 4), FY, ks * 64))
            a("ds_read_b128 %s, v%d offset:%d" % (vr(XF + 4 * ks, 4), FY, X0 * RS + ks * 64))
        prod_batch([(X1 + 8 + 2 * i, hS3a, M[i]) for i in (1, 2, 3)] + [(X1 + 9 + 2 * i, hS3b, M[i]) for i in (1, 2, 3)]
                   + [(X2 + i, hS4a, M[i]) for i in (1, 2, 3)] + [(X2 + 4 + i, hS4b, M[i]) for i in (1, 2, 3)])
        for ks in range(4):
            a("ds_read_b128 %s, v%d offset:%d" % (vr(XF + 16 + 4 * ks, 4), FY, X1 * RS + ks * 64))
            a("ds_read_b128 %s, v%d offset:%d" % (vr(XF + 32 + 4 * ks, 4), FX2, X2 * RS + ks * 64))
        if rho == 0:
            a.vmwait("UTS"); a("s_barrier")
            a("s_and_b32 s6, s%d, 3" % S_GAM); a("s_lshl_b32 s6, s6, 6"); a("s_lshr_b32 s7, s%d, 2" % S_GAM); a("s_lshl_b32 s7, s7, 2")
            a("s_add_u32 s6, s6, s7"); a("s_add_u32 s76, s6, 4")
            G.signal(76, 3, 4)
        a("s_waitcnt lgkmcnt(0)")
        for ks in range(4):
            for tl in range(3):
                c = vr(ACC + 4 * tl, 4)
                a("v_mfma_f32_16x16x32_f16 %s, %s, %s, %s" % (c, vr(XF + 16 * tl + 4 * ks, 4), vr(YF + 4 * ks, 4), "0" if (rho == 0 and ks == 0) else c))
    G.stamp(2)
    a("v_mov_b32 v3, s76"); a("s_mov_b32 s7, 32"); a("s_mov_b64 s[78:79], 1")
    G.poll(3, 4, 7, 78)
    a("v_lshlrev_b32 v3, 4, v%d" % LANE); a("s_lshl_b32 s6, s%d, 12" % S_D)
    for k in range(4):
        a.vmop("buffer_load_dwordx4 %s, v3, s[%d:%d], s6 offen offset:%d sc1" % (vr(UR + 4 * k, 4), SUT, SUT + 3, 1024 * k), "U")
    G.stamp(3)
    a("v_add_f32 v%d, v%d, v%d" % (DT, DT, DT)); a("s_sub_u32 s7, 0, s%d" % S_S)
    for k in range(12): a("v_mul_f32 v%d, v%d, v%d" % (ACC + k, ACC + k, DT))
    for k in range(12): a("v_ldexp_f32 v%d, v%d, s7" % (ACC + k, ACC + k))
    a("v_cmp_le_u32 vcc, 2, v2"); a("v_mov_b32 v3, 0"); a("v_cndmask_b32 v3, v3, v%d, vcc" % DS)
    a("v_add_f32 v%d, v%d, v3" % (ACC + 8, ACC + 8))
    C = 40
    for k in range(6): a("v_cvt_pk_bf16_f32 v%d, v%d, v%d" % (C + k, ACC + 2 * k, ACC + 2 * k + 1))
    a("v_lshrrev_b32 v3, 1, v2"); a("v_lshlrev_b32 v3, 8, v3"); a("v_lshl_add_u32 v3, v1, 4, v3"); a("v_and_b32 v4, 1, v2"); a("v_lshl_add_u32 v3, v4, 3, v3")
    a("v_add_u32 v3, s%d, v3" % S_UB)
    a("ds_write_b64 v3, %s offset:16" % vr(C, 2))
    a("v_lshlrev_b32 v3, 7, v2"); a("v_lshl_add_u32 v3, v1, 3, v3"); a("v_add_u32 v3, 528, v3"); a("v_add_u32 v4, 4, v3")
    a("v_lshlrev_b32 v5, 7, v2"); a("v_lshl_add_u32 v5, v1, 2, v5"); a("v_add_u32 v5, %d, v5" % (784 - 256)); a("v_add_u32 v6, 64, v5")
    a("v_cndmask_b32 v3, v3, v5, vcc"); a("v_cndmask_b32 v4, v4, v6, vcc")
    a("v_add_u32 v3, s%d, v3" % S_UB); a("v_add_u32 v4, s%d, v4" % S_UB)
    a("ds_write_b32 v3, v%d" % (C + 2)); a("ds_write_b32 v4, v%d" % (C + 3))
    a("v_lshlrev_b32 v3, 7, v2"); a("v_lshl_add_u32 v3, v1, 1, v3"); a("v_add_u32 v3, 1040, v3")
    a("v_add_u32 v4, 1024, v3"); a("v_cndmask_b32 v3, v3, v4, vcc")
    a("v_cmp_eq_u32 vcc, 32, v%d" % LANE); a("v_mov_b32 v5, 14"); a("v_cndmask_b32 v4, v3, v5, vcc")
    a("v_add_u32 v3, s%d, v3" % S_UB); a("v_add_u32 v4, s%d, v4" % S_UB)
    a("ds_write_b16 v4, v%d" % (C + 4)); a("ds_write_b16_d16_hi v3, v%d offset:32" % (C + 4))
    a("ds_write_b16 v3, v%d offset:64" % (C + 5)); a("ds_write_b16_d16_hi v3, v%d offset:96" % (C + 5))
    D = lambda p: 48 + 8 * p
    Rr = 96
    a("s_mov_b32 s6, 0xffff"); a("s_mov_b32 s7, 0x01000302"); a("s_mov_b32 s76, 0x03020302"); a("s_mov_b32 s77, 0x01000100")
    a("v_lshlrev_b32 v3, 4, v%d" % LANE); a("v_add_u32 v3, s%d, v3" % S_UB)
    a("v_lshlrev_b32 v4, 3, v%d" % LANE); a("v_add_u32 v4, s%d, v4" % S_UB)
    a("v_lshlrev_b32 v5, 2, v%d" % LANE); a("v_add_u32 v5, s%d, v5" % S_UB)
    a("v_lshlrev_b32 v6, 1, v%d" % LANE); a("v_add_u32 v6, s%d, v6" % S_UB)
    a("ds_read_b128 %s, v3 offset:16" % vr(Rr, 4)); a("ds_read_b32 v%d, v3 offset:12" % (Rr + 4))
    a("ds_read_b64 %s, v4 offset:272" % vr(Rr + 6, 2)); a("ds_read_b32 v%d, v4 offset:268" % (Rr + 5))
    a("ds_read_b32 v%d, v5 offset:784" % (Rr + 8)); a("ds_read_b32 v%d, v5 offset:780" % (Rr + 9))
    for p in range(2):
        a("ds_read_u16 v%d, v6 offset:%d" % (Rr + 10 + 2 * p, 1038 + 128 * p)); a("ds_read_u16 v%d, v6 offset:%d" % (Rr + 11 + 2 * p, 1040 + 128 * p))
    a("v_and_b32 v3, 1, v%d" % LANE); a("v_cmp_eq_u32 vcc, 1, v3")
    a("s_waitcnt lgkmcnt(0)")
    d = D(0)
    a("v_perm_b32 v%d, v%d, v%d, s7" % (d, Rr + 7, Rr + 7)); a("v_perm_b32 v%d, v%d, v%d, s76" % (d + 1, Rr + 6, Rr + 6))
    a("v_perm_b32 v%d, v%d, v%d, s7" % (d + 2, Rr + 6, Rr + 6)); a("v_perm_b32 v%d, v%d, v%d, s76" % (d + 3, Rr + 5, Rr + 5))
    a("s_mov_b64 exec, 0xffffffff")
    a("v_bfi_b32 v%d, s6, v%d, v%d" % (d, Rr + 3, Rr + 2)); a("v_bfi_b32 v%d, s6, v%d, v%d" % (d + 1, Rr + 2, Rr + 1))
    a("v_bfi_b32 v%d, s6, v%d, v%d" % (d + 2, Rr + 1, Rr)); a("v_bfi_b32 v%d, s6, v%d, v%d" % (d + 3, Rr, Rr + 4))
    a("s_mov_b64 exec, -1")
    d = D(1)
    a("v_perm_b32 v%d, v%d, v%d, s76" % (d, Rr + 8, Rr + 8)); a("v_perm_b32 v%d, v%d, v%d, s77" % (d + 1, Rr + 8, Rr + 8))
    a("v_bfi_b32 v%d, s6, v%d, v%d" % (d + 2, Rr + 8, Rr + 9)); a("v_perm_b32 v%d, v%d, v%d, s76" % (d + 3, Rr + 9, Rr + 9))
    for p in range(2):
        d = D(2 + p); V0, V1 = Rr + 10 + 2 * p, Rr + 11 + 2 * p
        a("v_lshl_or_b32 v%d, v%d, 16, v%d" % (d, V1, V1)); a("v_lshl_or_b32 v%d, v%d, 16, v%d" % (d + 2, V0, V0)); a("v_mov_b32 v%d, v%d" % (d + 3, d + 2))
        a("v_cndmask_b32 v%d, v%d, v%d, vcc" % (V0, V0, V1)); a("v_lshl_or_b32 v%d, v%d, 16, v%d" % (d + 1, V0, V1))
    a("v_lshlrev_b32 v3, 4, v%d" % LANE); a("v_sub_u32 v3, 1008, v3")
    for sg in range(4):
        a("v_xor_b32 v4, %d, v3" % (sg << 6)); a("v_add_u32 v%d, s%d, v4" % (Rr + sg, S_KB))
    for p in range(4): a("ds_write_b128 v%d, %s offset:%d" % (Rr, vr(D(p), 4), 1024 * (3 - p)))
    for p in range(4): a("ds_read_b64 %s, v%d offset:%d" % (vr(D(p) + 4, 2), Rr, 1024 * (3 - p) + 16))
    a("s_waitcnt lgkmcnt(0)")
    a("s_mov_b64 exec, 1"); a("v_mov_b32 v%d, 0" % (D(0) + 4)); a("v_mov_b32 v%d, 0" % (D(0) + 5)); a("s_mov_b64 exec, -1")
    E = 104
    for p in range(4):
        d = D(p); e = E + 12 * p
        for k in range(4): a("v_alignbit_b32 v%d, v%d, v%d, 16" % (e + k, d + k + 1, d + k))
        for k in range(4): a("v_mov_b32 v%d, v%d" % (e + 4 + k, d + 1 + k))
        for k in range(4): a("v_alignbit_b32 v%d, v%d, v%d, 16" % (e + 8 + k, d + k + 2, d + k + 1))
        for sg in range(1, 4):
            a("ds_write_b128 v%d, %s offset:%d" % (Rr + sg, vr(e + 4 * (sg - 1), 4), sg * 4096 + 1024 * (3 - p)))
    a("v_lshlrev_b32 v3, 4, v%d" % LANE); a("v_add_u32 v3, s%d, v3" % S_UB)
    a.vmwait("U")
    for k in range(4): a("ds_write_b128 v3, %s offset:%d" % (vr(UR + 4 * k, 4), 1024 * k))
    G.stamp(4)
    AA = 160
    BA = 168
    CA = 144
    a("v_lshrrev_b32 v3, 2, v1"); a("v_and_b32 v4, 3, v1"); a("v_sub_u32 v4, 3, v4")
    a("v_lshlrev_b32 v3, 3, v3"); a("v_lshlrev_b32 v5, 4, v2"); a("v_sub_u32 v3, v5, v3")
    a("v_lshlrev_b32 v5, 6, v4"); a("v_lshlrev_b32 v4, 12, v4"); a("v_add_u32 v4, s%d, v4" % S_KB)
    for mm in range(4):
        for wh in range(2):
            a("v_add_u32 v6, %d, v3" % (216 - 64 * mm + 8 * wh)); a("v_xor_b32 v6, v6, v5"); a("v_add_u32 v%d, v6, v4" % (AA + 2 * mm + wh))
    a("v_lshlrev_b32 v3, 5, v1"); a("v_lshl_add_u32 v3, v2, 4, v3"); a("s_sub_u32 s6, s%d, 544" % S_UB); a("v_add_u32 v%d, s6, v3" % BA)
    a("v_mov_b32 v%d, 0" % (BA + 2))
    a("v_mov_b32 v%d, v3" % (BA + 1))
    Llo = a.newlabel("conv_lo"); Lout = a.newlabel("conv_out")
    a("s_and_b32 s6, s%d, 1" % S_J); a("s_cmp_eq_u32 s6, 1"); a("s_cbranch_scc1 %s" % Llo)
    def conv(ts):
        tmax = max(ts); n = tmax + 1
        AB = lambda b: 16 + 32 * b; BB = lambda b: 80 + 32 * b
        def reads(rp):
            b = rp & 1
            for k in range(n):
                s = k; q = k
                off = 512 * (7 - s) + (256 if rp < 4 else 0)
                a("ds_read_b64 %s, v%d offset:%d" % (vr(AB(b) + 4 * s, 2), AA + 2 * (rp & 3), off))
                a("ds_read_b64 %s, v%d offset:%d" % (vr(AB(b) + 4 * s + 2, 2), AA + 2 * (rp & 3) + 1, off))
                a("ds_read_b128 %s, v%d offset:%d" % (vr(BB(b) + 4 * q, 4), BA, 512 * q - 64 * rp + 512))
        reads(0)
        for rp in range(8):
            b = rp & 1
            a("v_cmp_gt_u32 vcc, %d, v%d" % (32 + 64 * rp, BA + 1))
            a("s_waitcnt lgkmcnt(0)")
            if rp + 1 < 8: reads(rp + 1)
            for k in range(4): a("v_cndmask_b32 v%d, v%d, v%d, vcc" % (BB(b) + k, BB(b) + k, BA + 2))
            if rp == 0:
                a("s_mov_b32 s6, 0"); a("s_mov_b32 s7, 0x00ff0000"); a("s_mov_b64 exec, s[6:7]")
                a("v_mov_b32 v%d, 0" % AB(b)); a("v_mov_b32 v%d, 0" % (AB(b) + 1))
                a("s_mov_b32 s7, 0x0fff000f"); a("s_mov_b64 exec, s[6:7]")
                a("v_mov_b32 v%d, 0" % (AB(b) + 2)); a("v_mov_b32 v%d, 0" % (AB(b) + 3))
                a("s_mov_b64 exec, -1")
            lst = [(ti, s, t - s) for ti, t in enumerate(ts) for s in range(t + 1)]
            lst.sort(key=lambda z: (z[1] == 0 or z[2] == 0, z[1]))
            seen = set()
            for ti, s, q in lst:
                c = vr(CA + 4 * ti, 4)
                first = rp == 0 and ti not in seen; seen.add(ti)
                a("v_mfma_f32_16x16x32_bf16 %s, %s, %s, %s" % (c, vr(AB(b) + 4 * s, 4), vr(BB(b) + 4 * q, 4), "0" if first else c))
    conv([7, 6, 1, 0])
    a("s_mov_b32 s76, 0x00010607")
    a("s_branch %s" % Lout)
    a.label(Llo)
    conv([5, 4, 3, 2])
    a("s_mov_b32 s76, 0x02030405")
    a.label(Lout); a.fence(8)
    G.stamp(5)
    a("v_lshlrev_b32 v3, 5, v1"); a("v_lshl_add_u32 v3, v2, 3, v3"); a("s_lshl_b32 s6, s%d, 6" % WAVE); a("s_add_u32 s6, s6, s%d" % S_KB); a("v_add_u32 v3, s6, v3")
    for ti in range(4):
        a("v_cvt_pk_bf16_f32 v%d, v%d, v%d" % (16 + 2 * ti, CA + 4 * ti, CA + 4 * ti + 1)); a("v_cvt_pk_bf16_f32 v%d, v%d, v%d" % (17 + 2 * ti, CA + 4 * ti + 2, CA + 4 * ti + 3))
        a("ds_write_b64 v3, %s offset:%d" % (vr(16 + 2 * ti, 2), 512 * ti))
    a("v_bfe_u32 v3, v%d, 2, 2" % LANE); a("v_mul_u32_u24 v3, 16448, v3"); a("v_lshl_add_u32 v3, v2, 5, v3")
    a("v_and_b32 v4, 3, v%d" % LANE); a("v_lshl_add_u32 v3, v4, 3, v3"); a("s_lshl_b32 s6, s%d, 9" % WAVE); a("v_add_u32 v3, s6, v3")
    a("s_lshl_b32 s6, s%d, 3" % WAVE); a("s_lshr_b32 s6, s76, s6"); a("s_and_b32 s6, s6, 0xff"); a("s_mul_i32 s6, s6, %d" % (256 * 1792))
    a("s_lshl_b32 s7, s%d, 3" % S_CQ); a("s_add_u32 s6, s6, s7"); a("s_add_u32 s6, s6, 896")
    a("v_mul_u32_u24 v4, 1792, v%d" % LANE)
    a("s_waitcnt lgkmcnt(0)"); a("s_barrier")
    for it in range(4): a("ds_read_b64_tr_b16 %s, v3 offset:%d" % (vr(24 + 2 * it, 2), 128 * it))
    for it in range(4):
        a("s_waitcnt lgkmcnt(%d)" % (3 - it))
        a.vmop("buffer_store_dwordx2 %s, v4, s[%d:%d], s6 offen" % (vr(24 + 2 * it, 2), SOUT, SOUT + 3), "S")
        if it < 3: a("s_add_u32 s6, s6, %d" % (64 * 1792))
    G.stamp(6)
    G.dump_stamps()
```

```python
import sys
from asmlib import *

KNAME = "concat_heads__linear_attn_block__ssm_conv_s4d__prompt_kernel"
NWG = 464
LDS = 81920
WS_PQ, WS_UT, WS_KV, WS_TS = 0, 0x200000, 0x400000, 0x500000
LOG2E = 0x3fb8aa3b
POLL_CAP = 1 << 22

XCD, SLOT, WAVE = 3, 4, 5
P_X, P_W, P_WO, P_U, P_LA, P_AI, P_CR, P_CI, P_DT, P_DS, P_OUT, P_DBG, P_WS = 16, 18, 20, 22, 24, 26, 28, 30, 32, 34, 36, 38, 40
SX, SW, SPQ, SKV, SOUT, SDBG, SWO, SUT, SU = 44, 48, 52, 56, 60, 64, 68, 72, 44
TS0 = 80

class Gen:
    def __init__(self, stamps=False):
        self.a = Asm()
        self.stamps = stamps
        self.nst = 0

    def srd(self, d, p, nbytes, off=0):
        a = self.a
        if off:
            a("s_add_u32 s%d, s%d, 0x%x" % (d, p, off)); a("s_addc_u32 s%d, s%d, 0" % (d + 1, p + 1))
        else:
            a("s_mov_b32 s%d, s%d" % (d, p)); a("s_mov_b32 s%d, s%d" % (d + 1, p + 1))
        a("s_mov_b32 s%d, 0x%x" % (d + 2, nbytes)); a("s_mov_b32 s%d, 0x00020000" % (d + 3))

    def stamp(self, k):
        if not self.stamps: return
        self.a("s_memrealtime s[%d:%d]" % (TS0 + 2 * k, TS0 + 2 * k + 1))
        self.a("s_waitcnt lgkmcnt(0)")

    def dump_stamps(self):
        if not self.stamps: return
        a = self.a
        a.vmwait_all()
        self.stamp(9)
        self.srd(76, P_WS, 0x100000, WS_TS)
        a("s_lshl_b32 s6, s2, 2"); a("s_add_u32 s6, s6, s%d" % WAVE); a("s_lshl_b32 s6, s6, 6")
        a("v_mov_b32 v0, s6")
        a("s_mov_b64 exec, 1")
        for k in range(10):
            a("v_mov_b32 v1, s%d" % (TS0 + 2 * k))
            a("buffer_store_dword v1, v0, s[76:79], 0 offen offset:%d" % (4 * k))
        a("s_mov_b64 exec, -1")

    def signal(self, s_dw_byte, va, vb):
        a = self.a
        L = a.newlabel("sig")
        a("s_cmp_lg_u32 s%d, 0" % WAVE); a("s_cbranch_scc1 %s" % L)
        a("v_mov_b32 v%d, s%d" % (va, s_dw_byte)); a("v_mov_b32 v%d, 1" % vb)
        a("s_mov_b64 exec, 1")
        a("buffer_atomic_add v%d, v%d, s[%d:%d], 0 offen sc1" % (vb, va, SDBG, SDBG + 3))
        a("s_mov_b64 exec, -1")
        a.label(L)

    def poll(self, vaddr, vval, s_expect, s_mask):
        a = self.a
        L = a.newlabel("poll"); D = a.newlabel("polld")
        a("s_mov_b32 s6, 0")
        a.label(L)
        a("buffer_load_dword v%d, v%d, s[%d:%d], 0 offen sc1" % (vval, vaddr, SDBG, SDBG + 3))
        a("s_add_u32 s6, s6, 1")
        a("s_waitcnt vmcnt(0)"); a.vm = []
        a("v_cmp_ne_u32 vcc, s%d, v%d" % (s_expect, vval))
        a("s_and_b64 vcc, vcc, s[%d:%d]" % (s_mask, s_mask + 1))
        a("s_cbranch_scc0 %s" % D)
        a("s_sleep 1")
        a("s_cmp_lt_u32 s6, 0x%x" % POLL_CAP)
        a("s_cbranch_scc1 %s" % L)
        a.label(D)

    def phi(self, regs, tmps):
        a = self.a
        n = len(tmps)
        for b in range(0, len(regs), n):
            rr = regs[b:b + n]
            for r, t in zip(rr, tmps): a("v_mul_f32 v%d, 0x%x, v%d" % (t, LOG2E, r))
            for r, t in zip(rr, tmps): a("v_min_f32 v%d, 0, v%d" % (t, t))
            for r, t in zip(rr, tmps): a("v_exp_f32 v%d, v%d" % (t, t))
            for r, t in zip(rr, tmps): a("v_max_f32 v%d, 0, v%d" % (r, r))
            for r, t in zip(rr, tmps): a("v_add_f32 v%d, 0x358637bd, v%d" % (r, r))
            for r, t in zip(rr, tmps): a("v_add_f32 v%d, v%d, v%d" % (r, r, t))

    def gemm(self, isq):
        a = self.a
        XA0, XA1, DA, LANE, FA, F0, F1, ACC, X = 4, 5, 6, 7, 8, 16, 48, 80, 144
        U = 7 if isq else 14
        S_XOFF, S_WB, S_T, S_RB, S_HP = 8, 9, 10, 11, 12
        Xr = lambda rt, ks: X + (rt * 14 + ks) * 4
        if isq:
            a("s_cmp_ge_u32 s%d, 7" % SLOT); a("s_cselect_b32 s6, 1, 0")
            a("s_mul_i32 s7, s6, 7"); a("s_sub_u32 s%d, s%d, s7" % (S_HP, SLOT))
            a("s_lshl_b32 s%d, s%d, 7" % (S_WB, S_HP))
        else:
            a("s_sub_u32 s7, s%d, 14" % SLOT); a("s_lshr_b32 s6, s7, 3"); a("s_and_b32 s%d, s7, 7" % S_HP)
            a("s_mul_i32 s%d, s%d, 112" % (S_WB, S_HP)); a("s_add_u32 s%d, s%d, 896" % (S_WB, S_WB))
        a("s_lshl_b32 s%d, s%d, 1" % (S_RB, XCD)); a("s_add_u32 s%d, s%d, s6" % (S_RB, S_RB))
        a("s_mul_i32 s%d, s%d, 114688" % (S_XOFF, S_RB))
        a("v_and_b32 v1, 15, v%d" % LANE); a("v_lshrrev_b32 v2, 4, v%d" % LANE)
        a("s_lshl_b32 s6, s%d, 5" % WAVE); a("v_add_u32 v3, s6, v1"); a("v_mul_u32_u24 v3, 896, v3")
        a("v_lshl_add_u32 v%d, v2, 4, v3" % XA0); a("v_add_u32 v%d, 14336, v%d" % (XA1, XA0))
        t = F0
        a("s_and_b32 s6, s%d, 1" % WAVE); a("s_lshl_b32 s6, s6, 2")
        a("v_or_b32 v%d, s6, v2" % t)
        a("v_lshrrev_b32 v%d, 1, v1" % (t + 1)); a("v_xor_b32 v%d, v%d, v%d" % (t + 1, t + 1, t))
        a("v_and_b32 v%d, 1, v1" % (t + 2)); a("v_lshl_or_b32 v%d, v%d, 1, v%d" % (t + 1, t + 1, t + 2))
        a("v_lshrrev_b32 v%d, 3, v%d" % (t + 2, t + 1))
        a("v_and_b32 v%d, 7, v%d" % (t + 1, t + 1))
        if not isq: a("v_min_u32 v%d, 6, v%d" % (t + 1, t + 1))
        a("s_lshl_b32 s6, s%d, 3" % WAVE); a("v_add_u32 v%d, s6, v2" % (t + 3)); a("v_mul_u32_u24 v%d, 2688, v%d" % (t + 3, t + 3))
        a("v_mul_u32_u24 v%d, %d, v%d" % (t + 2, 602112 if isq else 896, t + 2))
        a("v_lshl_add_u32 v%d, v%d, 4, v%d" % (t + 3, t + 1, t + 3)); a("v_add_u32 v%d, v%d, v%d" % (DA, t + 3, t + 2))
        a("s_waitcnt lgkmcnt(0)")
        self.srd(SX, P_X, 1835008); self.srd(SW, P_W, 1204224)
        self.srd(SKV, P_WS, 65536, WS_KV); self.srd(SDBG, P_DBG, 256); self.srd(SPQ, P_WS, 1835008 + 64, WS_PQ)
        self.stamp(0)
        if isq:
            L = a.newlabel("nz")
            a("s_cmp_lg_u32 s%d, 0" % S_HP); a("s_cbranch_scc1 %s" % L)
            for k in range(4): a("v_mov_b32 v%d, 0" % (F1 + k))
            a("v_lshlrev_b32 v3, 4, v0"); a("s_lshl_b32 s6, s%d, 12" % S_RB)
            a("buffer_store_dwordx4 v[%d:%d], v3, s[%d:%d], s6 offen sc1" % (F1, F1 + 3, SKV, SKV + 3))
            a.label(L)
        def dma(u):
            slot = u % 8
            for n in range(2):
                a("s_lshl_b32 s6, s%d, 11" % WAVE) if False else None
                a("s_add_u32 m0, s13, %d" % (slot * 8192 + n * 1024))
                a("s_add_u32 s%d, s%d, %d" % (S_T, S_WB, (32 * u + 4 * n) * 2688))
                a.vmop("buffer_load_dwordx4 v%d, s[%d:%d], s%d offen lds" % (DA, SW, SW + 3, S_T), ("W", u))
        def xload(ks):
            for rt in range(2):
                a.vmop("buffer_load_dwordx4 %s, v%d, s[%d:%d], s%d offen offset:%d" % (vr(Xr(rt, ks), 4), XA1 if rt else XA0, SX, SX + 3, S_XOFF, ks * 64), ("X", ks))
        a("s_lshl_b32 s13, s%d, 11" % WAVE)
        if isq:
            for u in range(7): dma(u); xload(u); xload(u + 7)
        else:
            for u in range(8): dma(u); xload(u)
            for u in range(8, 14): xload(u)
        a("v_bfe_u32 v%d, v%d, 2, 2" % (t, LANE))
        a("v_and_b32 v%d, 3, v%d" % (t + 1, LANE))
        a("v_and_b32 v%d, 1, v2" % (t + 2)); a("v_lshl_or_b32 v%d, v%d, 2, v%d" % (t + 2, t + 2, t))
        a("v_lshl_add_u32 v%d, v2, 3, v%d" % (t + 3, t)); a("v_lshlrev_b32 v%d, 8, v%d" % (t + 3, t + 3))
        for tt in range(8):
            if isq:
                o0 = 128 * (tt >> 2) + 64 * ((tt >> 1) & 1) + 8 * (tt & 1); sh = 4
            else:
                o0 = [0, 32, 56, 88, 128, 160, 184, 216][tt]; sh = 3
            a("v_lshlrev_b32 v%d, %d, v%d" % (t + 4, sh, t + 1)); a("v_add_u32 v%d, %d, v%d" % (t + 4, o0, t + 4))
            a("v_lshrrev_b32 v%d, 5, v%d" % (t + 5, t + 4)); a("v_xor_b32 v%d, v%d, v%d" % (t + 5, t + 5, t + 2))
            a("v_and_b32 v%d, 31, v%d" % (t + 4, t + 4)); a("v_lshl_or_b32 v%d, v%d, 5, v%d" % (t + 4, t + 5, t + 4))
            a("v_add_u32 v%d, v%d, v%d" % (FA + tt, t + 4, t + 3))
        def freads(u):
            Fb = F1 if u & 1 else F0
            for tt in range(8):
                for hh in range(2):
                    a("ds_read_b64_tr_b16 %s, v%d offset:%d" % (vr(Fb + 4 * tt + 2 * hh, 2), FA + tt, (u % 8) * 8192 + hh * 1024))
        def tags(u): return [("W", u), ("X", u)] + ([("X", u + 7)] if isq else [])
        def mfmas(u, half):
            Fb = F1 if u & 1 else F0
            for tt in range(4 * half, 4 * half + 4):
                for rt in range(2):
                    if isq:
                        acc = ACC + (rt * 4 + (tt & 3)) * 4; x = Xr(rt, u + 7 * (tt >> 2)); first = (u == 0 and tt < 4)
                        a("v_mfma_f32_16x16x32_bf16 %s, %s, %s, %s" % (vr(acc, 4), vr(Fb + 4 * tt, 4), vr(x, 4), "0" if first else vr(acc, 4)))
                    else:
                        acc = ACC + (rt * 8 + tt) * 4; x = Xr(rt, u); first = (u == 0)
                        a("v_mfma_f32_16x16x32_bf16 %s, %s, %s, %s" % (vr(acc, 4), vr(x, 4), vr(Fb + 4 * tt, 4), "0" if first else vr(acc, 4)))
        a.vmwait(*tags(0)); a("s_barrier")
        self.stamp(1)
        if isq:
            L = a.newlabel("nzs")
            a("s_cmp_lg_u32 s%d, 0" % S_HP); a("s_cbranch_scc1 %s" % L)
            a("s_mov_b32 s6, 32"); self.signal(6, 1, 2)
            a.label(L)
        freads(0)
        ZV = Xr(0, 0)
        for u in range(U):
            a("s_waitcnt lgkmcnt(0)")
            mfmas(u, 0)
            if u + 1 < U:
                a.vmwait(*tags(u + 1)); a("s_barrier")
                if u + 8 < U: dma(u + 8)
                freads(u + 1)
                if (not isq) and u == 9:
                    a("v_mov_b32 v%d, 32" % (ZV + 1))
                    a.vmop("buffer_load_dword v%d, v%d, s[%d:%d], 0 offen sc1" % (ZV, ZV + 1, SDBG, SDBG + 3), "Z")
            mfmas(u, 1)
        self.stamp(2)
        T = [F0 + k for k in range(8)]
        T = [Xr(1, 0) + k for k in range(8)]
        if isq:
            self.phi([ACC + k for k in range(32)], T)
            a("s_add_u32 s6, s%d, s%d" % (S_XOFF, S_WB))
            for rt in range(2):
                for P in range(2):
                    d = Xr(0, 2) + (rt * 2 + P) * 4
                    for j in range(2):
                        acc = ACC + (rt * 4 + 2 * P + j) * 4
                        a("v_cvt_pk_bf16_f32 v%d, v%d, v%d" % (d + 2 * j, acc, acc + 1))
                        a("v_cvt_pk_bf16_f32 v%d, v%d, v%d" % (d + 2 * j + 1, acc + 2, acc + 3))
                    a.vmop("buffer_store_dwordx4 %s, v%d, s[%d:%d], s6 offen offset:%d sc1" % (vr(d, 4), XA1 if rt else XA0, SPQ, SPQ + 3, 64 * P), "S")
        else:
            self.phi([ACC + (rt * 8 + tt) * 4 + r for rt in range(2) for tt in range(4) for r in range(4)], T)
            PK = Xr(0, 2)
            for tt in range(8):
                for rt in range(2):
                    acc = ACC + (rt * 8 + tt) * 4
                    a("v_cvt_pk_bf16_f32 v%d, v%d, v%d" % (PK + 4 * tt + 2 * rt, acc, acc + 1))
                    a("v_cvt_pk_bf16_f32 v%d, v%d, v%d" % (PK + 4 * tt + 2 * rt + 1, acc + 2, acc + 3))
            a("v_and_b32 v1, 15, v%d" % LANE); a("v_lshrrev_b32 v2, 4, v%d" % LANE)
            a("v_cmp_eq_u32 vcc, 12, v1"); a("v_mov_b32 v3, 0x3f803f80"); a("v_mov_b32 v0, 0")
            a("v_cndmask_b32 v3, v0, v3, vcc")
            a("v_cmp_le_u32 vcc, 12, v1")
            for tt in (1, 3):
                for k in range(4): a("v_cndmask_b32 v%d, v%d, v0, vcc" % (PK + 4 * tt + k, PK + 4 * tt + k))
            for tt in (5, 7):
                for k in range(4): a("v_cndmask_b32 v%d, v%d, v3, vcc" % (PK + 4 * tt + k, PK + 4 * tt + k))
            KT = F0
            for hd in range(2):
                for je in range(2):
                    for jd in range(2):
                        tau = 4 * hd + 2 * je + jd
                        a("v_mfma_f32_16x16x32_bf16 %s, %s, %s, 0" % (vr(KT + 4 * tau, 4), vr(PK + 4 * (4 + 2 * hd + je), 4), vr(PK + 4 * (2 * hd + jd), 4)))
            a("s_barrier")
            a("s_lshl_b32 s6, s%d, 13" % WAVE); a("v_lshl_add_u32 v0, v%d, 4, s6" % LANE)
            for tau in range(8): a("ds_write_b128 v0, %s offset:%d" % (vr(KT + 4 * tau, 4), tau * 1024))
            a("s_waitcnt lgkmcnt(0)"); a("s_barrier")
            a("s_lshl_b32 s6, s%d, 11" % WAVE); a("v_lshl_add_u32 v0, v%d, 4, s6" % LANE)
            R = F1
            for sw in range(4):
                for jd in range(2):
                    a("ds_read_b128 %s, v0 offset:%d" % (vr(R + (sw * 2 + jd) * 4, 4), sw * 8192 + jd * 1024))
            a("s_lshl_b32 s6, s%d, 2" % S_HP); a("s_add_u32 s6, s6, s%d" % WAVE); a("s_lshl_b32 s6, s6, 11")
            a("v_lshlrev_b32 v3, 9, v2"); a("v_lshl_add_u32 v3, v1, 2, v3")
            a.vmwait("Z")
            Lok = a.newlabel("zok")
            a("v_cmp_ne_u32 vcc, 16, v%d" % ZV); a("s_cbranch_vccz %s" % Lok)
            a("s_mov_b32 s14, s6")
            a("s_mov_b32 s7, 16"); a("s_mov_b64 s[76:77], -1")
            self.poll(ZV + 1, ZV, 7, 76)
            a("s_mov_b32 s6, s14")
            a.label(Lok)
            a("s_waitcnt lgkmcnt(0)")
            for k in range(8):
                a("v_add_f32 v%d, v%d, v%d" % (R + k, R + k, R + 8 + k)); a("v_add_f32 v%d, v%d, v%d" % (R + 16 + k, R + 16 + k, R + 24 + k))
            for k in range(8): a("v_add_f32 v%d, v%d, v%d" % (R + k, R + k, R + 16 + k))
            for jd in range(2):
                for r in range(4):
                    a.vmop("buffer_atomic_add_f32 v%d, v3, s[%d:%d], s6 offen offset:%d" % (R + jd * 4 + r, SKV, SKV + 3, r * 128 + jd * 64), "S")
        self.stamp(3)

    def a2(self):
        a = self.a
        LANE = 7
        WO, PQ, KVF, KVB, ACC3 = 16, 72, 136, 200, 232
        S_R0, S_WN = 8, 9
        Lend = "A_end"
        a.vmwait_all(); a("s_barrier")
        a("s_mul_i32 s6, s%d, 43691" % SLOT); a("s_lshr_b32 s6, s6, 17"); a("s_mul_i32 s6, s6, 3"); a("s_sub_u32 s6, s%d, s6" % SLOT)
        a("s_add_u32 s6, s6, 1"); a("s_lshl_b32 s6, s6, 6")
        self.signal(6, 1, 2)
        self.stamp(4)
        a("s_cmp_ge_u32 s%d, 28" % SLOT); a("s_cbranch_scc1 %s" % Lend)
        a("s_mul_i32 s6, s%d, 9363" % SLOT); a("s_lshr_b32 s6, s6, 16")
        a("s_mul_i32 s7, s6, 7"); a("s_sub_u32 s%d, s%d, s7" % (S_WN, SLOT))
        a("s_lshl_b32 s7, s%d, 2" % XCD); a("s_add_u32 s6, s6, s7"); a("s_lshl_b32 s%d, s6, 6" % S_R0)
        self.srd(SWO, P_WO, 401408); self.srd(SOUT, P_OUT, 3670016)
        a("v_and_b32 v1, 15, v%d" % LANE); a("v_lshrrev_b32 v2, 4, v%d" % LANE)
        a("v_lshrrev_b32 v3, 1, v1"); a("v_xor_b32 v3, v3, v2")
        a("v_lshrrev_b32 v4, 2, v3"); a("v_lshl_add_u32 v4, v2, 1, v4")
        a("v_and_b32 v3, 3, v3"); a("v_and_b32 v5, 1, v1"); a("v_lshl_or_b32 v3, v3, 1, v5")
        a("s_mul_i32 s6, s%d, 112" % WAVE); a("v_add_u32 v4, s6, v4"); a("v_mul_u32_u24 v4, 896, v4")
        a("v_lshl_add_u32 v4, v3, 4, v4")
        a("s_mul_i32 s13, s%d, 14336" % WAVE); a("s_lshl_b32 s10, s%d, 7" % S_WN)
        for n in range(14):
            a("s_add_u32 m0, s13, %d" % (n * 1024)); a("s_add_u32 s6, s10, %d" % (n * 8 * 896))
            a.vmop("buffer_load_dwordx4 v4, s[%d:%d], s6 offen lds" % (SWO, SWO + 3), "WO")
        a("v_bfe_u32 v3, v%d, 2, 2" % LANE); a("v_and_b32 v4, 3, v%d" % LANE)
        a("v_mul_u32_u24 v5, 7, v2")
        a("v_lshrrev_b32 v6, 1, v4"); a("v_and_b32 v4, 1, v4"); a("v_lshlrev_b32 v4, 4, v4")
        a("v_add_u32 v4, s13, v4")
        for ph in range(7):
            d = PQ + 2 * ph
            a("v_add_u32 v8, %d, v3" % (4 * ph))
            a("v_mul_u32_u24 v9, 37, v8"); a("v_lshrrev_b32 v9, 8, v9"); a("v_mul_u32_u24 v9, 21, v9")
            a("v_add3_u32 v8, v8, v9, v5")
            a("v_and_b32 v9, 1, v8"); a("v_lshl_or_b32 v9, v9, 2, v6")
            a("v_lshrrev_b32 v8, 1, v8"); a("v_and_b32 v10, 3, v8"); a("v_xor_b32 v9, v9, v10")
            a("v_lshlrev_b32 v9, 5, v9"); a("v_lshl_add_u32 v9, v8, 8, v9")
            a("v_xor_b32 v10, 64, v9")
            a("v_add_u32 v%d, v9, v4" % d); a("v_add_u32 v%d, v10, v4" % (d + 1))
        a("v_mul_u32_u24 v8, 896, v1"); a("v_lshl_add_u32 v8, v2, 4, v8"); a("s_mul_i32 s6, s%d, 224" % WAVE); a("v_add_u32 v8, s6, v8")
        a("v_lshrrev_b32 v3, 2, v1"); a("v_mul_u32_u24 v3, 7, v3"); a("v_and_b32 v4, 3, v1"); a("v_add_u32 v3, v3, v4")
        a("v_add_u32 v5, 4, v3"); a("v_cmp_eq_u32 vcc, 3, v4"); a("v_mov_b32 v6, 28"); a("v_cndmask_b32 v5, v5, v6, vcc")
        a("s_lshl_b32 s6, s%d, 14" % WAVE); a("v_lshl_add_u32 v6, v2, 5, s6")
        a("v_lshl_add_u32 v9, v3, 7, v6"); a("v_lshl_add_u32 v10, v5, 7, v6")
        a.vmwait("WO")
        for tile in range(4):
            P, j = tile >> 1, tile & 1
            for ph in range(7):
                a("ds_read_b64_tr_b16 %s, v%d offset:%d" % (vr(WO + 14 * tile + 2 * ph, 2), PQ + 2 * ph + P, 8 * j))
        for rt in range(4):
            a("s_add_u32 s%d, s%d, %d" % (76 + rt, S_R0, 16 * rt)); a("s_mul_i32 s%d, s%d, 896" % (76 + rt, 76 + rt))
        a("s_mov_b32 s12, 4096"); a("s_mov_b32 s13, 8192"); a("s_mov_b32 s14, 12288")
        a("s_waitcnt lgkmcnt(0)")
        self.stamp(5)
        L = a.newlabel("aw")
        a("s_cmp_lg_u32 s%d, 0" % WAVE); a("s_cbranch_scc1 %s" % L)
        a("v_lshlrev_b32 v3, 2, v%d" % LANE); a("s_mov_b32 s7, 80")
        a("s_mov_b32 s10, 0x10000"); a("s_mov_b32 s11, 0x10001")
        self.poll(3, 4, 7, 10)
        a.label(L)
        a("s_barrier")
        self.stamp(6)
        soff = ["0", "s12", "s13", "s14"]
        for hl in range(4):
            for j in range(2):
                for q in range(2):
                    a.vmop("buffer_load_dwordx4 %s, v%d, s[%d:%d], %s offen offset:%d sc1" % (vr(KVF + (hl * 2 + j) * 8 + 4 * q, 4), 9 + j, SKV, SKV + 3, soff[hl], 16 * q), ("KV", hl))
        for rt in range(4):
            for hl in range(4):
                a.vmop("buffer_load_dwordx4 %s, v8, s[%d:%d], s%d offen offset:%d sc1" % (vr(PQ + (rt * 4 + hl) * 4, 4), SPQ, SPQ + 3, 76 + rt, 56 * hl), ("PQ", rt))
        a("s_mov_b32 s10, 0"); a("s_mov_b32 s11, 0xffff0000")
        a("s_lshl_b32 s6, s%d, 12" % WAVE); a("v_lshl_add_u32 v11, v%d, 4, s6" % LANE)
        for hl in range(4):
            a.vmwait(("KV", hl))
            for j in range(2):
                for k in range(4):
                    s = KVF + (hl * 2 + j) * 8 + 2 * k
                    a("v_cvt_pk_bf16_f32 v%d, v%d, v%d" % (KVB + (hl * 2 + j) * 4 + k, s, s + 1))
        N = KVF
        O = KVF + 32
        RC = KVF + 48
        for rt in range(4):
            a.vmwait(("PQ", rt))
            a("s_mov_b64 exec, s[10:11]")
            for hl in range(4):
                a("v_mov_b32 v%d, 0" % (PQ + (rt * 4 + hl) * 4 + 2)); a("v_mov_b32 v%d, 0" % (PQ + (rt * 4 + hl) * 4 + 3))
            a("s_mov_b64 exec, -1")
            for hl in range(4):
                for j in range(2):
                    a("v_mfma_f32_16x16x32_bf16 %s, %s, %s, 0" % (vr(N + hl * 8 + 4 * j, 4), vr(KVB + (hl * 2 + j) * 4, 4), vr(PQ + (rt * 4 + hl) * 4, 4)))
            for hl in range(4): a("v_add_f32 v%d, 0x358637bd, v%d" % (RC + hl, N + hl * 8 + 7))
            for hl in range(4): a("v_rcp_f32 v%d, v%d" % (RC + hl, RC + hl))
            for hl in range(4):
                for t in range(7): a("v_mul_f32 v%d, v%d, v%d" % (N + hl * 8 + t, N + hl * 8 + t, RC + hl))
            reg = lambda f: N + (f // 7) * 8 + f % 7
            for k in range(14): a("v_cvt_pk_bf16_f32 v%d, v%d, v%d" % (O + k, reg(2 * k), reg(2 * k + 1)))
            acc = ACC3 if False else PQ + rt * 16
            for i in range(4):
                for tile in range(4):
                    c = vr(acc + 4 * tile, 4)
                    if i < 3:
                        a("v_mfma_f32_16x16x32_bf16 %s, %s, %s, %s" % (c, vr(WO + 14 * tile + 4 * i, 4), vr(O + 4 * i, 4), "0" if i == 0 else c))
                    else:
                        a("v_mfma_f32_16x16x16_bf16 %s, %s, %s, %s" % (c, vr(WO + 14 * tile + 12, 2), vr(O + 12, 2), c))
            for tile in range(4):
                a("ds_write_b128 v11, %s offset:%d" % (vr(acc + 4 * tile, 4), rt * 16384 + tile * 1024))
        a("s_waitcnt lgkmcnt(0)"); a("s_barrier")
        self.stamp(7)
        a("s_lshl_b32 s6, s%d, 14" % WAVE); a("v_lshl_add_u32 v11, v%d, 4, s6" % LANE)
        R = KVF
        for sw in range(4):
            for tile in range(4):
                a("ds_read_b128 %s, v11 offset:%d" % (vr(R + (sw * 4 + tile) * 4, 4), sw * 4096 + tile * 1024))
        a("s_lshl_b32 s6, s%d, 4" % WAVE); a("s_add_u32 s6, s6, s%d" % S_R0); a("s_mul_i32 s6, s6, 1792")
        a("s_lshl_b32 s7, s%d, 7" % S_WN); a("s_add_u32 s6, s6, s7")
        a("v_mul_u32_u24 v3, 1792, v1"); a("v_lshl_add_u32 v3, v2, 4, v3")
        a("s_waitcnt lgkmcnt(0)")
        for k in range(16):
            a("v_add_f32 v%d, v%d, v%d" % (R + k, R + k, R + 16 + k)); a("v_add_f32 v%d, v%d, v%d" % (R + 32 + k, R + 32 + k, R + 48 + k))
        for k in range(16): a("v_add_f32 v%d, v%d, v%d" % (R + k, R + k, R + 32 + k))
        for P in range(2):
            d = R + 16 + 4 * P
            for j in range(2):
                s = R + (2 * P + j) * 4
                a("v_cvt_pk_bf16_f32 v%d, v%d, v%d" % (d + 2 * j, s, s + 1)); a("v_cvt_pk_bf16_f32 v%d, v%d, v%d" % (d + 2 * j + 1, s + 2, s + 3))
            a.vmop("buffer_store_dwordx4 %s, v3, s[%d:%d], s6 offen offset:%d" % (vr(d, 4), SOUT, SOUT + 3, 64 * P), "S")
        self.stamp(8)
        a.label(Lend)
        self.dump_stamps()
        a("s_endpgm")

    def build(self):
        a = self.a
        a.raw(open("concat_heads__linear_attn_block__ssm_conv_s4d__prompt.s.ref").read().split("; Override launch")[0].rstrip())
        a.raw("; @launch grid=(%d,1,1) block=(256,1,1) lds=%d" % (NWG, LDS))
        a.raw('.amdgcn_target "amdgcn-amd-amdhsa--gfx950"\n.text\n.globl %s\n.p2align 8\n.type %s,@function\n%s:' % (KNAME, KNAME, KNAME))
        a("s_cmp_ge_u32 s2, %d" % NWG); a("s_cbranch_scc1 K_exit")
        a("s_load_dwordx16 s[16:31], s[0:1], 0"); a("s_load_dwordx8 s[32:39], s[0:1], 64"); a("s_load_dwordx2 s[40:41], s[0:1], 96")
        a("s_and_b32 s%d, s2, 7" % XCD); a("s_lshr_b32 s%d, s2, 3" % SLOT)
        a("v_lshrrev_b32 v1, 6, v0"); a("v_and_b32 v7, 63, v0")
        a("v_readfirstlane_b32 s%d, v1" % WAVE)
        a("s_nop 3")
        a("s_cmp_ge_u32 s%d, 30" % SLOT); a("s_cbranch_scc1 B_entry")
        a("s_cmp_lt_u32 s%d, 14" % SLOT); a("s_cbranch_scc1 Q_entry")
        self.gemm(False)
        a("s_branch A2_entry")
        a.label("Q_entry"); a.vm = []
        self.gemm(True)
        a.label("A2_entry"); a.fence(8)
        self.a2()
        a.label("B_entry"); a.vm = []
        from gen_b import gen_b
        gen_b(self)
        a.label("K_exit")
        a("s_endpgm")
        a.raw('''.section .rodata,"a"
.p2align 6
.amdhsa_kernel %s
  .amdhsa_next_free_vgpr 256
  .amdhsa_next_free_sgpr 102
  .amdhsa_accum_offset 256
  .amdhsa_group_segment_fixed_size 0
  .amdhsa_kernarg_size 104
  .amdhsa_user_sgpr_count 2
  .amdhsa_user_sgpr_kernarg_segment_ptr 1
  .amdhsa_system_sgpr_workgroup_id_x 1
.end_amdhsa_kernel''' % KNAME)
        return a.text()

if __name__ == "__main__":
    stamps = "--stamps" in sys.argv
    out = [x for x in sys.argv[1:] if not x.startswith("--")][0]
    open(out, "w").write(Gen(stamps).build())
```

```python
import sys
from asmlib import *

KNAME = "concat_heads__linear_attn_block__ssm_conv_s4d__prompt_kernel"
NWG = 464
LDS = 81920
WS_PQ, WS_UT, WS_KV, WS_FL, WS_TS = 0, 0x200000, 0x400000, 0x480000, 0x500000
LOG2E = 0x3fb8aa3b
POLL_CAP = 1 << 15

XCD, SLOT, WAVE = 3, 4, 5
P_X, P_W, P_WO, P_U, P_LA, P_AI, P_CR, P_CI, P_DT, P_DS, P_OUT, P_DBG, P_WS = 16, 18, 20, 22, 24, 26, 28, 30, 32, 34, 36, 38, 40
S_F0 = 42
S_FA = 43
SX, SW, SPQ, SKV, SOUT, SDBG, SWO, SUT, SU, SFL = 44, 48, 52, 56, 60, 64, 68, 52, 44, 72
TS0 = 80

class Gen:
    def __init__(self, stamps=False, opts=()):
        self.a = Asm()
        self.opts = set(opts)
        self.stamps = stamps
        self.SLEEP = 2
        self.HL = "nt" if "nt" in self.opts else ("" if "plain" in self.opts else "sc1")

    def srd(self, d, p, nbytes, off=0):
        a = self.a
        if off:
            a("s_add_u32 s%d, s%d, 0x%x" % (d, p, off)); a("s_addc_u32 s%d, s%d, 0" % (d + 1, p + 1))
        else:
            a("s_mov_b32 s%d, s%d" % (d, p)); a("s_mov_b32 s%d, s%d" % (d + 1, p + 1))
        a("s_mov_b32 s%d, 0x%x" % (d + 2, nbytes)); a("s_mov_b32 s%d, 0x00020000" % (d + 3))

    def stamp(self, k):
        if not self.stamps: return
        self.a("s_memrealtime s[%d:%d]" % (TS0 + 2 * k, TS0 + 2 * k + 1))
        self.a("s_waitcnt lgkmcnt(0)")

    def dump_stamps(self):
        if not self.stamps: return
        a = self.a
        a.vmwait_all()
        self.stamp(9)
        self.srd(76, P_WS, 0x100000, WS_TS)
        a("s_lshl_b32 s6, s2, 2"); a("s_add_u32 s6, s6, s%d" % WAVE); a("s_lshl_b32 s6, s6, 6")
        a("v_mov_b32 v0, s6")
        a("s_mov_b64 exec, 1")
        for k in range(10):
            a("v_mov_b32 v1, s%d" % (TS0 + 2 * k))
            a("buffer_store_dword v1, v0, s[76:79], 0 offen offset:%d" % (4 * k))
        a("s_mov_b64 exec, -1")

    def flag_read_issue(self, vdst, vaddr):
        a = self.a
        a("v_mov_b32 v%d, s%d" % (vaddr, S_FA))
        a.vmop("buffer_load_dword v%d, v%d, s[%d:%d], 0 offen sc1" % (vdst, vaddr, SFL, SFL + 3), "FL")

    def atomic_ret(self, s_off, va, vb, s_dst):
        a = self.a
        a("v_mov_b32 v%d, s%d" % (va, s_off)); a("v_mov_b32 v%d, 1" % vb)
        a("s_mov_b64 exec, 1")
        a("buffer_atomic_add v%d, v%d, s[%d:%d], 0 offen sc0 sc1" % (vb, va, SDBG, SDBG + 3))
        a("s_mov_b64 exec, -1")
        a("s_waitcnt vmcnt(0)")
        a("v_readfirstlane_b32 s%d, v%d" % (s_dst, vb))

    def poll_flag(self, va, vv):
        a = self.a
        L = a.newlabel("poll"); D = a.newlabel("polld")
        a("s_mov_b32 s6, 0"); a("v_mov_b32 v%d, s%d" % (va, S_FA))
        a("s_mov_b64 exec, 1")
        a.label(L)
        a("buffer_load_dword v%d, v%d, s[%d:%d], 0 offen sc1" % (vv, va, SFL, SFL + 3))
        a("s_add_u32 s6, s6, 1")
        a("s_waitcnt vmcnt(0)")
        a("v_cmp_ne_u32 vcc, s%d, v%d" % (S_F0, vv))
        a("s_cbranch_vccnz %s" % D)
        a("s_sleep %d" % self.SLEEP)
        a("s_cmp_lt_u32 s6, 0x%x" % POLL_CAP)
        a("s_cbranch_scc1 %s" % L)
        a.label(D)
        a("s_mov_b64 exec, -1")

    def phi(self, regs, tmps):
        a = self.a
        n = len(tmps)
        for b in range(0, len(regs), n):
            rr = regs[b:b + n]
            for r, t in zip(rr, tmps): a("v_mul_f32 v%d, s14, v%d" % (t, r))
            for r, t in zip(rr, tmps): a("v_min_f32 v%d, 0, v%d" % (t, t))
            for r, t in zip(rr, tmps): a("v_exp_f32 v%d, v%d" % (t, t))
            for r, t in zip(rr, tmps): a("v_max_f32 v%d, 0, v%d" % (r, r))
            for r, t in zip(rr, tmps): a("v_add_f32 v%d, s15, v%d" % (r, r))
            for r, t in zip(rr, tmps): a("v_add_f32 v%d, v%d, v%d" % (r, r, t))

    def gemm(self, isq):
        a = self.a
        XA, XW, XR0, XR1, DA, LANE, FA, F0, F1, ACC, X = 1, 2, 3, 4, 6, 7, 8, 16, 48, 80, 144
        FLV = 5
        U = 7 if isq else 14
        S_WB, S_T, S_RB, S_HP = 9, 10, 11, 12
        S_X = 76
        Xr = lambda c, q: X + (c * 4 + q) * 4
        if isq:
            a("s_cmp_ge_u32 s%d, 7" % SLOT); a("s_cselect_b32 s6, 1, 0")
            a("s_mul_i32 s7, s6, 7"); a("s_sub_u32 s%d, s%d, s7" % (S_HP, SLOT))
            a("s_lshl_b32 s%d, s%d, 7" % (S_WB, S_HP))
        else:
            a("s_sub_u32 s7, s%d, 14" % SLOT); a("s_lshr_b32 s6, s7, 3"); a("s_and_b32 s%d, s7, 7" % S_HP)
            a("s_mul_i32 s%d, s%d, 112" % (S_WB, S_HP)); a("s_add_u32 s%d, s%d, 896" % (S_WB, S_WB))
        a("s_lshl_b32 s%d, s%d, 1" % (S_RB, XCD)); a("s_add_u32 s%d, s%d, s6" % (S_RB, S_RB))
        a("s_lshl_b32 s6, s%d, 2" % S_RB); a("s_add_u32 s6, s6, s%d" % WAVE); a("s_mul_i32 s%d, s6, 28672" % S_X)
        for q in range(1, 4): a("s_add_u32 s%d, s%d, %d" % (S_X + q, S_X, q * 7168))
        a("s_lshl_b32 s%d, s2, 7" % S_FA)
        t = F0; I, Gq = F0 + 8, F0 + 9
        a("v_and_b32 v%d, 15, v%d" % (I, LANE)); a("v_lshrrev_b32 v%d, 4, v%d" % (Gq, LANE))
        a("v_lshrrev_b32 v%d, 3, v%d" % (t, LANE)); a("v_and_b32 v%d, 7, v%d" % (t + 1, LANE))
        a("v_mul_u32_u24 v%d, 896, v%d" % (t + 2, t)); a("v_lshl_add_u32 v%d, v%d, 4, v%d" % (XA, t + 1, t + 2))
        a("s_and_b32 s6, s%d, 1" % WAVE); a("s_lshl_b32 s6, s6, 2")
        a("v_or_b32 v%d, s6, v%d" % (t + 4, Gq))
        a("v_lshrrev_b32 v%d, 1, v%d" % (t + 5, I)); a("v_xor_b32 v%d, v%d, v%d" % (t + 5, t + 5, t + 4))
        a("v_and_b32 v%d, 1, v%d" % (t + 6, I)); a("v_lshl_or_b32 v%d, v%d, 1, v%d" % (t + 5, t + 5, t + 6))
        a("v_lshrrev_b32 v%d, 3, v%d" % (t + 6, t + 5))
        a("v_and_b32 v%d, 7, v%d" % (t + 5, t + 5))
        if not isq: a("v_min_u32 v%d, 6, v%d" % (t + 5, t + 5))
        a("s_lshl_b32 s6, s%d, 3" % WAVE); a("v_add_u32 v%d, s6, v%d" % (t + 7, Gq)); a("v_mul_u32_u24 v%d, 2688, v%d" % (t + 7, t + 7))
        a("v_mul_u32_u24 v%d, %d, v%d" % (t + 6, 32 * 2688 if isq else 896, t + 6))
        a("v_lshl_add_u32 v%d, v%d, 4, v%d" % (t + 7, t + 5, t + 7)); a("v_add_u32 v%d, v%d, v%d" % (DA, t + 7, t + 6))
        a("s_lshl_b32 s13, s%d, 11" % WAVE)
        a("s_waitcnt lgkmcnt(0)")
        self.srd(SX, P_X, 1835008); self.srd(SW, P_W, 1204224); self.srd(SFL, P_WS, 65536, WS_FL)
        self.stamp(0)
        def dma(u):
            slot = u % 8
            for n in range(2):
                a("s_add_u32 m0, s13, %d" % (slot * 8192 + n * 1024))
                a("s_add_u32 s%d, s%d, %d" % (S_T, S_WB, ((64 if isq else 32) * u + 4 * n) * 2688))
                a.vmop("buffer_load_dwordx4 v%d, s[%d:%d], s%d offen lds" % (DA, SW, SW + 3, S_T), ("W", u))
        def xload(c):
            for q in range(4):
                a.vmop("buffer_load_dwordx4 %s, v%d, s[%d:%d], s%d offen offset:%d" % (vr(Xr(c, q), 4), XA, SX, SX + 3, S_X + q, c * 128), ("X", c))
        self.flag_read_issue(FLV, 0)
        self.srd(SKV, P_WS, 65536, WS_KV)
        if isq:
            L = a.newlabel("nz")
            a("s_cmp_lg_u32 s%d, 0" % S_HP); a("s_cbranch_scc1 %s" % L)
            for k in range(4): a("v_mov_b32 v%d, 0" % (F1 + k))
            a("s_lshl_b32 s6, s%d, 12" % S_RB); a("s_lshl_b32 s7, s%d, 10" % WAVE); a("s_add_u32 s6, s6, s7")
            a("v_lshlrev_b32 v0, 4, v%d" % LANE)
            a("buffer_store_dwordx4 v[%d:%d], v0, s[%d:%d], s6 offen sc1" % (F1, F1 + 3, SKV, SKV + 3))
            a.label(L)
        pace = "nopace" not in self.opts
        for c in range(7):
            if isq: dma(c)
            elif c < 4: dma(2 * c); dma(2 * c + 1)
            xload(c)
            if pace and c < 6: a("s_barrier")
        self.srd(SDBG, P_DBG, 256); self.srd(SPQ, P_WS, 1835008, WS_PQ)
        a("s_lshl_b32 s6, s%d, 12" % WAVE); a("s_add_u32 s6, s6, 65536")
        a("v_xor_b32 v%d, v%d, v%d" % (t + 1, t + 1, t)); a("v_lshlrev_b32 v%d, 4, v%d" % (t + 1, t + 1)); a("v_lshl_add_u32 v%d, v%d, 7, v%d" % (t + 1, t, t + 1))
        a("v_add_u32 v%d, s6, v%d" % (XW, t + 1))
        a("v_and_b32 v%d, 7, v%d" % (t, I)); a("v_xor_b32 v%d, v%d, v%d" % (t, t, Gq)); a("v_lshlrev_b32 v%d, 4, v%d" % (t, t)); a("v_lshl_add_u32 v%d, v%d, 7, v%d" % (t, I, t))
        a("v_xor_b32 v%d, 64, v%d" % (t + 1, t)); a("v_add_u32 v%d, s6, v%d" % (XR0, t)); a("v_add_u32 v%d, s6, v%d" % (XR1, t + 1))
        a("v_bfe_u32 v%d, v%d, 2, 2" % (t, LANE))
        a("v_and_b32 v%d, 3, v%d" % (t + 1, LANE))
        a("v_and_b32 v%d, 1, v%d" % (t + 2, Gq)); a("v_lshl_or_b32 v%d, v%d, 2, v%d" % (t + 2, t + 2, t))
        a("v_lshl_add_u32 v%d, v%d, 3, v%d" % (t + 3, Gq, t)); a("v_lshlrev_b32 v%d, 8, v%d" % (t + 3, t + 3))
        for tt in range(8):
            if isq:
                o0 = 128 * (tt >> 2) + 64 * ((tt >> 1) & 1) + 8 * (tt & 1); sh = 4
            else:
                o0 = [0, 32, 48, 80, 128, 160, 184, 216][tt]; sh = 3
            a("v_lshlrev_b32 v%d, %d, v%d" % (t + 4, sh, t + 1)); a("v_add_u32 v%d, %d, v%d" % (t + 4, o0, t + 4))
            a("v_lshrrev_b32 v%d, 5, v%d" % (t + 5, t + 4)); a("v_xor_b32 v%d, v%d, v%d" % (t + 5, t + 5, t + 2))
            a("v_and_b32 v%d, 31, v%d" % (t + 4, t + 4)); a("v_lshl_or_b32 v%d, v%d, 5, v%d" % (t + 4, t + 5, t + 4))
            a("v_add_u32 v%d, v%d, v%d" % (FA + tt, t + 4, t + 3))
        a("s_mov_b32 s14, 0x%x" % LOG2E); a("s_mov_b32 s15, 0x358637bd")
        def xtrans(c):
            for q in range(4): a("ds_write_b128 v%d, %s offset:%d" % (XW, vr(Xr(c, q), 4), q * 1024))
            for rt in range(2):
                for kk in range(2):
                    a("ds_read_b128 %s, v%d offset:%d" % (vr(Xr(c, 2 * rt + kk), 4), XR1 if kk else XR0, rt * 2048))
        def freads(u):
            Fb = F1 if u & 1 else F0
            for tt in range(8):
                for hh in range(2):
                    a("ds_read_b64_tr_b16 %s, v%d offset:%d" % (vr(Fb + 4 * tt + 2 * hh, 2), FA + tt, (u % 8) * 8192 + hh * 1024))
        def newchunk(u): return isq or (u & 1) == 0
        def chunk(u): return u if isq else u >> 1
        def tags(u): return [("W", u), ("X", chunk(u))]
        def mfmas(u, half):
            Fb = F1 if u & 1 else F0
            for tt in range(4 * half, 4 * half + 4):
                for rt in range(2):
                    if isq:
                        acc = ACC + (rt * 4 + (tt & 3)) * 4; x = Xr(u, 2 * rt + (tt >> 2)); first = (u == 0 and tt < 4)
                        a("v_mfma_f32_16x16x32_bf16 %s, %s, %s, %s" % (vr(acc, 4), vr(Fb + 4 * tt, 4), vr(x, 4), "0" if first else vr(acc, 4)))
                    else:
                        acc = ACC + (rt * 8 + tt) * 4; x = Xr(u >> 1, 2 * rt + (u & 1)); first = (u == 0)
                        a("v_mfma_f32_16x16x32_bf16 %s, %s, %s, %s" % (vr(acc, 4), vr(x, 4), vr(Fb + 4 * tt, 4), "0" if first else vr(acc, 4)))
        a.vmwait(*tags(0));
        a("v_readfirstlane_b32 s%d, v%d" % (S_F0, FLV))
        xtrans(0)
        a("s_barrier")
        self.stamp(1)
        if isq:
            L = a.newlabel("nzs")
            a("s_or_b32 s6, s%d, s%d" % (S_HP, WAVE)); a("s_cmp_lg_u32 s6, 0"); a("s_cbranch_scc1 %s" % L)
            a("v_mov_b32 v0, 32"); a("v_mov_b32 v%d, 1" % FLV); a("s_mov_b64 exec, 1")
            a("buffer_atomic_add v%d, v0, s[%d:%d], 0 offen sc1" % (FLV, SDBG, SDBG + 3)); a("s_mov_b64 exec, -1")
            a.label(L)
        freads(0)
        for u in range(U):
            a("s_waitcnt lgkmcnt(0)")
            mfmas(u, 0)
            if u + 1 < U:
                a.vmwait(*tags(u + 1))
                if newchunk(u + 1): xtrans(chunk(u + 1))
                a("s_barrier")
                if u + 8 < U: dma(u + 8)
                freads(u + 1)
                if (not isq) and u == 9:
                    a("v_mov_b32 v0, 32")
                    a.vmop("buffer_load_dword v%d, v0, s[%d:%d], 0 offen sc1" % (FLV, SDBG, SDBG + 3), "Z")
            mfmas(u, 1)
        self.stamp(2)
        T = [Xr(0, 0) + k for k in range(8)]
        if isq:
            self.phi([ACC + k for k in range(32)], T)
            a("s_lshl_b32 s6, s%d, 2" % S_RB); a("s_add_u32 s6, s6, s%d" % WAVE); a("s_mul_i32 s6, s6, 28672")
            a("s_lshl_b32 s7, s%d, 11" % S_HP); a("s_add_u32 s6, s6, s7"); a("s_add_u32 s7, s6, 14336")
            a("v_lshlrev_b32 v0, 4, v%d" % LANE)
            for rt in range(2):
                for P in range(2):
                    d = Xr(1, 0) + (rt * 2 + P) * 4
                    for j in range(2):
                        acc = ACC + (rt * 4 + 2 * P + j) * 4
                        a("v_cvt_pk_bf16_f32 v%d, v%d, v%d" % (d + 2 * j, acc, acc + 1))
                        a("v_cvt_pk_bf16_f32 v%d, v%d, v%d" % (d + 2 * j + 1, acc + 2, acc + 3))
                    a.vmop("buffer_store_dwordx4 %s, v0, s[%d:%d], s%d offen offset:%d sc1" % (vr(d, 4), SPQ, SPQ + 3, 6 + rt, 1024 * P), "S")
        else:
            self.phi([ACC + (rt * 8 + tt) * 4 + r for rt in range(2) for tt in range(4) for r in range(4)], T)
            PK = Xr(1, 0)
            for tt in range(8):
                for rt in range(2):
                    acc = ACC + (rt * 8 + tt) * 4
                    a("v_cvt_pk_bf16_f32 v%d, v%d, v%d" % (PK + 4 * tt + 2 * rt, acc, acc + 1))
                    a("v_cvt_pk_bf16_f32 v%d, v%d, v%d" % (PK + 4 * tt + 2 * rt + 1, acc + 2, acc + 3))
            a("s_mov_b32 s6, 0xf000f000"); a("s_mov_b32 s7, s6"); a("s_mov_b64 exec, s[6:7]")
            for tt in (1, 5, 7):
                for k in range(4): a("v_mov_b32 v%d, 0" % (PK + 4 * tt + k))
            a("s_mov_b32 s6, 0x000f000f"); a("s_mov_b32 s7, s6"); a("s_mov_b64 exec, s[6:7]")
            for k in range(4): a("v_mov_b32 v%d, 0" % (PK + 4 * 2 + k))
            a("s_mov_b32 s6, 0x10001000"); a("s_mov_b32 s7, s6"); a("s_mov_b64 exec, s[6:7]"); a("s_mov_b32 s6, 0x3f803f80")
            for tt in (5, 7):
                for k in range(4): a("v_mov_b32 v%d, s6" % (PK + 4 * tt + k))
            a("s_mov_b64 exec, -1")
            KT = F0
            for hd in range(2):
                for je in range(2):
                    for jd in range(2):
                        tau = 4 * hd + 2 * je + jd
                        a("v_mfma_f32_16x16x32_bf16 %s, %s, %s, 0" % (vr(KT + 4 * tau, 4), vr(PK + 4 * (4 + 2 * hd + je), 4), vr(PK + 4 * (2 * hd + jd), 4)))
            a("s_barrier")
            a("s_lshl_b32 s6, s%d, 13" % WAVE); a("v_lshl_add_u32 v0, v%d, 4, s6" % LANE)
            a("v_bfe_u32 v1, v%d, 2, 2" % LANE); a("v_lshrrev_b32 v2, 4, v%d" % LANE); a("v_mul_u32_u24 v2, 7, v2")
            a("s_and_b32 s6, s%d, 1" % WAVE); a("s_lshl_b32 s6, s6, 2"); a("v_add_u32 v1, s6, v1"); a("v_add_u32 v2, v2, v1")
            a("v_cmp_eq_u32 vcc, 7, v1"); a("v_mov_b32 v3, 28"); a("v_cndmask_b32 v2, v2, v3, vcc")
            for tau in range(8): a("ds_write_b128 v0, %s offset:%d" % (vr(KT + 4 * tau, 4), tau * 1024))
            a("v_lshrrev_b32 v1, 4, v2"); a("v_lshlrev_b32 v1, 11, v1"); a("v_bfe_u32 v3, v2, 2, 2"); a("v_lshl_add_u32 v1, v3, 8, v1")
            a("v_and_b32 v3, 3, v2"); a("v_lshl_add_u32 v1, v3, 2, v1"); a("v_and_b32 v3, 3, v%d" % LANE); a("v_lshl_add_u32 v1, v3, 4, v1")
            a("s_lshr_b32 s6, s%d, 1" % WAVE); a("s_lshl_b32 s6, s6, 12"); a("v_add_u32 v1, s6, v1")
            a.vmwait("Z")
            Lok = a.newlabel("zok"); Lz = a.newlabel("zp")
            a("s_cmp_lg_u32 s%d, 0" % WAVE); a("s_cbranch_scc1 %s" % Lok)
            a("s_mov_b32 s6, 0"); a("v_mov_b32 v0, 32")
            a.label(Lz)
            a("v_cmp_gt_u32 vcc, 16, v%d" % FLV); a("s_cbranch_vccz %s" % Lok)
            a("s_sleep 8")
            a("buffer_load_dword v%d, v0, s[%d:%d], 0 offen sc1" % (FLV, SDBG, SDBG + 3))
            a("s_add_u32 s6, s6, 1"); a("s_waitcnt vmcnt(0)"); a("s_cmp_lt_u32 s6, 0x%x" % POLL_CAP); a("s_cbranch_scc1 %s" % Lz)
            a.label(Lok)
            a("s_waitcnt lgkmcnt(0)"); a("s_barrier")
            R = F1
            for sw in range(4):
                for k in range(8):
                    gp, q = k & 3, k >> 2
                    a("ds_read_b32 v%d, v1 offset:%d" % (R + sw * 8 + k, sw * 8192 + (gp >> 1) * 1024 + (8 * (gp & 1) + 4 * q) * 16))
            a("s_lshl_b32 s6, s%d, 2" % S_HP); a("s_add_u32 s6, s6, s%d" % WAVE); a("s_lshl_b32 s6, s6, 11")
            a("v_lshlrev_b32 v3, 2, v%d" % LANE)
            a("s_waitcnt lgkmcnt(0)")
            for k in range(8):
                a("v_add_f32 v%d, v%d, v%d" % (R + k, R + k, R + 8 + k)); a("v_add_f32 v%d, v%d, v%d" % (R + 16 + k, R + 16 + k, R + 24 + k))
            for k in range(8):
                a("v_add_f32 v%d, v%d, v%d" % (R + k, R + k, R + 16 + k))
                a.vmop("buffer_atomic_add_f32 v%d, v3, s[%d:%d], s6 offen offset:%d" % (R + k, SKV, SKV + 3, k * 256), "S")
        self.stamp(3)

    def a2(self):
        a = self.a
        LANE = 7
        WO, PQ, KVF, KVB = 16, 72, 136, 200
        S_R0, S_WN = 8, 9
        Lend = "A_end"
        a.vmwait_all(); a("s_barrier")
        L = a.newlabel("arr")
        a("s_cmp_lg_u32 s%d, 3" % WAVE); a("s_cbranch_scc1 %s" % L)
        a("s_and_b32 s6, s%d, 3" % SLOT); a("s_cmp_lt_u32 s6, 2"); a("s_cselect_b32 s10, 63, 55"); a("s_lshl_b32 s6, s6, 6")
        self.atomic_ret(6, 1, 2, 7)
        a("s_cmp_lg_u32 s7, s10"); a("s_cbranch_scc1 %s" % L)
        a("s_mov_b32 s6, 36")
        self.atomic_ret(6, 1, 2, 7)
        a("s_cmp_lg_u32 s7, 3"); a("s_cbranch_scc1 %s" % L)
        a("v_lshlrev_b32 v1, 7, v%d" % LANE); a("v_mov_b32 v2, 1")
        for k in range(4):
            a("s_mov_b32 s6, %d" % (k * 8192))
            if k == 3: a("s_mov_b64 exec, 0xffffffff")
            a("buffer_atomic_add v2, v1, s[%d:%d], s6 offen sc1" % (SFL, SFL + 3))
        a("s_mov_b64 exec, -1")
        a.label(L)
        self.stamp(4)
        a("s_cmp_ge_u32 s%d, %d" % (SLOT, 0 if "noa2" in self.opts else 28)); a("s_cbranch_scc1 %s" % Lend)
        a("s_mul_i32 s6, s%d, 9363" % SLOT); a("s_lshr_b32 s6, s6, 16")
        a("s_mul_i32 s7, s6, 7"); a("s_sub_u32 s%d, s%d, s7" % (S_WN, SLOT))
        a("s_lshl_b32 s7, s%d, 2" % XCD); a("s_add_u32 s%d, s6, s7" % S_R0)
        self.srd(SWO, P_WO, 401408); self.srd(SOUT, P_OUT, 3670016)
        a("v_and_b32 v1, 15, v%d" % LANE); a("v_lshrrev_b32 v2, 4, v%d" % LANE)
        a("v_lshrrev_b32 v3, 1, v1"); a("v_xor_b32 v3, v3, v2")
        a("v_lshrrev_b32 v4, 2, v3"); a("v_lshl_add_u32 v4, v2, 1, v4")
        a("v_and_b32 v3, 3, v3"); a("v_and_b32 v5, 1, v1"); a("v_lshl_or_b32 v3, v3, 1, v5")
        a("s_mul_i32 s6, s%d, 112" % WAVE); a("v_add_u32 v4, s6, v4"); a("v_mul_u32_u24 v4, 896, v4")
        a("v_lshl_add_u32 v4, v3, 4, v4")
        a("s_mul_i32 s13, s%d, 14336" % WAVE); a("s_lshl_b32 s10, s%d, 7" % S_WN)
        for n in range(14):
            a("s_add_u32 m0, s13, %d" % (n * 1024)); a("s_add_u32 s6, s10, %d" % (n * 8 * 896))
            a.vmop("buffer_load_dwordx4 v4, s[%d:%d], s6 offen lds" % (SWO, SWO + 3), "WO")
        a("v_bfe_u32 v3, v%d, 2, 2" % LANE); a("v_and_b32 v4, 3, v%d" % LANE)
        a("v_mul_u32_u24 v5, 7, v2")
        a("v_lshlrev_b32 v4, 3, v4"); a("v_add_u32 v4, s13, v4")
        for ph in range(7):
            d = PQ + 4 * ph
            a("v_add_u32 v8, %d, v3" % (4 * ph))
            a("v_mul_u32_u24 v9, 37, v8"); a("v_lshrrev_b32 v9, 8, v9"); a("v_mul_u32_u24 v9, 21, v9")
            a("v_add3_u32 v8, v8, v9, v5")
            a("v_and_b32 v9, 1, v8"); a("v_lshlrev_b32 v9, 2, v9")
            a("v_lshrrev_b32 v8, 1, v8"); a("v_and_b32 v10, 3, v8"); a("v_xor_b32 v9, v9, v10")
            a("v_lshlrev_b32 v9, 5, v9"); a("v_lshl_add_u32 v9, v8, 8, v9")
            a("v_add_u32 v%d, v9, v4" % d)
            for tl in range(1, 4): a("v_xor_b32 v%d, %d, v%d" % (d + tl, 32 * tl, d))
        a("v_lshlrev_b32 v8, 4, v%d" % LANE)
        a.vmwait("WO")
        for tile in range(4):
            for ph in range(7):
                a("ds_read_b64_tr_b16 %s, v%d" % (vr(WO + 14 * tile + 2 * ph, 2), PQ + 4 * ph + tile))
        a("s_mul_i32 s6, s%d, 57344" % S_R0); a("s_mul_i32 s7, s%d, 3584" % WAVE); a("s_add_u32 s76, s6, s7")
        for rt in range(1, 4): a("s_add_u32 s%d, s76, %d" % (76 + rt, rt * 14336))
        a("s_lshl_b32 s12, s%d, 14" % WAVE)
        for hl in range(1, 4): a("s_add_u32 s%d, s12, %d" % (12 + hl, 4096 * hl))
        a("s_waitcnt lgkmcnt(0)")
        self.stamp(5)
        L = a.newlabel("aw")
        a("s_cmp_lg_u32 s%d, 0" % WAVE); a("s_cbranch_scc1 %s" % L)
        self.poll_flag(3, 4)
        a.label(L)
        a("s_barrier")
        self.stamp(6)
        for hl in range(4):
            for jq in range(4):
                a.vmop("buffer_load_dwordx4 %s, v8, s[%d:%d], s%d offen offset:%d %s" % (vr(KVF + hl * 16 + 4 * jq, 4), SKV, SKV + 3, 12 + hl, 1024 * jq, self.HL), ("KV", hl))
        g0 = [0, 3, 7, 10]
        for rt in range(4):
            for hl in range(4):
                a.vmop("buffer_load_dwordx4 %s, v8, s[%d:%d], s%d offen offset:%d %s" % (vr(PQ + (rt * 4 + hl) * 4, 4), SPQ, SPQ + 3, 76 + rt, 256 * g0[hl], self.HL), ("PQ", rt))
        a("s_mov_b32 s10, 0"); a("s_mov_b32 s11, 0xffff0000")
        a("s_mov_b32 s6, 0x358637bd")
        a("s_lshl_b32 s7, s%d, 12" % WAVE); a("v_add_u32 v11, s7, v8")
        for hl in range(4):
            a.vmwait(("KV", hl))
            for j in range(2):
                for k in range(4):
                    s = KVF + hl * 16 + j * 8 + 2 * k
                    a("v_cvt_pk_bf16_f32 v%d, v%d, v%d" % (KVB + (hl * 2 + j) * 4 + k, s, s + 1))
        N = KVF; O = KVF + 32; RC = KVF + 48
        for rt in range(4):
            a.vmwait(("PQ", rt))
            a("s_mov_b64 exec, s[10:11]")
            for hl in (0, 2):
                a("v_mov_b32 v%d, 0" % (PQ + (rt * 4 + hl) * 4 + 2)); a("v_mov_b32 v%d, 0" % (PQ + (rt * 4 + hl) * 4 + 3))
            a("s_mov_b64 exec, 0xffff")
            for hl in (1, 3):
                a("v_mov_b32 v%d, 0" % (PQ + (rt * 4 + hl) * 4 + 0)); a("v_mov_b32 v%d, 0" % (PQ + (rt * 4 + hl) * 4 + 1))
            a("s_mov_b64 exec, -1")
            for hl in range(4):
                for j in (1, 0):
                    a("v_mfma_f32_16x16x32_bf16 %s, %s, %s, 0" % (vr(N + hl * 8 + 4 * j, 4), vr(KVB + (hl * 2 + j) * 4, 4), vr(PQ + (rt * 4 + hl) * 4, 4)))
            for hl in range(4): a("v_add_f32 v%d, s6, v%d" % (RC + hl, N + hl * 8 + 7))
            for hl in range(4): a("v_rcp_f32 v%d, v%d" % (RC + hl, RC + hl))
            for hl in range(4):
                for t in range(7): a("v_mul_f32 v%d, v%d, v%d" % (N + hl * 8 + t, N + hl * 8 + t, RC + hl))
            reg = lambda f: N + (f // 7) * 8 + f % 7
            for k in range(14): a("v_cvt_pk_bf16_f32 v%d, v%d, v%d" % (O + k, reg(2 * k), reg(2 * k + 1)))
            acc = PQ + rt * 16
            for i in range(4):
                for tile in range(4):
                    c = vr(acc + 4 * tile, 4)
                    if i < 3:
                        a("v_mfma_f32_16x16x32_bf16 %s, %s, %s, %s" % (c, vr(WO + 14 * tile + 4 * i, 4), vr(O + 4 * i, 4), "0" if i == 0 else c))
                    else:
                        a("v_mfma_f32_16x16x16_bf16 %s, %s, %s, %s" % (c, vr(WO + 14 * tile + 12, 2), vr(O + 12, 2), c))
            for tile in range(4):
                a("ds_write_b128 v11, %s offset:%d" % (vr(acc + 4 * tile, 4), rt * 16384 + tile * 1024))
        a("v_lshrrev_b32 v3, 3, v%d" % LANE); a("v_and_b32 v4, 7, v%d" % LANE)
        a("v_lshlrev_b32 v5, 9, v4"); a("v_lshl_add_u32 v5, v3, 4, v5"); a("s_lshl_b32 s6, s%d, 14" % WAVE); a("v_add_u32 v11, s6, v5")
        a("v_mul_u32_u24 v3, 1792, v3"); a("v_lshl_add_u32 v3, v4, 4, v3")
        a("s_lshl_b32 s6, s%d, 2" % S_R0); a("s_add_u32 s6, s6, s%d" % WAVE); a("s_mul_i32 s6, s6, %d" % (16 * 1792))
        a("s_lshl_b32 s7, s%d, 7" % S_WN); a("s_add_u32 s6, s6, s7"); a("s_add_u32 s7, s6, %d" % (8 * 1792))
        a("s_waitcnt lgkmcnt(0)"); a("s_barrier")
        self.stamp(7)
        R = KVF
        for h in range(2):
            for sw in range(4):
                for gg in range(2):
                    a("ds_read_b128 %s, v11 offset:%d" % (vr(R + h * 32 + sw * 8 + gg * 4, 4), sw * 4096 + gg * 256 + h * 128))
        for h in range(2):
            b = R + h * 32
            a("s_waitcnt lgkmcnt(%d)" % (8 if h == 0 else 0))
            for k in range(8):
                a("v_add_f32 v%d, v%d, v%d" % (b + k, b + k, b + 8 + k)); a("v_add_f32 v%d, v%d, v%d" % (b + 16 + k, b + 16 + k, b + 24 + k))
            for k in range(8): a("v_add_f32 v%d, v%d, v%d" % (b + k, b + k, b + 16 + k))
            for k in range(4): a("v_cvt_pk_bf16_f32 v%d, v%d, v%d" % (b + 8 + k, b + 2 * k, b + 2 * k + 1))
            a.vmop("buffer_store_dwordx4 %s, v3, s[%d:%d], s%d offen" % (vr(b + 8, 4), SOUT, SOUT + 3, 6 + h), "S")
        self.stamp(8)
        a.label(Lend)
        self.dump_stamps()
        a("s_endpgm")

    def build(self):
        a = self.a
        a.raw(open("concat_heads__linear_attn_block__ssm_conv_s4d__prompt.s.ref").read().split("; Override launch")[0].rstrip())
        a.raw("; @launch grid=(%d,1,1) block=(256,1,1) lds=%d" % (NWG, LDS))
        a.raw('.amdgcn_target "amdgcn-amd-amdhsa--gfx950"\n.text\n.globl %s\n.p2align 8\n.type %s,@function\n%s:' % (KNAME, KNAME, KNAME))
        a("s_cmp_ge_u32 s2, %d" % NWG); a("s_cbranch_scc1 K_exit")
        a("s_load_dwordx16 s[16:31], s[0:1], 0"); a("s_load_dwordx8 s[32:39], s[0:1], 64"); a("s_load_dwordx2 s[40:41], s[0:1], 96")
        a("s_and_b32 s%d, s2, 7" % XCD); a("s_lshr_b32 s%d, s2, 3" % SLOT)
        a("v_lshrrev_b32 v1, 6, v0"); a("v_and_b32 v7, 63, v0")
        a("v_readfirstlane_b32 s%d, v1" % WAVE)
        a("s_nop 3")
        a("s_cmp_ge_u32 s%d, 30" % SLOT); a("s_cbranch_scc1 %s" % ("K_exit" if "onlya" in self.opts else "B_entry"))
        if "onlyb" in self.opts: a("s_branch K_exit")
        a("s_cmp_lt_u32 s%d, 14" % SLOT); a("s_cbranch_scc1 Q_entry")
        self.gemm(False)
        a("s_branch A2_entry")
        a.label("Q_entry"); a.vm = []
        self.gemm(True)
        a.label("A2_entry"); a.fence(8)
        self.a2()
        a.label("B_entry"); a.vm = []
        from gen_b import gen_b
        gen_b(self)
        a.label("K_exit")
        a("s_endpgm")
        a.raw('''.section .rodata,"a"
.p2align 6
.amdhsa_kernel %s
  .amdhsa_next_free_vgpr 256
  .amdhsa_next_free_sgpr 102
  .amdhsa_accum_offset 256
  .amdhsa_group_segment_fixed_size 0
  .amdhsa_kernarg_size 104
  .amdhsa_user_sgpr_count 2
  .amdhsa_user_sgpr_kernarg_segment_ptr 1
  .amdhsa_system_sgpr_workgroup_id_x 1
.end_amdhsa_kernel''' % KNAME)
        return a.text()

if __name__ == "__main__":
    stamps = "--stamps" in sys.argv
    out = [x for x in sys.argv[1:] if not x.startswith("--")][0]
    open(out, "w").write(Gen(stamps, [x[2:] for x in sys.argv[1:] if x.startswith("--")]).build())
```

```python
from asmlib import *
from gen import *

def gen_b(G):
    a = G.a
    LANE = 7
    S_J, S_GAM, S_RBK, S_CQ, S_D, S_S, S_KB, S_UB = 8, 9, 10, 11, 12, 13, 14, 15
    LA, AI, CR, CI, DT, DS, KA, KT = 10, 12, 14, 16, 18, 19, 20, 21
    FY, FX0, FX1, FX2 = 22, 23, 24, 25
    ACC = 28
    w0, w1, w2, w3, w4, w5, w6, w7, w8, w9, w10, t3, t5, t7 = [40 + 2 * k for k in range(14)]
    s_ = [68 + 2 * k for k in range(9)]
    S3a, S3b, S4a, S4b = 86, 88, 90, 92
    TP = [94 + 2 * k for k in range(6)]
    hw3, hw4, ht3, hw5, hw6, ht5, hw7, hw8, ht7 = range(106, 115)
    hs = list(range(115, 124)); hS3a, hS3b, hS4a, hS4b = range(124, 128)
    PT = list(range(128, 144))
    PR = list(range(144, 160))
    YF = 160; XF = 176
    UR = 224
    RS = 288

    a("s_mul_i32 s%d, s%d, 28" % (S_J, XCD)); a("s_add_u32 s%d, s%d, s%d" % (S_J, S_J, SLOT)); a("s_sub_u32 s%d, s%d, 30" % (S_J, S_J))
    a("s_lshr_b32 s%d, s%d, 5" % (S_GAM, S_J)); a("s_and_b32 s%d, s%d, 31" % (S_RBK, S_J)); a("s_lshr_b32 s%d, s%d, 1" % (S_CQ, S_J))
    a("s_lshl_b32 s%d, s%d, 2" % (S_D, S_CQ)); a("s_add_u32 s%d, s%d, s%d" % (S_D, S_D, WAVE))
    a("s_lshl_b32 s%d, s%d, 14" % (S_KB, WAVE)); a("s_lshl_b32 s%d, s%d, 12" % (S_UB, WAVE)); a("s_add_u32 s%d, s%d, 65536" % (S_UB, S_UB))
    a("v_and_b32 v1, 15, v%d" % LANE); a("v_lshrrev_b32 v2, 4, v%d" % LANE)
    a("v_lshrrev_b32 v3, 3, v%d" % LANE); a("s_lshl_b32 s6, s%d, 4" % WAVE); a("v_add_u32 v3, s6, v3"); a("v_mul_u32_u24 v3, 896, v3")
    a("v_and_b32 v4, 7, v%d" % LANE); a("v_lshl_add_u32 v3, v4, 4, v3")
    a("s_mul_i32 s6, s%d, %d" % (S_RBK, 64 * 896)); a("s_lshl_b32 s7, s%d, 7" % S_GAM); a("s_add_u32 s6, s6, s7")
    a("v_lshlrev_b32 v4, 3, v%d" % LANE); a("s_lshl_b32 s7, s%d, 9" % S_D); a("v_add_u32 v4, s7, v4")
    a("s_lshl_b32 s7, s%d, 1" % S_D); a("v_mov_b32 v5, s7")
    a("s_waitcnt lgkmcnt(0)")
    G.srd(SU, P_U, 1835008); G.srd(SFL, P_WS, 65536, WS_FL)
    G.stamp(0)
    a("s_add_u32 s%d, s%d, 256" % (S_FA, S_J)); a("s_lshl_b32 s%d, s%d, 7" % (S_FA, S_FA))
    a("s_lshl_b32 s7, s%d, 11" % WAVE)
    for n in range(2):
        a("s_add_u32 m0, s7, %d" % (65536 + n * 1024))
        if n: a("s_add_u32 s6, s6, %d" % (8 * 896))
        a.vmop("buffer_load_dwordx4 v3, s[%d:%d], s6 offen lds" % (SU, SU + 3), "UT")
    for r, p in ((LA, P_LA), (AI, P_AI), (CR, P_CR), (CI, P_CI)):
        a.vmop("global_load_dwordx2 %s, v4, s[%d:%d]" % (vr(r, 2), p, p + 1), "PAR")
    a.vmop("global_load_ushort v%d, v5, s[%d:%d]" % (DT, P_DT, P_DT + 1), "PAR")
    a.vmop("global_load_ushort v%d, v5, s[%d:%d]" % (DS, P_DS, P_DS + 1), "PAR")
    G.flag_read_issue(8, 9)
    a.vm[-1] = "PAR"
    G.srd(SUT, P_WS, 1835008, WS_UT); G.srd(SDBG, P_DBG, 256); G.srd(SOUT, P_OUT, 3670016)
    a("v_bfe_u32 v3, v%d, 2, 2" % LANE); a("v_lshl_add_u32 v3, v2, 3, v3"); a("v_lshlrev_b32 v3, 7, v3")
    a("v_and_b32 v4, 3, v%d" % LANE); a("v_lshl_add_u32 v3, v4, 3, v3")
    a("s_lshl_b32 s6, s%d, 5" % WAVE); a("s_add_u32 s6, s6, 65536"); a("v_add_u32 v3, s6, v3")
    a("s_lshl_b32 s6, s%d, 6" % S_GAM); a("s_lshl_b32 s7, s%d, 4" % WAVE); a("s_add_u32 s6, s6, s7"); a("s_lshl_b32 s6, s6, 12")
    a("s_lshl_b32 s7, s%d, 7" % S_RBK); a("s_add_u32 s6, s6, s7")
    a("v_lshlrev_b32 v4, 12, v1"); a("v_lshl_add_u32 v4, v2, 4, v4")
    a("v_mul_u32_u24 v5, %d, v1" % RS); a("v_lshl_add_u32 v5, v2, 4, v5"); a("v_add_u32 v%d, s%d, v5" % (FY, S_KB))
    a("v_min_u32 v6, 8, v1"); a("v_mul_u32_u24 v6, %d, v6" % RS); a("v_lshl_add_u32 v6, v2, 4, v6"); a("v_add_u32 v%d, s%d, v6" % (FX2, S_KB))
    a.vmwait("UT"); a("s_barrier")
    for s2 in range(2):
        for hh in range(2):
            a("ds_read_b64_tr_b16 %s, v3 offset:%d" % (vr(YF + 4 * s2 + 2 * hh, 2), s2 * 4096 + hh * 512))
    a("s_waitcnt lgkmcnt(0)")
    for s2 in range(2):
        a.vmop("buffer_store_dwordx4 %s, v4, s[%d:%d], s6 offen offset:%d sc1" % (vr(YF + 4 * s2, 4), SUT, SUT + 3, 64 * s2), "UTS")
    G.stamp(1)
    a.vmwait("PAR")
    a("v_readfirstlane_b32 s%d, v8" % S_F0)
    a("v_lshlrev_b32 v%d, 16, v%d" % (DT, DT)); a("v_lshlrev_b32 v%d, 16, v%d" % (DS, DS))
    a("v_mul_f32 v%d, 0x%x, v%d" % (DT, LOG2E, DT)); a("v_exp_f32 v%d, v%d" % (DT, DT))
    a("s_mov_b32 s6, 0x7fff7fff")
    a("v_and_b32 v3, s6, v%d" % CR); a("v_and_b32 v4, s6, v%d" % (CR + 1)); a("v_and_b32 v5, s6, v%d" % CI); a("v_and_b32 v6, s6, v%d" % (CI + 1))
    a("v_pk_max_u16 v3, v3, v4"); a("v_pk_max_u16 v5, v5, v6"); a("v_pk_max_u16 v3, v3, v5")
    a("v_lshrrev_b32 v4, 16, v3"); a("v_and_b32 v3, 0xffff, v3"); a("v_max_u32 v3, v3, v4")
    a("v_cvt_pk_bf16_f32 v%d, v%d, v%d" % (DT, DT, DT)); a("v_lshlrev_b32 v%d, 16, v%d" % (DT, DT))
    for sh in (1, 2, 4, 8): a("v_max_u32_dpp v3, v3, v3 row_shr:%d row_mask:0xf bank_mask:0xf" % sh)
    a("v_max_u32_dpp v3, v3, v3 row_bcast:15 row_mask:0xa bank_mask:0xf")
    a("v_max_u32_dpp v3, v3, v3 row_bcast:31 row_mask:0xc bank_mask:0xf")
    a("v_mul_f32 v%d, 0x%x, v%d" % (KA, LOG2E | 0x80000000, DT)); a("v_mul_f32 v%d, 0.15915494, v%d" % (KT, DT))
    a("v_readlane_b32 s6, v3, 63")
    a("s_lshr_b32 s6, s6, 7"); a("s_sub_u32 s%d, 136, s6" % S_S)
    a("s_mov_b32 m0, s%d" % S_KB); a("v_mov_b32 v3, 0x3c00")
    a("ds_write_addtid_b32 v3 offset:0")

    def cmul_batch(lst):
        assert len(lst) <= len(TP)
        for (d, x, y), t in zip(lst, TP): a("v_pk_mul_f32 %s, %s, %s op_sel:[0,0] op_sel_hi:[0,1]" % (vr(t, 2), vr(x, 2), vr(y, 2)))
        for (d, x, y), t in zip(lst, TP): a("v_pk_fma_f32 %s, %s, %s, %s op_sel:[1,1,0] op_sel_hi:[1,0,1] neg_lo:[1,0,0]" % (vr(d, 2), vr(x, 2), vr(y, 2), vr(t, 2)))
    def cvt(h, x, conj=False): a("v_cvt_pk_f16_f32 v%d, v%d, %sv%d" % (h, x, "-" if conj else "", x + 1))
    def wr(reg, row): a("ds_write_addtid_b32 v%d offset:%d" % (reg, row * RS))
    def prod_batch(lst):
        assert len(lst) <= 16
        for k, (row, x, y) in enumerate(lst): a("v_pk_mul_f16 v%d, v%d, v%d op_sel:[0,0] op_sel_hi:[0,1]" % (PT[k], x, y))
        for k, (row, x, y) in enumerate(lst):
            a("v_pk_fma_f16 v%d, v%d, v%d, v%d op_sel:[1,1,0] op_sel_hi:[1,0,1] neg_lo:[1,0,0]" % (PR[k], x, y, PT[k]))
            if k >= 2: wr(PR[k - 2], lst[k - 2][0])
        for k in range(max(0, len(lst) - 2), len(lst)): wr(PR[k], lst[k][0])
    X0, X1, X2 = 16, 32, 48
    for k in range(12): a("v_mov_b32 v%d, 0" % (ACC + k))
    a("s_mov_b32 s77, 0")
    a("s_mov_b32 s78, 0x41000000"); a("s_mov_b32 s79, 0x43000000"); a("s_mov_b32 s48, 0x%x" % LOG2E)
    a.label("KG_loop")
    for rho in range(1):
        def unp(d, r):
            a("v_lshlrev_b32 v%d, 16, v%d" % (d, r))
            a("v_alignbit_b32 v%d, v%d, v%d, 16" % (r, r + 1, r)); a("v_lshrrev_b32 v%d, 16, v%d" % (r + 1, r + 1))
        KP = (lambda k: G.stamp(k)) if "kgprof" in G.opts else (lambda k: None)
        KP(3)
        unp(3, LA); unp(4, AI); unp(5, CR); unp(6, CI)
        a("v_mul_f32 v3, s48, v3"); a("v_exp_f32 v3, v3")
        a("v_mul_f32 v4, v4, v%d" % KT)
        a("v_ldexp_f32 v%d, v5, s%d" % (s_[0], S_S)); a("v_ldexp_f32 v%d, v6, s%d" % (s_[0] + 1, S_S))
        a("v_cvt_pk_bf16_f32 v3, v3, v3"); a("v_lshlrev_b32 v3, 16, v3"); a("v_mul_f32 v3, v3, v%d" % KA)
        m = [TP[0], TP[0] + 1, TP[1]]; ph = [TP[1] + 1, TP[2], TP[2] + 1]
        a("v_mul_f32 v%d, s78, v4" % ph[1]); a("v_mul_f32 v%d, s79, v4" % ph[2])
        a("v_fract_f32 v%d, v4" % ph[0]); a("v_fract_f32 v%d, v%d" % (ph[1], ph[1])); a("v_fract_f32 v%d, v%d" % (ph[2], ph[2]))
        a("v_mul_f32 v%d, s78, v3" % m[1]); a("v_mul_f32 v%d, s79, v3" % m[2])
        W = [w0, w3, w7]
        for k in range(3): a("v_cos_f32 v%d, v%d" % (W[k], ph[k])); a("v_sin_f32 v%d, v%d" % (W[k] + 1, ph[k]))
        a("v_exp_f32 v%d, v3" % m[0]); a("v_exp_f32 v%d, v%d" % (m[1], m[1])); a("v_exp_f32 v%d, v%d" % (m[2], m[2]))
        cvt(hs[0], s_[0])
        for k in range(3): a("v_mul_f32 v%d, v%d, v%d" % (W[k], W[k], m[k])); a("v_mul_f32 v%d, v%d, v%d" % (W[k] + 1, W[k] + 1, m[k]))
        wr(hs[0], X2 + 8)
        KP(4)
        cmul_batch([(w4, w3, w3), (w8, w7, w7), (s_[1], s_[0], w0), (w1, w0, w0)])
        cvt(hw3, w3, True); cvt(hw7, w7); wr(hw3, 1)
        cmul_batch([(w5, w4, w4), (w9, w8, w8), (s_[2], s_[1], w0), (s_[3], s_[1], w1), (w2, w1, w1), (t3, w3, w4)])
        cvt(hw4, w4, True); cvt(hw8, w8); cvt(hs[1], s_[1]); wr(hw4, 2); wr(hs[1], X0 + 0)
        cmul_batch([(w6, w5, w5), (w10, w9, w9), (s_[4], s_[2], w1), (t7, w7, w8), (s_[5], s_[1], w2), (s_[6], s_[2], w2)])
        cvt(hw5, w5, True); cvt(ht3, t3, True); cvt(hs[2], s_[2]); cvt(hs[3], s_[3])
        wr(hw5, 4); wr(ht3, 3); wr(hs[2], X0 + 1); wr(hs[3], X0 + 2)
        cmul_batch([(t5, w5, w6), (s_[7], s_[3], w2), (s_[8], s_[4], w2), (S3a, s_[4], w9)])
        cvt(hw6, w6, True); cvt(ht7, t7); cvt(hs[4], s_[4]); cvt(hs[5], s_[5]); cvt(hs[6], s_[6])
        wr(hw6, 8); wr(hs[4], X0 + 3); wr(hs[5], X0 + 4); wr(hs[6], X0 + 5)
        cmul_batch([(S3b, s_[8], w9), (S4a, s_[8], w10)])
        cvt(ht5, t5, True); cvt(hs[7], s_[7]); cvt(hs[8], s_[8]); cvt(hS3a, S3a)
        wr(ht5, 12); wr(hs[7], X0 + 6); wr(hs[8], X0 + 7); wr(hS3a, X1 + 8)
        cmul_batch([(S4b, S3b, w10)])
        KP(5)
        lo = [None, hw3, hw4, ht3]; hi = [None, hw5, hw6, ht5]; M = [None, hw7, hw8, ht7]
        prod_batch([(m0 + 4 * m1, lo[m0], hi[m1]) for m1 in (1, 2, 3) for m0 in (1, 2, 3)])
        cvt(hS3b, S3b); cvt(hS4a, S4a); cvt(hS4b, S4b)
        wr(hS3b, X1 + 9); wr(hS4a, X2 + 0); wr(hS4b, X2 + 4)
        prod_batch([(X0 + 8 + k, hs[k + 1], hw7) for k in range(8)] + [(X1 + k, hs[2 * k + 2], hw8) for k in range(4)] + [(X1 + 4 + k, hs[2 * k + 2], ht7) for k in range(4)])
        KP(6)
        for ks in range(4):
            a("ds_read_b128 %s, v%d offset:%d" % (vr(YF + 4 * ks, 4), FY, ks * 64))
            a("ds_read_b128 %s, v%d offset:%d" % (vr(XF + 4 * ks, 4), FY, X0 * RS + ks * 64))
        prod_batch([(X1 + 8 + 2 * i, hS3a, M[i]) for i in (1, 2, 3)] + [(X1 + 9 + 2 * i, hS3b, M[i]) for i in (1, 2, 3)]
                   + [(X2 + i, hS4a, M[i]) for i in (1, 2, 3)] + [(X2 + 4 + i, hS4b, M[i]) for i in (1, 2, 3)])
        for ks in range(4):
            a("ds_read_b128 %s, v%d offset:%d" % (vr(XF + 16 + 4 * ks, 4), FY, X1 * RS + ks * 64))
            a("ds_read_b128 %s, v%d offset:%d" % (vr(XF + 32 + 4 * ks, 4), FX2, X2 * RS + ks * 64))
        KP(7)
        Lnp = a.newlabel("nopub")
        a("s_cmp_lg_u32 s77, 0"); a("s_cbranch_scc1 %s" % Lnp)
        a.vmwait("UTS"); a("s_barrier")
        a("s_cmp_lg_u32 s%d, 3" % WAVE); a("s_cbranch_scc1 %s" % Lnp)
        a("s_and_b32 s6, s%d, 3" % S_GAM); a("s_lshl_b32 s6, s6, 6"); a("s_lshr_b32 s7, s%d, 2" % S_GAM); a("s_lshl_b32 s7, s7, 2")
        a("s_add_u32 s6, s6, s7"); a("s_add_u32 s6, s6, 4")
        G.atomic_ret(6, 3, 4, 7)
        a("s_cmp_lg_u32 s7, 31"); a("s_cbranch_scc1 %s" % Lnp)
        a("v_lshlrev_b32 v3, 7, v%d" % LANE); a("v_mov_b32 v4, 1"); a("s_lshl_b32 s6, s%d, 12" % S_GAM); a("s_add_u32 s6, s6, 32768")
        a("s_mov_b64 exec, 0xffffffff")
        a("buffer_atomic_add v4, v3, s[%d:%d], s6 offen sc1" % (SFL, SFL + 3))
        a("s_mov_b64 exec, -1")
        a.label(Lnp)
        a("s_waitcnt lgkmcnt(0)")
        for ks in range(4):
            for tl in range(3):
                c = vr(ACC + 4 * tl, 4)
                a("v_mfma_f32_16x16x32_f16 %s, %s, %s, %s" % (c, vr(XF + 16 * tl + 4 * ks, 4), vr(YF + 4 * ks, 4), c))
        KP(8)
        a("s_add_u32 s77, s77, 1"); a("s_cmp_lt_u32 s77, 4"); a("s_cbranch_scc1 KG_loop")
    G.stamp(2)
    Lp = a.newlabel("bw")
    a("s_cmp_lg_u32 s%d, 0" % WAVE); a("s_cbranch_scc1 %s" % Lp)
    G.poll_flag(3, 4)
    a.label(Lp)
    a("s_barrier")
    a("v_lshlrev_b32 v3, 4, v%d" % LANE); a("s_lshl_b32 s6, s%d, 12" % S_D)
    for k in range(4):
        a.vmop("buffer_load_dwordx4 %s, v3, s[%d:%d], s6 offen offset:%d %s" % (vr(UR + 4 * k, 4), SUT, SUT + 3, 1024 * k, G.HL), "U")
    if 'kgprof' not in G.opts: G.stamp(3)
    a("v_add_f32 v%d, v%d, v%d" % (DT, DT, DT)); a("s_sub_u32 s7, 0, s%d" % S_S)
    for k in range(12): a("v_mul_f32 v%d, v%d, v%d" % (ACC + k, ACC + k, DT))
    for k in range(12): a("v_ldexp_f32 v%d, v%d, s7" % (ACC + k, ACC + k))
    a("v_cmp_le_u32 vcc, 2, v2"); a("v_mov_b32 v3, 0"); a("v_cndmask_b32 v3, v3, v%d, vcc" % DS)
    a("v_add_f32 v%d, v%d, v3" % (ACC + 8, ACC + 8))
    C = 40
    for k in range(6): a("v_cvt_pk_bf16_f32 v%d, v%d, v%d" % (C + k, ACC + 2 * k, ACC + 2 * k + 1))
    a("v_lshrrev_b32 v3, 1, v2"); a("v_lshlrev_b32 v3, 8, v3"); a("v_lshl_add_u32 v3, v1, 4, v3"); a("v_and_b32 v4, 1, v2"); a("v_lshl_add_u32 v3, v4, 3, v3")
    a("v_add_u32 v3, s%d, v3" % S_UB)
    a("ds_write_b64 v3, %s offset:16" % vr(C, 2))
    a("v_lshlrev_b32 v3, 7, v2"); a("v_lshl_add_u32 v3, v1, 3, v3"); a("v_add_u32 v3, 528, v3"); a("v_add_u32 v4, 4, v3")
    a("v_lshlrev_b32 v5, 7, v2"); a("v_lshl_add_u32 v5, v1, 2, v5"); a("v_add_u32 v5, %d, v5" % (784 - 256)); a("v_add_u32 v6, 64, v5")
    a("v_cndmask_b32 v3, v3, v5, vcc"); a("v_cndmask_b32 v4, v4, v6, vcc")
    a("v_add_u32 v3, s%d, v3" % S_UB); a("v_add_u32 v4, s%d, v4" % S_UB)
    a("ds_write_b32 v3, v%d" % (C + 2)); a("ds_write_b32 v4, v%d" % (C + 3))
    a("v_lshlrev_b32 v3, 7, v2"); a("v_lshl_add_u32 v3, v1, 1, v3"); a("v_add_u32 v3, 1040, v3")
    a("v_add_u32 v4, 1024, v3"); a("v_cndmask_b32 v3, v3, v4, vcc")
    a("v_cmp_eq_u32 vcc, 32, v%d" % LANE); a("v_mov_b32 v5, 14"); a("v_cndmask_b32 v4, v3, v5, vcc")
    a("v_add_u32 v3, s%d, v3" % S_UB); a("v_add_u32 v4, s%d, v4" % S_UB)
    a("ds_write_b16 v4, v%d" % (C + 4)); a("ds_write_b16_d16_hi v3, v%d offset:32" % (C + 4))
    a("ds_write_b16 v3, v%d offset:64" % (C + 5)); a("ds_write_b16_d16_hi v3, v%d offset:96" % (C + 5))
    D = lambda p: 48 + 8 * p
    Rr = 96
    a("s_mov_b32 s6, 0xffff"); a("s_mov_b32 s7, 0x01000302"); a("s_mov_b32 s76, 0x03020302"); a("s_mov_b32 s77, 0x01000100")
    a("v_lshlrev_b32 v3, 4, v%d" % LANE); a("v_add_u32 v3, s%d, v3" % S_UB)
    a("v_lshlrev_b32 v4, 3, v%d" % LANE); a("v_add_u32 v4, s%d, v4" % S_UB)
    a("v_lshlrev_b32 v5, 2, v%d" % LANE); a("v_add_u32 v5, s%d, v5" % S_UB)
    a("v_lshlrev_b32 v6, 1, v%d" % LANE); a("v_add_u32 v6, s%d, v6" % S_UB)
    a("ds_read_b128 %s, v3 offset:16" % vr(Rr, 4)); a("ds_read_b32 v%d, v3 offset:12" % (Rr + 4))
    a("ds_read_b64 %s, v4 offset:272" % vr(Rr + 6, 2)); a("ds_read_b32 v%d, v4 offset:268" % (Rr + 5))
    a("ds_read_b32 v%d, v5 offset:784" % (Rr + 8)); a("ds_read_b32 v%d, v5 offset:780" % (Rr + 9))
    for p in range(2):
        a("ds_read_u16 v%d, v6 offset:%d" % (Rr + 10 + 2 * p, 1038 + 128 * p)); a("ds_read_u16 v%d, v6 offset:%d" % (Rr + 11 + 2 * p, 1040 + 128 * p))
    a("v_and_b32 v3, 1, v%d" % LANE); a("v_cmp_eq_u32 vcc, 1, v3")
    a("s_waitcnt lgkmcnt(0)")
    d = D(0)
    a("v_perm_b32 v%d, v%d, v%d, s7" % (d, Rr + 7, Rr + 7)); a("v_perm_b32 v%d, v%d, v%d, s76" % (d + 1, Rr + 6, Rr + 6))
    a("v_perm_b32 v%d, v%d, v%d, s7" % (d + 2, Rr + 6, Rr + 6)); a("v_perm_b32 v%d, v%d, v%d, s76" % (d + 3, Rr + 5, Rr + 5))
    a("s_mov_b64 exec, 0xffffffff")
    a("v_bfi_b32 v%d, s6, v%d, v%d" % (d, Rr + 3, Rr + 2)); a("v_bfi_b32 v%d, s6, v%d, v%d" % (d + 1, Rr + 2, Rr + 1))
    a("v_bfi_b32 v%d, s6, v%d, v%d" % (d + 2, Rr + 1, Rr)); a("v_bfi_b32 v%d, s6, v%d, v%d" % (d + 3, Rr, Rr + 4))
    a("s_mov_b64 exec, -1")
    d = D(1)
    a("v_perm_b32 v%d, v%d, v%d, s76" % (d, Rr + 8, Rr + 8)); a("v_perm_b32 v%d, v%d, v%d, s77" % (d + 1, Rr + 8, Rr + 8))
    a("v_bfi_b32 v%d, s6, v%d, v%d" % (d + 2, Rr + 8, Rr + 9)); a("v_perm_b32 v%d, v%d, v%d, s76" % (d + 3, Rr + 9, Rr + 9))
    for p in range(2):
        d = D(2 + p); V0, V1 = Rr + 10 + 2 * p, Rr + 11 + 2 * p
        a("v_lshl_or_b32 v%d, v%d, 16, v%d" % (d, V1, V1)); a("v_lshl_or_b32 v%d, v%d, 16, v%d" % (d + 2, V0, V0)); a("v_mov_b32 v%d, v%d" % (d + 3, d + 2))
        a("v_cndmask_b32 v%d, v%d, v%d, vcc" % (V0, V0, V1)); a("v_lshl_or_b32 v%d, v%d, 16, v%d" % (d + 1, V0, V1))
    a("v_lshlrev_b32 v3, 4, v%d" % LANE); a("v_sub_u32 v3, 1008, v3")
    for sg in range(4):
        a("v_xor_b32 v4, %d, v3" % (sg << 6)); a("v_add_u32 v%d, s%d, v4" % (Rr + sg, S_KB))
    for p in range(4): a("ds_write_b128 v%d, %s offset:%d" % (Rr, vr(D(p), 4), 1024 * (3 - p)))
    for p in range(4): a("ds_read_b64 %s, v%d offset:%d" % (vr(D(p) + 4, 2), Rr, 1024 * (3 - p) + 16))
    a("s_waitcnt lgkmcnt(0)")
    a("s_mov_b64 exec, 1"); a("v_mov_b32 v%d, 0" % (D(0) + 4)); a("v_mov_b32 v%d, 0" % (D(0) + 5)); a("s_mov_b64 exec, -1")
    E = 104
    for p in range(4):
        d = D(p); e = E + 12 * p
        for k in range(4): a("v_alignbit_b32 v%d, v%d, v%d, 16" % (e + k, d + k + 1, d + k))
        for k in range(4): a("v_mov_b32 v%d, v%d" % (e + 4 + k, d + 1 + k))
        for k in range(4): a("v_alignbit_b32 v%d, v%d, v%d, 16" % (e + 8 + k, d + k + 2, d + k + 1))
        for sg in range(1, 4):
            a("ds_write_b128 v%d, %s offset:%d" % (Rr + sg, vr(e + 4 * (sg - 1), 4), sg * 4096 + 1024 * (3 - p)))
    a("v_lshlrev_b32 v3, 4, v%d" % LANE); a("v_add_u32 v3, s%d, v3" % S_UB)
    a.vmwait("U")
    for k in range(4): a("ds_write_b128 v3, %s offset:%d" % (vr(UR + 4 * k, 4), 1024 * k))
    if 'kgprof' not in G.opts: G.stamp(4)
    AA = 160
    BA = 168
    CA = 144
    a("v_lshrrev_b32 v3, 2, v1"); a("v_and_b32 v4, 3, v1"); a("v_sub_u32 v4, 3, v4")
    a("v_lshlrev_b32 v3, 3, v3"); a("v_lshlrev_b32 v5, 4, v2"); a("v_sub_u32 v3, v5, v3")
    a("v_lshlrev_b32 v5, 6, v4"); a("v_lshlrev_b32 v4, 12, v4"); a("v_add_u32 v4, s%d, v4" % S_KB)
    for mm in range(4):
        for wh in range(2):
            a("v_add_u32 v6, %d, v3" % (216 - 64 * mm + 8 * wh)); a("v_xor_b32 v6, v6, v5"); a("v_add_u32 v%d, v6, v4" % (AA + 2 * mm + wh))
    a("v_lshlrev_b32 v3, 5, v1"); a("v_lshl_add_u32 v3, v2, 4, v3"); a("s_sub_u32 s6, s%d, 544" % S_UB); a("v_add_u32 v%d, s6, v3" % BA)
    a("v_mov_b32 v%d, 0" % (BA + 2))
    a("v_mov_b32 v%d, v3" % (BA + 1))
    Llo = a.newlabel("conv_lo"); Lout = a.newlabel("conv_out")
    a("s_and_b32 s6, s%d, 1" % S_J); a("s_cmp_eq_u32 s6, 1"); a("s_cbranch_scc1 %s" % Llo)
    def conv(ts):
        tmax = max(ts); n = tmax + 1
        AB = lambda b: 16 + 32 * b; BB = lambda b: 80 + 32 * b
        def reads(rp):
            b = rp & 1
            for k in range(n):
                s = k; q = k
                off = 512 * (7 - s) + (256 if rp < 4 else 0)
                a("ds_read_b64 %s, v%d offset:%d" % (vr(AB(b) + 4 * s, 2), AA + 2 * (rp & 3), off))
                a("ds_read_b64 %s, v%d offset:%d" % (vr(AB(b) + 4 * s + 2, 2), AA + 2 * (rp & 3) + 1, off))
                a("ds_read_b128 %s, v%d offset:%d" % (vr(BB(b) + 4 * q, 4), BA, 512 * q - 64 * rp + 512))
        reads(0)
        for rp in range(8):
            b = rp & 1
            a("v_cmp_gt_u32 vcc, %d, v%d" % (32 + 64 * rp, BA + 1))
            a("s_waitcnt lgkmcnt(0)")
            if rp + 1 < 8: reads(rp + 1)
            for k in range(4): a("v_cndmask_b32 v%d, v%d, v%d, vcc" % (BB(b) + k, BB(b) + k, BA + 2))
            if rp == 0:
                a("s_mov_b32 s6, 0"); a("s_mov_b32 s7, 0x00ff0000"); a("s_mov_b64 exec, s[6:7]")
                a("v_mov_b32 v%d, 0" % AB(b)); a("v_mov_b32 v%d, 0" % (AB(b) + 1))
                a("s_mov_b32 s7, 0x0fff000f"); a("s_mov_b64 exec, s[6:7]")
                a("v_mov_b32 v%d, 0" % (AB(b) + 2)); a("v_mov_b32 v%d, 0" % (AB(b) + 3))
                a("s_mov_b64 exec, -1")
            lst = [(ti, s, t - s) for ti, t in enumerate(ts) for s in range(t + 1)]
            lst.sort(key=lambda z: (z[1] == 0 or z[2] == 0, z[1]))
            seen = set()
            for ti, s, q in lst:
                c = vr(CA + 4 * ti, 4)
                first = rp == 0 and ti not in seen; seen.add(ti)
                a("v_mfma_f32_16x16x32_bf16 %s, %s, %s, %s" % (c, vr(AB(b) + 4 * s, 4), vr(BB(b) + 4 * q, 4), "0" if first else c))
    conv([7, 6, 1, 0])
    a("s_mov_b32 s76, 0x00010607")
    a("s_branch %s" % Lout)
    a.label(Llo)
    conv([5, 4, 3, 2])
    a("s_mov_b32 s76, 0x02030405")
    a.label(Lout); a.fence(8)
    if 'kgprof' not in G.opts: G.stamp(5)
    a("v_lshlrev_b32 v3, 5, v1"); a("v_lshl_add_u32 v3, v2, 3, v3"); a("s_lshl_b32 s6, s%d, 6" % WAVE); a("s_add_u32 s6, s6, s%d" % S_KB); a("v_add_u32 v3, s6, v3")
    for ti in range(4):
        a("v_cvt_pk_bf16_f32 v%d, v%d, v%d" % (16 + 2 * ti, CA + 4 * ti, CA + 4 * ti + 1)); a("v_cvt_pk_bf16_f32 v%d, v%d, v%d" % (17 + 2 * ti, CA + 4 * ti + 2, CA + 4 * ti + 3))
        a("ds_write_b64 v3, %s offset:%d" % (vr(16 + 2 * ti, 2), 512 * ti))
    a("v_bfe_u32 v3, v%d, 2, 2" % LANE); a("v_mul_u32_u24 v3, 16448, v3"); a("v_lshl_add_u32 v3, v2, 5, v3")
    a("v_and_b32 v4, 3, v%d" % LANE); a("v_lshl_add_u32 v3, v4, 3, v3"); a("s_lshl_b32 s6, s%d, 9" % WAVE); a("v_add_u32 v3, s6, v3")
    a("s_lshl_b32 s6, s%d, 3" % WAVE); a("s_lshr_b32 s6, s76, s6"); a("s_and_b32 s6, s6, 0xff"); a("s_mul_i32 s6, s6, %d" % (256 * 1792))
    a("s_lshl_b32 s7, s%d, 3" % S_CQ); a("s_add_u32 s6, s6, s7"); a("s_add_u32 s6, s6, 896")
    a("v_mul_u32_u24 v4, 1792, v%d" % LANE)
    a("s_waitcnt lgkmcnt(0)"); a("s_barrier")
    for it in range(4): a("ds_read_b64_tr_b16 %s, v3 offset:%d" % (vr(24 + 2 * it, 2), 128 * it))
    for it in range(4):
        a("s_waitcnt lgkmcnt(%d)" % (3 - it))
        a.vmop("buffer_store_dwordx2 %s, v4, s[%d:%d], s6 offen" % (vr(24 + 2 * it, 2), SOUT, SOUT + 3), "S")
        if it < 3: a("s_add_u32 s6, s6, %d" % (64 * 1792))
    if 'kgprof' not in G.opts: G.stamp(6)
    G.dump_stamps()
```

```python
import re, os
MD = int(os.environ.get('MFMA_DIST', '8'))
TD = int(os.environ.get('TRANS_DIST', '1'))

TRANS = ("v_exp_f32", "v_log_f32", "v_rcp_f32", "v_rsq_f32", "v_sqrt_f32", "v_sin_f32", "v_cos_f32")

def _regs(tok):
    tok = tok.strip()
    tok = tok.lstrip("-")
    m = re.match(r"^abs\((.*)\)$", tok)
    if m: tok = m.group(1)
    tok = tok.strip("|")
    m = re.match(r"^([vs])(\d+)$", tok)
    if m: return [(m.group(1), int(m.group(2)))]
    m = re.match(r"^([vs])\[(\d+):(\d+)\]$", tok)
    if m: return [(m.group(1), i) for i in range(int(m.group(2)), int(m.group(3)) + 1)]
    if tok in ("vcc", "vcc_lo", "vcc_hi"): return [("vcc", 0)]
    if tok in ("exec",): return [("exec", 0)]
    if tok == "m0": return [("m0", 0)]
    return []

def split_ops(s):
    out, depth, cur = [], 0, ""
    for ch in s:
        if ch in "[(": depth += 1
        if ch in "])": depth -= 1
        if ch == "," and depth == 0:
            out.append(cur); cur = ""
        else: cur += ch
    if cur.strip(): out.append(cur)
    res = []
    for i, o in enumerate(out):
        o = o.strip()
        res.append(o.split()[0] if o else o)
    return res

class Asm:
    def __init__(self):
        self.lines = []
        self.pos = 0
        self.w = {}
        self.rc = {}
        self.st = {}
        self.vm = []
        self.nlabel = 0
        self.lg = 0
    def raw(self, s): self.lines.append(s)
    def comment(self, s): self.lines.append("    ; " + s)
    def label(self, name):
        self.lines.append(name + ":")
    def newlabel(self, p="L"):
        self.nlabel += 1
        return "%s_%d" % (p, self.nlabel)
    def nop(self, n):
        while n > 0:
            k = min(n, 16)
            self.lines.append("    s_nop %d" % (k - 1)); self.pos += k; n -= k
    def fence(self, n=16):
        self.nop(n)
    def __call__(self, text):
        for ln in text.strip().split("\n"):
            ln = ln.strip()
            if ln: self.emit(ln)
    def emit(self, ins):
        code = ins.split(";")[0].strip()
        parts = code.split(None, 1)
        mn = parts[0]
        ops = split_ops(parts[1]) if len(parts) > 1 else []
        R = [_regs(o) for o in ops]
        dst, src = [], []
        kind = "salu"
        srcC = []
        if mn.startswith("v_mfma"):
            kind = "mfma"; dst = R[0]; src = R[1] + R[2]; srcC = R[3] if len(R) > 3 else []
        elif mn.startswith("v_cmp"):
            kind = "valu"; dst = R[0]; src = sum(R[1:], [])
        elif mn.startswith("v_permlane"):
            kind = "valu"; dst = R[0] + R[1]; src = R[0] + R[1]
        elif mn.startswith("v_"):
            kind = "trans" if mn.replace("_e32", "").replace("_e64", "") in TRANS else "valu"
            dst = R[0]; src = sum(R[1:], [])
            if mn.startswith(("v_fmac", "v_writelane")) or "_dpp" in mn: src = src + R[0]
            if mn.startswith(("v_add_co", "v_sub_co", "v_addc_co")): dst = R[0] + R[1]; src = sum(R[2:], [])
        elif mn.startswith("ds_"):
            kind = "ds"
            if mn.startswith(("ds_read", "ds_bpermute", "ds_permute", "ds_swizzle")):
                dst = R[0]; src = sum(R[1:], [])
                if "d16" in mn: src = src + R[0]
            else: src = sum(R, [])
            if "addtid" in mn: src = src + [("m0", 0)]
        elif mn.startswith(("buffer_", "global_")):
            kind = "vmem"
            islds = re.search(r"\blds\b", code) or "_lds_" in mn
            if "_load" in mn and not islds: dst = R[0]; src = sum(R[1:], [])
            else: src = sum(R, [])
            if islds: src = src + [("m0", 0)]
            if "atomic" in mn and re.search(r"\bsc0\b", code): dst = R[0]
        elif mn.startswith("s_"):
            kind = "salu"
            if mn.startswith(("s_cmp", "s_bitcmp", "s_cbranch", "s_branch", "s_waitcnt", "s_barrier", "s_nop", "s_sleep", "s_endpgm", "s_setprio")):
                src = sum(R, [])
            else:
                dst = R[0] if R else []; src = sum(R[1:], [])
        need = 0
        def req(p, n):
            nonlocal need
            need = max(need, n - (self.pos - p - 1))
        isdpp = "_dpp" in mn or "row_" in code
        for r in src + srcC:
            if r not in self.w: continue
            p, k, wd = self.w[r]
            isC = r in srcC and r not in src
            if r[0] == "v":
                if k in ("valu", "trans"):
                    if kind == "mfma": req(p, 2)
                    if k == "trans" and kind in ("valu", "mfma", "ds", "vmem"): req(p, TD)
                    if isdpp or mn.startswith("v_permlane"): req(p, 2)
                    if mn.startswith(("v_readlane", "v_readfirstlane")): req(p, 1)
                if k == "mfma":
                    if kind == "mfma" and isC:
                        if wd != tuple(srcC): req(p, 6)
                    else: req(p, MD)
            elif r[0] in ("s", "vcc"):
                if k in ("valu", "trans"):
                    if kind in ("valu", "trans"): req(p, 4 if mn.startswith(("v_readlane", "v_writelane")) else 2)
                    if kind == "vmem": req(p, 5)
                    if kind == "salu": req(p, 1)
            elif r[0] == "m0":
                if kind in ("ds", "vmem"): req(p, 1)
        for r in dst:
            if r[0] == "v":
                if r in self.w and self.w[r][1] == "mfma" and kind != "mfma": req(self.w[r][0], MD)
                if r in self.w and self.w[r][1] == "mfma" and kind == "mfma" and not (srcC and self.w[r][2] == tuple(srcC)): req(self.w[r][0], 6)
                if r in self.rc and kind in ("valu", "trans"): req(self.rc[r], 3)
                if r in self.st: req(self.st[r], 2)
        if kind == "ds":
            if self.lg >= 15:
                self.lines.append("    s_waitcnt lgkmcnt(12)"); self.pos += 1; self.lg = 12; need -= 1
            self.lg += 1
        if mn == "s_waitcnt":
            m = re.search(r"lgkmcnt\((\d+)\)", code)
            if m: self.lg = min(self.lg, int(m.group(1)))
        if need > 0: self.nop(need)
        self.lines.append("    " + ins)
        for r in dst: self.w[r] = (self.pos, kind, tuple(dst))
        for r in srcC: self.rc[r] = self.pos
        if kind == "vmem" and "store" in mn and ("x4" in mn or "x3" in mn):
            for r in R[0] if mn.startswith("buffer_") else R[1]: self.st[r] = self.pos
        if mn == "s_nop": self.pos += int(ops[0]) + 1
        else: self.pos += 1
    def vmop(self, text, tag):
        self.emit(text); self.vm.append(tag)
    def vmwait(self, *tags, extra=""):
        last = -1
        for i, t in enumerate(self.vm):
            if t in tags: last = i
        n = len(self.vm) - 1 - last
        if last >= 0:
            assert n <= 63
            self.emit("s_waitcnt vmcnt(%d)%s" % (n, extra))
            self.vm = self.vm[last + 1:]
        elif extra:
            self.emit("s_waitcnt%s" % extra)
    def vmwait_all(self, extra=""):
        self.emit("s_waitcnt vmcnt(0)%s" % extra); self.vm = []
    def text(self): return "\n".join(self.lines) + "\n"

def vr(a, n=1): return "v%d" % a if n == 1 else "v[%d:%d]" % (a, a + n - 1)
def sr(a, n=1): return "s%d" % a if n == 1 else "s[%d:%d]" % (a, a + n - 1)
```

```python
from asmlib import *
from gen import *

def gen_b(G):
    a = G.a
    S_J, S_GAM, S_RBK, S_CQ, S_D, S_S, S_KB, S_UB = 8, 9, 10, 11, 12, 13, 14, 15
    S_CH, S_HF = 48, 49
    LA, AI, CR, CI, DT, DS, KA, KT, FY, FX2 = 10, 11, 12, 13, 14, 15, 16, 17, 18, 19
    ACC = 20
    w0, w1, w2, w3, w4, w5, w6, t3, t5, w7, w8, w9, w10, t7 = [32 + 2 * k for k in range(14)]
    s_ = [60 + 2 * k for k in range(9)]
    S3a, S3b, S4a, S4b = 78, 80, 82, 84
    TP = [86 + 2 * k for k in range(6)]
    hw3, hw4, ht3, hw5, hw6, ht5, hw7, hw8, ht7 = range(98, 107)
    hs = list(range(107, 116)); hS3a, hS3b, hS4a, hS4b = range(116, 120)
    PT = list(range(32, 40)); PR = list(range(40, 48))
    YF, XF, XF2 = 60, 76, 32
    RS = 288
    USTG = 73728
    a("s_setprio 3")
    a("s_mul_i32 s%d, s%d, 28" % (S_J, XCD)); a("s_add_u32 s%d, s%d, s%d" % (S_J, S_J, SLOT))
    a("s_lshr_b32 s%d, s%d, 5" % (S_GAM, S_J)); a("s_and_b32 s%d, s%d, 31" % (S_RBK, S_J)); a("s_lshr_b32 s%d, s%d, 1" % (S_CQ, S_J))
    a("s_and_b32 s%d, s%d, 3" % (S_CH, WAVE)); a("s_lshr_b32 s%d, s%d, 2" % (S_HF, WAVE))
    a("s_lshl_b32 s%d, s%d, 2" % (S_D, S_CQ)); a("s_add_u32 s%d, s%d, s%d" % (S_D, S_D, S_CH))
    a("v_and_b32 v1, 15, v%d" % LANE); a("v_lshrrev_b32 v2, 4, v%d" % LANE)
    a("v_lshrrev_b32 v3, 3, v%d" % LANE); a("v_mul_u32_u24 v3, 896, v3")
    a("v_and_b32 v4, 7, v%d" % LANE); a("v_lshl_add_u32 v3, v4, 4, v3")
    a("s_lshl_b32 s6, s%d, 3" % S_RBK); a("s_add_u32 s6, s6, s%d" % WAVE); a("s_mul_i32 s6, s6, 7168"); a("s_lshl_b32 s7, s%d, 7" % S_GAM); a("s_add_u32 s6, s6, s7")
    a("s_lshl_b32 s7, s%d, 10" % WAVE); a("s_add_u32 m0, s7, %d" % USTG)
    a("v_lshlrev_b32 v4, 2, v%d" % LANE); a("s_lshl_b32 s7, s%d, 1" % S_D); a("s_add_u32 s7, s7, s%d" % S_HF); a("s_lshl_b32 s7, s7, 8"); a("v_add_u32 v4, s7, v4")
    a("s_lshl_b32 s7, s%d, 1" % S_D); a("v_mov_b32 v5, s7")
    a("s_add_u32 s%d, s%d, 512" % (S_FA, S_J)); a("s_lshl_b32 s%d, s%d, 7" % (S_FA, S_FA)); a("v_mov_b32 v9, s%d" % S_FA)
    a("s_waitcnt lgkmcnt(0)")
    G.srd(SU, P_U, 1835008)
    G.stamp(0)
    a.vmop("buffer_load_dwordx4 v3, s[%d:%d], s6 offen lds" % (SU, SU + 3), "UT")
    G.srd(SFL, P_WS, 131072, WS_FL)
    a.vmop("buffer_load_dword v8, v9, s[%d:%d], 0 offen sc1" % (SFL, SFL + 3), "UT")
    for r, p in ((LA, P_LA), (AI, P_AI), (CR, P_CR), (CI, P_CI)):
        a.vmop("global_load_dword v%d, v4, s[%d:%d]" % (r, p, p + 1), "PAR")
    a.vmop("global_load_ushort v%d, v5, s[%d:%d]" % (DT, P_DT, P_DT + 1), "PAR")
    a.vmop("global_load_ushort v%d, v5, s[%d:%d]" % (DS, P_DS, P_DS + 1), "PAR")
    G.srd(SUT, P_WS, 1835008, WS_UT); G.srd(SDBG, P_DBG, 256); G.srd(SOUT, P_OUT, 3670016)
    a("v_bfe_u32 v3, v%d, 2, 2" % LANE); a("v_lshl_add_u32 v3, v2, 3, v3"); a("v_lshlrev_b32 v3, 7, v3")
    a("v_and_b32 v4, 3, v%d" % LANE); a("v_lshl_add_u32 v3, v4, 3, v3")
    a("s_lshl_b32 s6, s%d, 5" % S_CH); a("s_lshl_b32 s7, s%d, 12" % S_HF); a("s_add_u32 s6, s6, s7"); a("s_add_u32 s6, s6, %d" % USTG); a("v_add_u32 v3, s6, v3")
    a("s_lshl_b32 s6, s%d, 6" % S_GAM); a("s_lshl_b32 s7, s%d, 4" % S_CH); a("s_add_u32 s6, s6, s7"); a("s_lshl_b32 s6, s6, 12")
    a("s_lshl_b32 s7, s%d, 7" % S_RBK); a("s_add_u32 s6, s6, s7"); a("s_lshl_b32 s7, s%d, 6" % S_HF); a("s_add_u32 s6, s6, s7")
    a("v_lshlrev_b32 v4, 12, v1"); a("v_lshl_add_u32 v4, v2, 4, v4")
    a("s_mul_i32 s%d, s%d, 9216" % (S_KB, WAVE))
    a("v_mul_u32_u24 v5, %d, v1" % RS); a("v_lshl_add_u32 v5, v2, 4, v5"); a("v_add_u32 v%d, s%d, v5" % (FY, S_KB))
    a("v_min_u32 v6, 8, v1"); a("v_mul_u32_u24 v6, %d, v6" % RS); a("v_lshl_add_u32 v6, v2, 4, v6"); a("v_add_u32 v%d, s%d, v6" % (FX2, S_KB))
    a.vmwait("UT"); a("s_barrier")
    for hh in range(2): a("ds_read_b64_tr_b16 %s, v3 offset:%d" % (vr(YF + 2 * hh, 2), hh * 512))
    a("v_readfirstlane_b32 s%d, v8" % S_F0)
    a("s_waitcnt lgkmcnt(0)")
    a.vmop("buffer_store_dwordx4 %s, v4, s[%d:%d], s6 offen sc1" % (vr(YF, 4), SUT, SUT + 3), "UTS")
    G.stamp(1)
    a.vmwait("PAR")
    a("v_lshlrev_b32 v%d, 16, v%d" % (DT, DT)); a("v_lshlrev_b32 v%d, 16, v%d" % (DS, DS))
    a("s_mov_b32 s50, 0x%x" % LOG2E)
    a("v_mul_f32 v%d, s50, v%d" % (DT, DT)); a("v_exp_f32 v%d, v%d" % (DT, DT))
    a("s_mov_b32 s6, 0x7fff7fff")
    a("v_and_b32 v3, s6, v%d" % CR); a("v_and_b32 v5, s6, v%d" % CI)
    a("v_pk_max_u16 v3, v3, v5")
    a("v_lshrrev_b32 v4, 16, v3"); a("v_and_b32 v3, 0xffff, v3"); a("v_max_u32 v3, v3, v4")
    a("v_cvt_pk_bf16_f32 v%d, v%d, v%d" % (DT, DT, DT)); a("v_lshlrev_b32 v%d, 16, v%d" % (DT, DT))
    for sh in (1, 2, 4, 8): a("v_max_u32_dpp v3, v3, v3 row_shr:%d row_mask:0xf bank_mask:0xf" % sh)
    a("v_max_u32_dpp v3, v3, v3 row_bcast:15 row_mask:0xa bank_mask:0xf")
    a("v_max_u32_dpp v3, v3, v3 row_bcast:31 row_mask:0xc bank_mask:0xf")
    a("v_mul_f32 v%d, 0x%x, v%d" % (KA, LOG2E | 0x80000000, DT)); a("v_mul_f32 v%d, 0.15915494, v%d" % (KT, DT))
    a("v_readlane_b32 s6, v3, 63")
    a("s_lshr_b32 s6, s6, 7"); a("s_sub_u32 s%d, 136, s6" % S_S)
    a("s_mov_b32 m0, s%d" % S_KB); a("v_mov_b32 v3, 0x3c00")
    a("ds_write_addtid_b32 v3 offset:0")
    for k in range(12): a("v_mov_b32 v%d, 0" % (ACC + k))
    a("s_mov_b32 s77, 0"); a("s_mov_b32 s78, 0x41000000"); a("s_mov_b32 s79, 0x43000000")
    Lnp = a.newlabel("nopub")
    a.vmwait("UTS"); a("s_barrier")
    a("s_cmp_lg_u32 s%d, 7" % WAVE); a("s_cbranch_scc1 %s" % Lnp)
    a("s_and_b32 s6, s%d, 3" % S_GAM); a("s_lshl_b32 s6, s6, 6"); a("s_lshr_b32 s7, s%d, 2" % S_GAM); a("s_lshl_b32 s7, s7, 2")
    a("s_add_u32 s6, s6, s7"); a("s_add_u32 s6, s6, 4")
    G.atomic_ret(6, 3, 4, 7)
    a("s_cmp_lg_u32 s7, 31"); a("s_cbranch_scc1 %s" % Lnp)
    a("v_lshlrev_b32 v3, 7, v%d" % LANE); a("v_mov_b32 v4, 1"); a("s_lshl_b32 s6, s%d, 12" % S_GAM); a("s_add_u32 s6, s6, 65536")
    a("s_mov_b64 exec, 0xffffffff")
    a("buffer_atomic_add v4, v3, s[%d:%d], s6 offen sc1" % (SFL, SFL + 3))
    a("s_mov_b64 exec, -1")
    a.label(Lnp)
    a("s_setprio %d" % (0 if "bprio" not in G.opts else 1))

    def cmul_batch(lst):
        assert len(lst) <= len(TP)
        for (d, x, y), t in zip(lst, TP): a("v_pk_mul_f32 %s, %s, %s op_sel:[0,0] op_sel_hi:[0,1]" % (vr(t, 2), vr(x, 2), vr(y, 2)))
        for (d, x, y), t in zip(lst, TP): a("v_pk_fma_f32 %s, %s, %s, %s op_sel:[1,1,0] op_sel_hi:[1,0,1] neg_lo:[1,0,0]" % (vr(d, 2), vr(x, 2), vr(y, 2), vr(t, 2)))
    def cvt(h, x, conj=False): a("v_cvt_pk_f16_f32 v%d, v%d, %sv%d" % (h, x, "-" if conj else "", x + 1))
    def wr(reg, row): a("ds_write_addtid_b32 v%d offset:%d" % (reg, row * RS))
    def prods(lst, extra=()):
        extra = list(extra)
        n = len(lst)
        for k in range(n + 4):
            if k < n: a("v_pk_mul_f16 v%d, v%d, v%d op_sel:[0,0] op_sel_hi:[0,1]" % (PT[k % 8], lst[k][1], lst[k][2]))
            if 0 <= k - 2 < n:
                j = k - 2
                a("v_pk_fma_f16 v%d, v%d, v%d, v%d op_sel:[1,1,0] op_sel_hi:[1,0,1] neg_lo:[1,0,0]" % (PR[j % 8], lst[j][1], lst[j][2], PT[j % 8]))
            if 0 <= k - 4 < n: wr(PR[(k - 4) % 8], lst[k - 4][0])
            if extra: a(extra.pop(0))
        for x in extra: a(x)
    X0, X1, X2 = 16, 1, 17
    a.label("KG_loop")
    for r, d in ((LA, 3), (AI, 4), (CR, 5), (CI, 6)):
        a("v_lshlrev_b32 v%d, 16, v%d" % (d, r)); a("v_lshrrev_b32 v%d, 16, v%d" % (r, r))
    a("v_mul_f32 v3, s50, v3"); a("v_exp_f32 v3, v3")
    a("v_mul_f32 v4, v4, v%d" % KT)
    a("v_ldexp_f32 v%d, v5, s%d" % (s_[0], S_S)); a("v_ldexp_f32 v%d, v6, s%d" % (s_[0] + 1, S_S))
    a("v_cvt_pk_bf16_f32 v3, v3, v3"); a("v_lshlrev_b32 v3, 16, v3"); a("v_mul_f32 v3, v3, v%d" % KA)
    m = [TP[0], TP[0] + 1, TP[1]]; ph = [TP[1] + 1, TP[2], TP[2] + 1]
    a("v_mul_f32 v%d, s78, v4" % ph[1]); a("v_mul_f32 v%d, s79, v4" % ph[2])
    a("v_fract_f32 v%d, v4" % ph[0]); a("v_fract_f32 v%d, v%d" % (ph[1], ph[1])); a("v_fract_f32 v%d, v%d" % (ph[2], ph[2]))
    a("v_mul_f32 v%d, s78, v3" % m[1]); a("v_mul_f32 v%d, s79, v3" % m[2])
    W = [w0, w3, w7]
    for k in range(3): a("v_cos_f32 v%d, v%d" % (W[k], ph[k])); a("v_sin_f32 v%d, v%d" % (W[k] + 1, ph[k]))
    a("v_exp_f32 v%d, v3" % m[0]); a("v_exp_f32 v%d, v%d" % (m[1], m[1])); a("v_exp_f32 v%d, v%d" % (m[2], m[2]))
    cvt(hs[0], s_[0])
    for k in range(3): a("v_mul_f32 v%d, v%d, v%d" % (W[k], W[k], m[k])); a("v_mul_f32 v%d, v%d, v%d" % (W[k] + 1, W[k] + 1, m[k]))
    cmul_batch([(w4, w3, w3), (w8, w7, w7), (s_[1], s_[0], w0), (w1, w0, w0)])
    cvt(hw3, w3, True); cvt(hw7, w7); wr(hw3, 1)
    cmul_batch([(w5, w4, w4), (w9, w8, w8), (s_[2], s_[1], w0), (s_[3], s_[1], w1), (w2, w1, w1), (t3, w3, w4)])
    cvt(hw4, w4, True); cvt(hw8, w8); cvt(hs[1], s_[1]); wr(hw4, 2); wr(hs[1], X0 + 0)
    cmul_batch([(w6, w5, w5), (w10, w9, w9), (s_[4], s_[2], w1), (t7, w7, w8), (s_[5], s_[1], w2), (s_[6], s_[2], w2)])
    cvt(hw5, w5, True); cvt(ht3, t3, True); cvt(hs[2], s_[2]); cvt(hs[3], s_[3])
    wr(hw5, 4); wr(ht3, 3); wr(hs[2], X0 + 1); wr(hs[3], X0 + 2)
    cmul_batch([(t5, w5, w6), (s_[7], s_[3], w2), (s_[8], s_[4], w2), (S3a, s_[4], w9)])
    cvt(hw6, w6, True); cvt(ht7, t7); cvt(hs[4], s_[4]); cvt(hs[5], s_[5]); cvt(hs[6], s_[6])
    wr(hw6, 8); wr(hs[4], X0 + 3); wr(hs[5], X0 + 4); wr(hs[6], X0 + 5)
    cmul_batch([(S3b, s_[8], w9), (S4a, s_[8], w10)])
    cvt(ht5, t5, True); cvt(hs[7], s_[7]); cvt(hs[8], s_[8]); cvt(hS3a, S3a)
    wr(ht5, 12); wr(hs[7], X0 + 6); wr(hs[8], X0 + 7)
    cmul_batch([(S4b, S3b, w10)])
    cvt(hS3b, S3b); cvt(hS4a, S4a)
    lo = [None, hw3, hw4, ht3]; hi = [None, hw5, hw6, ht5]; M = [None, hw7, hw8, ht7]
    prods([(m0 + 4 * m1, lo[m0], hi[m1]) for m1 in (1, 2, 3) for m0 in (1, 2, 3)] + [(X0 + 8 + k, hs[k + 1], hw7) for k in range(8)],
          ["v_cvt_pk_f16_f32 v%d, v%d, v%d" % (hS4b, S4b, S4b + 1)])
    rd1 = []
    for ks in range(4):
        rd1.append("ds_read_b128 %s, v%d offset:%d" % (vr(YF + 4 * ks, 4), FY, ks * 64))
        rd1.append("ds_read_b128 %s, v%d offset:%d" % (vr(XF + 4 * ks, 4), FY, X0 * RS + ks * 64))
    for x in rd1: a(x)
    wr(hS3a, X1 + 8); wr(hS3b, X1 + 9); wr(hS4a, X2 + 0); wr(hS4b, X2 + 4); wr(hs[0], X2 + 8)
    p2 = ([(X1 + k, hs[2 * k + 2], hw8) for k in range(4)] + [(X1 + 4 + k, hs[2 * k + 2], ht7) for k in range(4)]
          + [(X1 + 8 + 2 * i, hS3a, M[i]) for i in (1, 2, 3)] + [(X1 + 9 + 2 * i, hS3b, M[i]) for i in (1, 2, 3)]
          + [(X2 + i, hS4a, M[i]) for i in (1, 2, 3)] + [(X2 + 4 + i, hS4b, M[i]) for i in (1, 2, 3)])
    prods(p2[:8])
    a("s_waitcnt lgkmcnt(8)")
    mf0 = ["v_mfma_f32_16x16x32_f16 %s, %s, %s, %s" % (vr(ACC, 4), vr(XF + 4 * ks, 4), vr(YF + 4 * ks, 4), vr(ACC, 4)) for ks in range(4)]
    prods(p2[8:], [mf0[0], "s_nop 0", mf0[1], "s_nop 0", mf0[2], "s_nop 0", mf0[3]])
    for ks in range(4):
        a("ds_read_b128 %s, v%d offset:%d" % (vr(XF + 4 * ks, 4), FY, X1 * RS + ks * 64))
        a("ds_read_b128 %s, v%d offset:%d" % (vr(XF2 + 4 * ks, 4), FX2, X2 * RS + ks * 64))
    for ks in range(4):
        a("s_waitcnt lgkmcnt(%d)" % (6 - 2 * ks))
        a("v_mfma_f32_16x16x32_f16 %s, %s, %s, %s" % (vr(ACC + 4, 4), vr(XF + 4 * ks, 4), vr(YF + 4 * ks, 4), vr(ACC + 4, 4)))
        a("v_mfma_f32_16x16x32_f16 %s, %s, %s, %s" % (vr(ACC + 8, 4), vr(XF2 + 4 * ks, 4), vr(YF + 4 * ks, 4), vr(ACC + 8, 4)))
    a("s_add_u32 s77, s77, 1"); a("s_cmp_lt_u32 s77, 2"); a("s_cbranch_scc1 KG_loop")
    G.stamp(2)
    a("s_lshl_b32 s%d, s%d, 14" % (S_KB, S_CH)); a("s_lshl_b32 s%d, s%d, 12" % (S_UB, S_CH)); a("s_add_u32 s%d, s%d, 65536" % (S_UB, S_UB))
    a("v_add_f32 v%d, v%d, v%d" % (DT, DT, DT)); a("s_sub_u32 s7, 0, s%d" % S_S)
    for k in range(12): a("v_mul_f32 v%d, v%d, v%d" % (ACC + k, ACC + k, DT))
    for k in range(12): a("v_ldexp_f32 v%d, v%d, s7" % (ACC + k, ACC + k))
    a("v_lshlrev_b32 v8, 4, v%d" % LANE); a("v_add_u32 v9, s%d, v8" % S_UB)
    Lp = a.newlabel("bw")
    a("s_cmp_lg_u32 s%d, 4" % WAVE); a("s_cbranch_scc1 %s" % Lp)
    G.poll_flag(3, 4, S_F0, 0)
    a.label(Lp)
    a("s_barrier")
    G.stamp(3)
    UR = 120
    a("s_lshl_b32 s6, s%d, 12" % S_D); a("s_lshl_b32 s7, s%d, 11" % S_HF); a("s_add_u32 s6, s6, s7")
    for k in range(2):
        a.vmop("buffer_load_dwordx4 %s, v8, s[%d:%d], s6 offen offset:%d %s" % (vr(UR + 4 * k, 4), SUT, SUT + 3, 1024 * k, G.HL), "U")
    L1 = a.newlabel("h1"); L2 = a.newlabel("h2")
    a("s_cmp_eq_u32 s%d, 0" % S_HF); a("s_cbranch_scc1 %s" % L1)
    for k in range(3): a("ds_write_b128 v9, %s offset:%d" % (vr(ACC + 4 * k, 4), 1024 * k))
    a("s_waitcnt lgkmcnt(0)")
    a.label(L1)
    a("s_barrier")
    a("s_cmp_lg_u32 s%d, 0" % S_HF); a("s_cbranch_scc1 %s" % L2)
    for k in range(3): a("ds_read_b128 %s, v9 offset:%d" % (vr(32 + 4 * k, 4), 1024 * k))
    a("v_cmp_le_u32 vcc, 2, v2"); a("v_mov_b32 v3, 0"); a("v_cndmask_b32 v3, v3, v%d, vcc" % DS)
    a("v_add_f32 v%d, v%d, v3" % (ACC + 8, ACC + 8))
    a("v_lshrrev_b32 v3, 1, v2"); a("v_lshlrev_b32 v3, 8, v3"); a("v_lshl_add_u32 v3, v1, 4, v3"); a("v_and_b32 v4, 1, v2"); a("v_lshl_add_u32 v3, v4, 3, v3")
    a("v_add_u32 v50, s%d, v3" % S_UB)
    a("v_lshlrev_b32 v3, 7, v2"); a("v_lshl_add_u32 v3, v1, 3, v3"); a("v_add_u32 v3, 528, v3"); a("v_add_u32 v4, 4, v3")
    a("v_lshlrev_b32 v5, 7, v2"); a("v_lshl_add_u32 v5, v1, 2, v5"); a("v_add_u32 v5, %d, v5" % (784 - 256)); a("v_add_u32 v6, 64, v5")
    a("v_cndmask_b32 v3, v3, v5, vcc"); a("v_cndmask_b32 v4, v4, v6, vcc")
    a("v_add_u32 v51, s%d, v3" % S_UB); a("v_add_u32 v52, s%d, v4" % S_UB)
    a("v_lshlrev_b32 v3, 7, v2"); a("v_lshl_add_u32 v3, v1, 1, v3"); a("v_add_u32 v3, 1040, v3")
    a("v_add_u32 v4, 1024, v3"); a("v_cndmask_b32 v3, v3, v4, vcc")
    a("v_cmp_eq_u32 vcc, 32, v%d" % LANE); a("v_mov_b32 v5, 14"); a("v_cndmask_b32 v4, v3, v5, vcc")
    a("v_add_u32 v3, s%d, v3" % S_UB); a("v_add_u32 v4, s%d, v4" % S_UB)
    a("s_waitcnt lgkmcnt(0)")
    for k in range(0, 12, 2): a("v_pk_add_f32 %s, %s, %s" % (vr(ACC + k, 2), vr(ACC + k, 2), vr(32 + k, 2)))
    C = 44
    for k in range(6): a("v_cvt_pk_bf16_f32 v%d, v%d, v%d" % (C + k, ACC + 2 * k, ACC + 2 * k + 1))
    a("ds_write_b64 v50, %s offset:16" % vr(C, 2))
    a("ds_write_b32 v51, v%d" % (C + 2)); a("ds_write_b32 v52, v%d" % (C + 3))
    a("ds_write_b16 v4, v%d" % (C + 4)); a("ds_write_b16_d16_hi v3, v%d offset:32" % (C + 4))
    a("ds_write_b16 v3, v%d offset:64" % (C + 5)); a("ds_write_b16_d16_hi v3, v%d offset:96" % (C + 5))
    a("s_waitcnt lgkmcnt(0)")
    a.label(L2)
    a("s_barrier")
    D = lambda k: 48 + 8 * k
    Rr = 32
    a("s_mov_b32 s6, 0xffff"); a("s_mov_b32 s7, 0x01000302"); a("s_mov_b32 s76, 0x03020302"); a("s_mov_b32 s77, 0x01000100")
    L3 = a.newlabel("e1"); L4 = a.newlabel("e2")
    a("s_cmp_lg_u32 s%d, 0" % S_HF); a("s_cbranch_scc1 %s" % L3)
    a("v_lshlrev_b32 v4, 3, v%d" % LANE); a("v_add_u32 v4, s%d, v4" % S_UB)
    a("v_lshlrev_b32 v5, 2, v%d" % LANE); a("v_add_u32 v5, s%d, v5" % S_UB)
    a("ds_read_b128 %s, v9 offset:16" % vr(Rr, 4)); a("ds_read_b32 v%d, v9 offset:12" % (Rr + 4))
    a("ds_read_b64 %s, v4 offset:272" % vr(Rr + 6, 2)); a("ds_read_b32 v%d, v4 offset:268" % (Rr + 5))
    a("ds_read_b32 v%d, v5 offset:784" % (Rr + 8)); a("ds_read_b32 v%d, v5 offset:780" % (Rr + 9))
    a("s_waitcnt lgkmcnt(0)")
    d = D(0)
    a("v_perm_b32 v%d, v%d, v%d, s7" % (d, Rr + 7, Rr + 7)); a("v_perm_b32 v%d, v%d, v%d, s76" % (d + 1, Rr + 6, Rr + 6))
    a("v_perm_b32 v%d, v%d, v%d, s7" % (d + 2, Rr + 6, Rr + 6)); a("v_perm_b32 v%d, v%d, v%d, s76" % (d + 3, Rr + 5, Rr + 5))
    a("s_mov_b64 exec, 0xffffffff")
    a("v_bfi_b32 v%d, s6, v%d, v%d" % (d, Rr + 3, Rr + 2)); a("v_bfi_b32 v%d, s6, v%d, v%d" % (d + 1, Rr + 2, Rr + 1))
    a("v_bfi_b32 v%d, s6, v%d, v%d" % (d + 2, Rr + 1, Rr)); a("v_bfi_b32 v%d, s6, v%d, v%d" % (d + 3, Rr, Rr + 4))
    a("s_mov_b64 exec, -1")
    d = D(1)
    a("v_perm_b32 v%d, v%d, v%d, s76" % (d, Rr + 8, Rr + 8)); a("v_perm_b32 v%d, v%d, v%d, s77" % (d + 1, Rr + 8, Rr + 8))
    a("v_bfi_b32 v%d, s6, v%d, v%d" % (d + 2, Rr + 8, Rr + 9)); a("v_perm_b32 v%d, v%d, v%d, s76" % (d + 3, Rr + 9, Rr + 9))
    a("s_branch %s" % L4)
    a.label(L3)
    a("v_lshlrev_b32 v6, 1, v%d" % LANE); a("v_add_u32 v6, s%d, v6" % S_UB)
    for p in range(2):
        a("ds_read_u16 v%d, v6 offset:%d" % (Rr + 10 + 2 * p, 1038 + 128 * p)); a("ds_read_u16 v%d, v6 offset:%d" % (Rr + 11 + 2 * p, 1040 + 128 * p))
    a("v_and_b32 v3, 1, v%d" % LANE); a("v_cmp_eq_u32 vcc, 1, v3")
    a("s_waitcnt lgkmcnt(0)")
    for p in range(2):
        d = D(p); V0, V1 = Rr + 10 + 2 * p, Rr + 11 + 2 * p
        a("v_lshl_or_b32 v%d, v%d, 16, v%d" % (d, V1, V1)); a("v_lshl_or_b32 v%d, v%d, 16, v%d" % (d + 2, V0, V0)); a("v_mov_b32 v%d, v%d" % (d + 3, d + 2))
        a("v_cndmask_b32 v%d, v%d, v%d, vcc" % (V0, V0, V1)); a("v_lshl_or_b32 v%d, v%d, 16, v%d" % (d + 1, V0, V1))
    a.label(L4)
    a("v_sub_u32 v3, 1008, v8")
    a("s_sub_u32 s6, 1, s%d" % S_HF); a("s_lshl_b32 s6, s6, 11"); a("s_add_u32 s6, s6, s%d" % S_KB)
    for sg in range(4):
        a("v_xor_b32 v4, %d, v3" % (sg << 6)); a("v_add_u32 v%d, s6, v4" % (Rr + sg))
    for k in range(2): a("ds_write_b128 v%d, %s offset:%d" % (Rr, vr(D(k), 4), 1024 * (1 - k)))
    a("s_waitcnt lgkmcnt(0)"); a("s_barrier")
    for k in range(2): a("ds_read_b64 %s, v%d offset:%d" % (vr(D(k) + 4, 2), Rr, 1024 * (1 - k) + 16))
    a("s_lshl_b32 s6, s%d, 11" % S_HF); a("v_add_u32 v9, s6, v9")
    a.vmwait("U")
    for k in range(2): a("ds_write_b128 v9, %s offset:%d" % (vr(UR + 4 * k, 4), 1024 * k))
    a("s_sub_u32 s6, 1, s%d" % S_HF); a("s_mov_b32 s7, 0")
    a("s_waitcnt lgkmcnt(2)")
    a("s_mov_b64 exec, s[6:7]"); a("v_mov_b32 v%d, 0" % (D(0) + 4)); a("v_mov_b32 v%d, 0" % (D(0) + 5)); a("s_mov_b64 exec, -1")
    E = 64
    for k in range(2):
        d = D(k); e = E + 12 * k
        for q in range(4): a("v_alignbit_b32 v%d, v%d, v%d, 16" % (e + q, d + q + 1, d + q))
        a("ds_write_b128 v%d, %s offset:%d" % (Rr + 1, vr(e, 4), 4096 + 1024 * (1 - k)))
        for q in range(4): a("v_mov_b32 v%d, v%d" % (e + 4 + q, d + 1 + q))
        a("ds_write_b128 v%d, %s offset:%d" % (Rr + 2, vr(e + 4, 4), 8192 + 1024 * (1 - k)))
        for q in range(4): a("v_alignbit_b32 v%d, v%d, v%d, 16" % (e + 8 + q, d + q + 2, d + q + 1))
        a("ds_write_b128 v%d, %s offset:%d" % (Rr + 3, vr(e + 8, 4), 12288 + 1024 * (1 - k)))
    AA, BA, CA, AB, BB = 112, 120, 96, 32, 64
    a("v_lshrrev_b32 v3, 2, v1"); a("v_and_b32 v4, 3, v1"); a("v_sub_u32 v4, 3, v4")
    a("v_lshlrev_b32 v3, 3, v3"); a("v_lshlrev_b32 v5, 4, v2"); a("v_sub_u32 v3, v5, v3")
    a("s_sub_u32 s6, 1, s%d" % S_HF); a("s_lshl_b32 s6, s6, 8"); a("s_add_u32 s6, s6, s%d" % S_KB)
    a("v_lshlrev_b32 v5, 6, v4"); a("v_lshlrev_b32 v4, 12, v4"); a("v_add_u32 v4, s6, v4")
    for mm in range(4):
        for wh in range(2):
            a("v_add_u32 v6, %d, v3" % (216 - 64 * mm + 8 * wh)); a("v_xor_b32 v6, v6, v5"); a("v_add_u32 v%d, v6, v4" % (AA + 2 * mm + wh))
    a("s_lshl_b32 s7, s%d, 8" % S_HF)
    a("v_lshlrev_b32 v3, 5, v1"); a("v_lshl_add_u32 v3, v2, 4, v3"); a("v_subrev_u32 v10, s7, v3")
    a("s_sub_u32 s6, s%d, 288" % S_UB); a("v_add_u32 v11, s6, v10"); a("v_mov_b32 v12, 0")
    a("s_cmp_eq_u32 s%d, 0" % S_HF); a("s_cselect_b32 s77, 0x00ff0000, 0"); a("s_cselect_b32 s79, 0x0fff000f, 0"); a("s_mov_b32 s76, 0"); a("s_mov_b32 s78, 0")
    a("s_waitcnt lgkmcnt(0)"); a("s_barrier")
    G.stamp(4)
    Llo = a.newlabel("conv_lo"); Lout = a.newlabel("conv_out")
    a("s_and_b32 s6, s%d, 1" % S_J); a("s_cmp_eq_u32 s6, 1"); a("s_cbranch_scc1 %s" % Llo)
    def conv(ts):
        n = max(ts) + 1
        def rdA(mm, s):
            off = 512 * (7 - s)
            return ["ds_read_b64 %s, v%d offset:%d" % (vr(AB + 4 * s, 2), AA + 2 * mm, off), "ds_read_b64 %s, v%d offset:%d" % (vr(AB + 4 * s + 2, 2), AA + 2 * mm + 1, off)]
        def rdB(mm, q): return ["ds_read_b128 %s, v11 offset:%d" % (vr(BB + 4 * q, 4), 512 * q - 64 * mm + 256)]
        lst = [(ti, s, t - s) for ti, t in enumerate(ts) for s in range(t + 1)]
        lst.sort(key=lambda z: (z[1], -z[2]))
        lastA = {}; lastB = {}
        for k, (ti, s, q) in enumerate(lst): lastA[s] = k; lastB[q] = k
        for s in range(n):
            for x in rdA(0, s) + rdB(0, s): a(x)
        for mm in range(4):
            a("v_cmp_gt_i32 vcc, %d, v10" % (32 + 64 * mm))
            a("s_waitcnt lgkmcnt(0)")
            for k in range(4): a("v_cndmask_b32 v%d, v%d, v12, vcc" % (BB + k, BB + k))
            if mm == 0:
                a("s_mov_b64 exec, s[76:77]"); a("v_mov_b32 v%d, 0" % AB); a("v_mov_b32 v%d, 0" % (AB + 1))
                a("s_mov_b64 exec, s[78:79]"); a("v_mov_b32 v%d, 0" % (AB + 2)); a("v_mov_b32 v%d, 0" % (AB + 3))
                a("s_mov_b64 exec, -1")
            seen = set(); pend = []
            for k, (ti, s, q) in enumerate(lst):
                c = vr(CA + 4 * ti, 4)
                first = mm == 0 and ti not in seen; seen.add(ti)
                a("v_mfma_f32_16x16x32_bf16 %s, %s, %s, %s" % (c, vr(AB + 4 * s, 4), vr(BB + 4 * q, 4), "0" if first else c))
                for x in pend: a(x)
                pend = []
                if mm + 1 < 4:
                    if lastA[s] == k: pend += rdA(mm + 1, s)
                    if lastB[q] == k: pend += rdB(mm + 1, q)
            if pend: a("s_nop 3")
            for x in pend: a(x)
    conv([7, 6, 1, 0])
    a("s_mov_b32 s76, 0x00010607")
    a("s_branch %s" % Lout)
    a.label(Llo)
    conv([5, 4, 3, 2])
    a("s_mov_b32 s76, 0x02030405")
    a.label(Lout); a.fence(8)
    G.stamp(5)
    a("s_barrier")
    L5 = a.newlabel("x1"); L6 = a.newlabel("x2")
    a("s_lshl_b32 s6, s%d, 11" % WAVE); a("v_add_u32 v3, s6, v8")
    a("s_xor_b32 s6, s%d, 4" % WAVE); a("s_lshl_b32 s6, s6, 11"); a("v_add_u32 v4, s6, v8")
    a("s_cmp_eq_u32 s%d, 0" % S_HF); a("s_cbranch_scc1 %s" % L5)
    for k in range(2): a("ds_write_b128 v3, %s offset:%d" % (vr(CA + 4 * k, 4), 1024 * k))
    a("s_nop 3")
    for k in range(8): a("v_mov_b32 v%d, v%d" % (CA + k, CA + 8 + k))
    a("s_branch %s" % L6)
    a.label(L5)
    for k in range(2): a("ds_write_b128 v3, %s offset:%d" % (vr(CA + 8 + 4 * k, 4), 1024 * k))
    a.label(L6)
    a("s_waitcnt lgkmcnt(0)"); a("s_barrier")
    for k in range(2): a("ds_read_b128 %s, v4 offset:%d" % (vr(32 + 4 * k, 4), 1024 * k))
    a("v_lshlrev_b32 v3, 5, v1"); a("v_lshl_add_u32 v3, v2, 3, v3")
    a("s_mul_i32 s6, s%d, 2112" % S_CH); a("s_lshl_b32 s7, s%d, 10" % S_HF); a("s_add_u32 s6, s6, s7"); a("s_add_u32 s6, s6, 32768"); a("v_add_u32 v3, s6, v3")
    a("v_bfe_u32 v5, v%d, 2, 2" % LANE); a("v_mul_u32_u24 v5, 2112, v5"); a("v_lshl_add_u32 v5, v2, 5, v5")
    a("v_and_b32 v4, 3, v%d" % LANE); a("v_lshl_add_u32 v5, v4, 3, v5"); a("s_lshl_b32 s6, s%d, 8" % WAVE); a("s_add_u32 s6, s6, 32768"); a("v_add_u32 v5, s6, v5")
    a("s_lshr_b32 s6, s%d, 1" % WAVE); a("s_lshl_b32 s6, s6, 3"); a("s_lshr_b32 s6, s76, s6"); a("s_and_b32 s6, s6, 0xff"); a("s_lshl_b32 s6, s6, 1")
    a("s_and_b32 s7, s%d, 1" % WAVE); a("s_add_u32 s6, s6, s7"); a("s_mul_i32 s6, s6, %d" % (128 * 1792))
    a("s_lshl_b32 s7, s%d, 3" % S_CQ); a("s_add_u32 s6, s6, s7"); a("s_add_u32 s6, s6, 896"); a("s_add_u32 s7, s6, %d" % (64 * 1792))
    a("v_mul_u32_u24 v4, 1792, v%d" % LANE)
    a("s_waitcnt lgkmcnt(0)")
    for k in range(0, 8, 2): a("v_pk_add_f32 %s, %s, %s" % (vr(CA + k, 2), vr(CA + k, 2), vr(32 + k, 2)))
    for k in range(4): a("v_cvt_pk_bf16_f32 v%d, v%d, v%d" % (40 + k, CA + 2 * k, CA + 2 * k + 1))
    for k in range(2): a("ds_write_b64 v3, %s offset:%d" % (vr(40 + 2 * k, 2), 512 * k))
    a("s_waitcnt lgkmcnt(0)"); a("s_barrier")
    for k in range(2): a("ds_read_b64_tr_b16 %s, v5 offset:%d" % (vr(44 + 2 * k, 2), 128 * k))
    for k in range(2):
        a("s_waitcnt lgkmcnt(%d)" % (1 - k))
        a.vmop("buffer_store_dwordx2 %s, v4, s[%d:%d], s%d offen" % (vr(44 + 2 * k, 2), SOUT, SOUT + 3, 6 + k), "S")
    G.stamp(6)
    G.dump_stamps('B')
```

```python
import sys
from asmlib import *

KNAME = "concat_heads__linear_attn_block__ssm_conv_s4d__prompt_kernel"
NWG = 464
LDS = 81920
WS_PQ, WS_UT, WS_KV, WS_FL, WS_TS = 0, 0x200000, 0x400000, 0x480000, 0x500000
LOG2E = 0x3fb8aa3b
EPS = 0x358637bd
POLL_CAP = 1 << 15

XCD, SLOT, WAVE = 3, 4, 5
P_X, P_W, P_WO, P_U, P_LA, P_AI, P_CR, P_CI, P_DT, P_DS, P_OUT, P_DBG, P_WS = 16, 18, 20, 22, 24, 26, 28, 30, 32, 34, 36, 38, 40
S_F0, S_F1, S_FA = 42, 43, 100
SX, SW, SPQ, SKV, SOUT, SDBG, SWO, SUT, SU, SFL = 44, 48, 52, 56, 60, 64, 68, 52, 44, 72
TS0 = 80
LANE = 7

class Gen:
    def __init__(self, stamps=False, opts=()):
        self.a = Asm()
        self.opts = set(opts)
        self.stamps = stamps
        self.SLEEP = 2
        self.HL = "nt" if "nt" in self.opts else ("" if "plain" in self.opts else "sc1")

    def srd(self, d, p, nbytes, off=0):
        a = self.a
        if off:
            a("s_add_u32 s%d, s%d, 0x%x" % (d, p, off)); a("s_addc_u32 s%d, s%d, 0" % (d + 1, p + 1))
        else:
            a("s_mov_b32 s%d, s%d" % (d, p)); a("s_mov_b32 s%d, s%d" % (d + 1, p + 1))
        a("s_mov_b32 s%d, 0x%x" % (d + 2, nbytes)); a("s_mov_b32 s%d, 0x00020000" % (d + 3))

    def stamp(self, k):
        if not self.stamps: return
        self.a("s_memrealtime s[%d:%d]" % (TS0 + 2 * k, TS0 + 2 * k + 1))
        self.a("s_waitcnt lgkmcnt(0)")

    def dump_stamps(self):
        if not self.stamps: return
        a = self.a
        a.vmwait_all()
        self.stamp(9)
        self.srd(76, P_WS, 0x100000, WS_TS)
        a("s_lshl_b32 s6, s2, 3"); a("s_add_u32 s6, s6, s%d" % WAVE); a("s_lshl_b32 s6, s6, 6")
        a("v_mov_b32 v0, s6")
        a("s_mov_b64 exec, 1")
        for k in range(10):
            a("v_mov_b32 v1, s%d" % (TS0 + 2 * k))
            a("buffer_store_dword v1, v0, s[76:79], 0 offen offset:%d" % (4 * k))
        a("s_mov_b64 exec, -1")

    def atomic_ret(self, s_off, va, vb, s_dst):
        a = self.a
        a("v_mov_b32 v%d, s%d" % (va, s_off)); a("v_mov_b32 v%d, 1" % vb)
        a("s_mov_b64 exec, 1")
        a("buffer_atomic_add v%d, v%d, s[%d:%d], 0 offen sc0 sc1" % (vb, va, SDBG, SDBG + 3))
        a("s_mov_b64 exec, -1")
        a("s_waitcnt vmcnt(0)")
        a("v_readfirstlane_b32 s%d, v%d" % (s_dst, vb))

    def poll_flag(self, va, vv, s_old, off=0):
        a = self.a
        L = a.newlabel("poll"); D = a.newlabel("polld")
        a("s_mov_b32 s6, 0"); a("v_mov_b32 v%d, s%d" % (va, S_FA))
        a("s_mov_b64 exec, 1")
        a.label(L)
        a("buffer_load_dword v%d, v%d, s[%d:%d], 0 offen offset:%d sc1" % (vv, va, SFL, SFL + 3, off))
        a("s_add_u32 s6, s6, 1")
        a("s_waitcnt vmcnt(0)")
        a("v_cmp_ne_u32 vcc, s%d, v%d" % (s_old, vv))
        a("s_cbranch_vccnz %s" % D)
        a("s_sleep %d" % self.SLEEP)
        a("s_cmp_lt_u32 s6, 0x%x" % POLL_CAP)
        a("s_cbranch_scc1 %s" % L)
        a.label(D)
        a("s_mov_b64 exec, -1")

    def phi(self, base, n, tmp):
        a = self.a
        for k in range(0, n, 2): a("v_pk_mul_f32 %s, %s, s[14:15]" % (vr(tmp + k, 2), vr(base + k, 2)))
        for k in range(n):
            a("v_exp_f32_e64 v%d, v%d clamp" % (tmp + k, tmp + k))
            a("v_max_f32 v%d, s13, v%d" % (base + k, base + k))
        for k in range(0, n, 2): a("v_pk_add_f32 %s, %s, %s" % (vr(base + k, 2), vr(base + k, 2), vr(tmp + k, 2)))

    def gemm(self, isq):
        a = self.a
        XA, XW, XR0, XR1, FLV, DA, FA = 1, 2, 3, 4, 12, 6, 8
        FS = 32 if isq else 24
        F0, F1 = 16, 16 + FS
        ACC = 16 + 2 * FS
        XS = 96
        U = 7 if isq else 14
        RING = 4; XBASE = 32768; XRING = 3
        S_WB, S_T, S_RB, S_HP, S_M = 9, 10, 11, 12, 8
        S_X = 76
        Xs = lambda c, q: XS + ((c & 3) * 2 + q) * 4
        if isq:
            a("s_sub_u32 s10, s%d, 44" % SLOT)
            a("s_cmp_ge_u32 s10, 7"); a("s_cselect_b32 s6, 1, 0")
            a("s_mul_i32 s7, s6, 7"); a("s_sub_u32 s%d, s10, s7" % S_HP)
            a("s_lshl_b32 s%d, s%d, 7" % (S_WB, S_HP))
        else:
            a("s_sub_u32 s7, s%d, 28" % SLOT); a("s_lshr_b32 s6, s7, 3"); a("s_and_b32 s%d, s7, 7" % S_HP)
            a("s_mul_i32 s%d, s%d, 112" % (S_WB, S_HP)); a("s_add_u32 s%d, s%d, 896" % (S_WB, S_WB))
        a("s_lshl_b32 s%d, s%d, 1" % (S_RB, XCD)); a("s_add_u32 s%d, s%d, s6" % (S_RB, S_RB))
        a("s_lshl_b32 s6, s%d, 3" % S_RB); a("s_add_u32 s6, s6, s%d" % WAVE); a("s_mul_i32 s%d, s6, 14336" % S_X)
        a("s_add_u32 s%d, s%d, 7168" % (S_X + 1, S_X))
        a("s_lshl_b32 s%d, s2, 7" % S_FA)
        t = F0; I, Gq = F0 + 8, F0 + 9
        a("v_and_b32 v%d, 15, v%d" % (I, LANE)); a("v_lshrrev_b32 v%d, 4, v%d" % (Gq, LANE))
        a("v_lshrrev_b32 v%d, 3, v%d" % (t, LANE)); a("v_and_b32 v%d, 7, v%d" % (t + 1, LANE))
        a("v_xor_b32 v%d, v%d, v%d" % (t + 1, t + 1, t))
        a("v_mul_u32_u24 v%d, 896, v%d" % (t + 2, t)); a("v_lshl_add_u32 v%d, v%d, 4, v%d" % (XA, t + 1, t + 2))
        a("s_lshl_b32 s78, s%d, 11" % WAVE); a("s_add_u32 s78, s78, %d" % XBASE)
        a("s_and_b32 s6, s%d, 2" % WAVE); a("s_lshl_b32 s6, s6, 1")
        a("v_or_b32 v%d, s6, v%d" % (t + 4, Gq))
        a("v_lshrrev_b32 v%d, 1, v%d" % (t + 5, I)); a("v_xor_b32 v%d, v%d, v%d" % (t + 5, t + 5, t + 4))
        a("v_and_b32 v%d, 1, v%d" % (t + 6, I)); a("v_lshl_or_b32 v%d, v%d, 1, v%d" % (t + 5, t + 5, t + 6))
        a("v_lshrrev_b32 v%d, 3, v%d" % (t + 6, t + 5))
        a("v_and_b32 v%d, 7, v%d" % (t + 5, t + 5))
        if not isq: a("v_min_u32 v%d, 6, v%d" % (t + 5, t + 5))
        a("s_lshl_b32 s6, s%d, 2" % WAVE); a("v_add_u32 v%d, s6, v%d" % (t + 7, Gq)); a("v_mul_u32_u24 v%d, 2688, v%d" % (t + 7, t + 7))
        a("v_mul_u32_u24 v%d, %d, v%d" % (t + 6, 32 * 2688 if isq else 896, t + 6))
        a("v_lshl_add_u32 v%d, v%d, 4, v%d" % (t + 7, t + 5, t + 7)); a("v_add_u32 v%d, v%d, v%d" % (DA, t + 7, t + 6))
        a("s_lshl_b32 s%d, s%d, 10" % (S_M, WAVE))
        a("v_mov_b32 v0, s%d" % S_FA)
        a("s_waitcnt lgkmcnt(0)")
        self.srd(SX, P_X, 1835008); self.srd(SW, P_W, 1204224)
        self.stamp(0)
        def dma(u):
            if "nodma" in self.opts: return
            a("s_add_u32 m0, s%d, %d" % (S_M, (u % RING) * 8192))
            a("s_add_u32 s%d, s%d, %d" % (S_T, S_WB, ((64 if isq else 32) * u) * 2688))
            a.vmop("buffer_load_dwordx4 v%d, s[%d:%d], s%d offen lds" % (DA, SW, SW + 3, S_T), ("W", u))
        def xload(c):
            if "noxl" in self.opts: return
            for q in range(2):
                a("s_add_u32 m0, s78, %d" % ((c % XRING) * 16384 + q * 1024))
                a("s_add_u32 s%d, s%d, %d" % (S_T, S_X + q, c * 128))
                a.vmop("buffer_load_dwordx4 v%d, s[%d:%d], s%d offen lds" % (XA, SX, SX + 3, S_T), ("X", c))
        self.srd(SKV, P_WS, 65536, WS_KV)
        if isq:
            L = a.newlabel("nz")
            a("s_cmp_lg_u32 s%d, 0" % S_HP); a("s_cbranch_scc1 %s" % L)
            for k in range(2): a("v_mov_b32 v%d, 0" % (F1 + k))
            a("s_lshl_b32 s6, s%d, 12" % S_RB); a("s_lshl_b32 s7, s%d, 9" % WAVE); a("s_add_u32 s6, s6, s7")
            a("v_lshlrev_b32 v5, 3, v%d" % LANE)
            a("buffer_store_dwordx2 v[%d:%d], v5, s[%d:%d], s6 offen sc1" % (F1, F1 + 1, SKV, SKV + 3))
            a.label(L)
        xload(0); dma(0); a("s_barrier")
        if isq:
            xload(1); dma(1); a("s_barrier"); xload(2); dma(2); dma(3)
        else:
            dma(1); xload(1); a("s_barrier"); dma(2); dma(3); xload(2)
        self.srd(SFL, P_WS, 131072, WS_FL)
        a.vmop("buffer_load_dwordx2 %s, v0, s[%d:%d], 0 offen sc1" % (vr(FLV, 2), SFL, SFL + 3), "FL")
        self.srd(SDBG, P_DBG, 256); self.srd(SPQ, P_WS, 1835008, WS_PQ)
        a("s_lshr_b32 s6, s%d, 1" % WAVE); a("s_lshl_b32 s6, s6, 12"); a("s_add_u32 s6, s6, %d" % XBASE)
        a("v_and_b32 v%d, 7, v%d" % (t, I)); a("v_xor_b32 v%d, v%d, v%d" % (t, t, Gq)); a("v_lshlrev_b32 v%d, 4, v%d" % (t, t)); a("v_lshl_add_u32 v%d, v%d, 7, v%d" % (t, I, t))
        a("v_xor_b32 v%d, 64, v%d" % (t + 1, t)); a("v_add_u32 v%d, s6, v%d" % (XR0, t)); a("v_add_u32 v%d, s6, v%d" % (XR1, t + 1))
        a("v_bfe_u32 v%d, v%d, 2, 2" % (t, LANE)); a("v_and_b32 v%d, 3, v%d" % (t + 1, LANE))
        a("v_and_b32 v%d, 1, v%d" % (t + 2, Gq)); a("v_lshl_or_b32 v%d, v%d, 2, v%d" % (t + 2, t + 2, t))
        a("v_lshl_add_u32 v%d, v%d, 3, v%d" % (t + 3, Gq, t)); a("v_lshlrev_b32 v%d, 8, v%d" % (t + 3, t + 3))
        a("s_and_b32 s7, s%d, 1" % WAVE)
        for tt in range(4):
            if isq:
                a("s_lshl_b32 s6, s7, 6"); a("s_add_u32 s6, s6, %d" % (128 * (tt >> 1) + 32 * (tt & 1))); sh = 3
            else:
                a("s_mul_i32 s6, s7, %d" % (48 if tt < 2 else 56)); a("s_add_u32 s6, s6, %d" % (32 * tt if tt < 2 else 128 + 32 * (tt - 2))); sh = 3
            a("v_lshlrev_b32 v%d, %d, v%d" % (t + 4, sh, t + 1)); a("v_add_u32 v%d, s6, v%d" % (t + 4, t + 4))
            a("v_lshrrev_b32 v%d, 5, v%d" % (t + 5, t + 4)); a("v_xor_b32 v%d, v%d, v%d" % (t + 5, t + 5, t + 2))
            a("v_and_b32 v%d, 31, v%d" % (t + 4, t + 4)); a("v_lshl_or_b32 v%d, v%d, 5, v%d" % (t + 4, t + 5, t + 4))
            a("v_add_u32 v%d, v%d, v%d" % (FA + tt, t + 4, t + 3))
        a("s_mov_b32 s14, 0x%x" % LOG2E); a("s_mov_b32 s15, 0x%x" % LOG2E); a("s_mov_b32 s13, 0x%x" % EPS)
        def xwrite(c):
            if "noxw" in self.opts: return
            for q in range(2): a("ds_write_b128 v%d, %s offset:%d" % (XW, vr(Xs(c, q), 4), (c & 1) * 16384 + q * 1024))
        def freads_l(u):
            out = []
            if "nofr" in self.opts: return out
            Fb = F1 if u & 1 else F0
            c = chunk(u)
            for rt in range(2):
                for kk in ((0, 1) if isq else (u & 1,)):
                    d = Fb + 16 + ((rt * 2 + kk) * 4 if isq else rt * 4)
                    out.append("ds_read_b128 %s, v%d offset:%d" % (vr(d, 4), XR1 if kk else XR0, (c % XRING) * 16384 + rt * 2048))
            for tt in range(4):
                for hh in range(2):
                    out.append("ds_read_b64_tr_b16 %s, v%d offset:%d" % (vr(Fb + 4 * tt + 2 * hh, 2), FA + tt, (u % RING) * 8192 + hh * 1024))
            return out
        def freads(u):
            for x in freads_l(u): a(x)
        def newchunk(u): return isq or (u & 1) == 0
        def chunk(u): return u if isq else u >> 1
        def mfmas_l(u):
            out = []
            if "nomf" in self.opts: return out
            Fb = F1 if u & 1 else F0
            for tt in range(4):
                for rt in range(2):
                    if isq:
                        acc = ACC + (rt * 2 + (tt & 1)) * 4; x = Fb + 16 + (rt * 2 + (tt >> 1)) * 4; first = (u == 0 and tt < 2)
                        out.append("v_mfma_f32_16x16x32_bf16 %s, %s, %s, %s" % (vr(acc, 4), vr(Fb + 4 * tt, 4), vr(x, 4), "0" if first else vr(acc, 4)))
                    else:
                        acc = ACC + (tt * 2 + rt) * 4; x = Fb + 16 + rt * 4; first = (u == 0)
                        out.append("v_mfma_f32_16x16x32_bf16 %s, %s, %s, %s" % (vr(acc, 4), vr(x, 4), vr(Fb + 4 * tt, 4), "0" if first else vr(acc, 4)))
            return out
        if "twice" in self.opts:
            a("s_mov_b32 s78, 0"); Ltw = a.newlabel("tw"); a.label(Ltw)
        a.vmwait(("W", 0), ("X", 0)); a("s_barrier")
        self.stamp(1)
        if isq:
            L = a.newlabel("nzs")
            a("s_or_b32 s6, s%d, s%d" % (S_HP, WAVE)); a("s_cmp_lg_u32 s6, 0"); a("s_cbranch_scc1 %s" % L)
            a("v_mov_b32 v0, 32"); a("v_mov_b32 v5, 1"); a("s_mov_b64 exec, 1")
            a("buffer_atomic_add v5, v0, s[%d:%d], 0 offen sc1" % (SDBG, SDBG + 3)); a("s_mov_b64 exec, -1")
            a.label(L)
        freads(0)
        for u in range(U):
            if u + 1 < U:
                M = mfmas_l(u); Rd = freads_l(u + 1)
                a("s_waitcnt lgkmcnt(0)")
                for x in M[:2]: a(x)
                a.vmwait(("W", u + 1), ("X", chunk(u + 1)))
                a("s_barrier")
                if u + RING < U: dma(u + RING)
                if newchunk(u + 1) and chunk(u) + XRING < 7: xload(chunk(u) + XRING)
                for k in range(2, 8):
                    for x in Rd[2 * (k - 2):2 * (k - 2) + 2]: a(x)
                    if k < len(M): a(M[k])
                if u == (4 if isq else 10):
                    a.vmwait("FL")
                    Lsn = a.newlabel("snap")
                    a("s_cmp_lg_u32 s%d, 0" % WAVE); a("s_cbranch_scc1 %s" % Lsn)
                    a("s_lshl_b32 s6, s%d, 1" % XCD); a("s_cmp_ge_u32 s%d, 44" % SLOT); a("s_addc_u32 s6, s6, 0")
                    a("s_and_b32 s7, s6, 3"); a("s_lshl_b32 s7, s7, 6"); a("s_lshr_b32 s6, s6, 2"); a("s_lshl_b32 s6, s6, 2"); a("s_add_u32 s6, s6, s7"); a("s_add_u32 s6, s6, 16")
                    a("v_mov_b32 v0, 32"); a("v_writelane_b32 v0, 64, 1"); a("v_writelane_b32 v0, s6, 2")
                    a("s_mov_b64 exec, 7")
                    a("buffer_load_dword v5, v0, s[%d:%d], 0 offen sc1" % (SDBG, SDBG + 3))
                    a("s_mov_b64 exec, -1")
                    a.label(Lsn)
            else:
                a("s_waitcnt lgkmcnt(0)")
                for x in mfmas_l(u): a(x)
        if "twice" in self.opts:
            a("s_add_u32 s78, s78, 1"); a("s_cmp_lt_u32 s78, 2"); a("s_cbranch_scc1 %s" % Ltw)
        a("v_readfirstlane_b32 s%d, v%d" % (S_F0, FLV)); a("v_readfirstlane_b32 s%d, v%d" % (S_F1, FLV + 1))
        a.vmwait_all()
        a("v_readlane_b32 s6, v5, 1"); a("v_readlane_b32 s7, v5, 2")
        a("s_cmp_ge_u32 s6, 128"); a("s_cselect_b32 s6, 1, 0"); a("s_cmp_ge_u32 s7, 7"); a("s_cselect_b32 s7, 2, 0"); a("s_or_b32 s101, s6, s7")
        self.stamp(2)
        T = XS
        if isq:
            self.phi(ACC, 16, T)
            a("s_lshl_b32 s6, s%d, 2" % S_RB); a("s_lshr_b32 s7, s%d, 1" % WAVE); a("s_add_u32 s6, s6, s7"); a("s_mul_i32 s6, s6, 28672")
            a("s_lshl_b32 s7, s%d, 11" % S_HP); a("s_add_u32 s6, s6, s7")
            a("s_and_b32 s7, s%d, 1" % WAVE); a("s_lshl_b32 s7, s7, 10"); a("s_add_u32 s6, s6, s7"); a("s_add_u32 s7, s6, 14336")
            a("v_lshrrev_b32 v1, 4, v%d" % LANE); a("v_and_b32 v2, 1, v1"); a("v_lshrrev_b32 v1, 1, v1"); a("v_lshl_or_b32 v1, v2, 1, v1")
            a("v_and_b32 v2, 15, v%d" % LANE); a("v_lshlrev_b32 v2, 4, v2"); a("v_lshl_add_u32 v0, v1, 8, v2")
            for rt in range(2):
                d = T + 16 + rt * 4
                for k in range(4): a("v_cvt_pk_bf16_f32 v%d, v%d, v%d" % (d + k, ACC + rt * 8 + 2 * k, ACC + rt * 8 + 2 * k + 1))
            for rt in range(2):
                d = T + 16 + rt * 4
                a("v_permlane16_swap_b32 v%d, v%d" % (d, d + 2)); a("v_permlane16_swap_b32 v%d, v%d" % (d + 1, d + 3))
                a.vmop("buffer_store_dwordx4 %s, v0, s[%d:%d], s%d offen sc1" % (vr(d, 4), SPQ, SPQ + 3, 6 + rt), "S")
            self.stamp(3)
            a.vmwait_all(); a("s_barrier")
            L = a.newlabel("arrq")
            a("s_cmp_lg_u32 s%d, 7" % WAVE); a("s_cbranch_scc1 %s" % L)
            a("s_and_b32 s6, s%d, 3" % S_RB); a("s_lshl_b32 s6, s6, 6"); a("s_lshr_b32 s7, s%d, 2" % S_RB); a("s_lshl_b32 s7, s7, 2")
            a("s_add_u32 s6, s6, s7"); a("s_add_u32 s6, s6, 16")
            self.atomic_ret(6, 1, 2, 7)
            a("s_cmp_lg_u32 s7, 6"); a("s_cbranch_scc1 %s" % L)
            a("s_and_b32 s6, s%d, 1" % S_RB); a("s_lshl_b32 s6, s6, 4"); a("s_add_u32 s6, s6, 28"); a("s_lshl_b32 s6, s6, 3"); a("s_add_u32 s6, s6, s%d" % XCD); a("s_lshl_b32 s6, s6, 7")
            a("v_lshlrev_b32 v1, 10, v%d" % LANE); a("v_mov_b32 v2, 1"); a("s_mov_b64 exec, 0x3fff")
            a("buffer_atomic_add v2, v1, s[%d:%d], s6 offen offset:4 sc1" % (SFL, SFL + 3))
            a("s_mov_b64 exec, -1")
            a.label(L)
        else:
            self.phi(ACC, 16, T)
            PK = T + 16
            for k in range(16): a("v_cvt_pk_bf16_f32 v%d, v%d, v%d" % (PK + k, ACC + 2 * k, ACC + 2 * k + 1))
            a("s_and_b32 s7, s%d, 1" % WAVE); a("s_cmp_eq_u32 s7, 1")
            a("s_cselect_b32 s6, 0x000f000f, 0"); a("s_mov_b32 s7, s6"); a("s_mov_b64 exec, s[6:7]")
            for k in range(4): a("v_mov_b32 v%d, 0" % (PK + k))
            a("s_cselect_b32 s6, 0, 0xf000f000"); a("s_mov_b32 s7, s6"); a("s_mov_b64 exec, s[6:7]")
            for k in range(4): a("v_mov_b32 v%d, 0" % (PK + 4 + k))
            a("s_mov_b32 s6, 0xe000e000"); a("s_mov_b32 s7, s6"); a("s_mov_b64 exec, s[6:7]")
            for k in range(4): a("v_mov_b32 v%d, 0" % (PK + 12 + k))
            a("s_mov_b32 s6, 0x10001000"); a("s_mov_b32 s7, s6"); a("s_mov_b64 exec, s[6:7]"); a("s_mov_b32 s6, 0x3f803f80")
            for k in range(4): a("v_mov_b32 v%d, s6" % (PK + 12 + k))
            a("s_mov_b64 exec, -1")
            KT = F0
            for je in range(2):
                for jd in range(2):
                    a("v_mfma_f32_16x16x32_bf16 %s, %s, %s, 0" % (vr(KT + 4 * (2 * je + jd), 4), vr(PK + 8 + 4 * je, 4), vr(PK + 4 * jd, 4)))
            RB = XBASE + 16384
            a("s_lshl_b32 s6, s%d, 12" % WAVE); a("s_add_u32 s6, s6, %d" % RB); a("v_lshl_add_u32 v0, v%d, 4, s6" % LANE)
            a("v_bfe_u32 v1, v%d, 2, 2" % LANE); a("v_lshrrev_b32 v2, 4, v%d" % LANE); a("v_mul_u32_u24 v2, 7, v2")
            a("s_and_b32 s6, s%d, 2" % WAVE); a("s_lshl_b32 s6, s6, 1"); a("v_add_u32 v1, s6, v1"); a("v_add_u32 v2, v2, v1")
            a("v_cmp_eq_u32 vcc, 7, v1"); a("v_mov_b32 v3, 28"); a("v_cndmask_b32 v2, v2, v3, vcc")
            for tau in range(4): a("ds_write_b128 v0, %s offset:%d" % (vr(KT + 4 * tau, 4), tau * 1024))
            a("v_lshrrev_b32 v1, 4, v2"); a("v_lshlrev_b32 v1, 11, v1"); a("v_bfe_u32 v3, v2, 2, 2"); a("v_lshl_add_u32 v1, v3, 8, v1")
            a("v_and_b32 v3, 3, v2"); a("v_lshl_add_u32 v1, v3, 2, v1"); a("v_and_b32 v3, 3, v%d" % LANE); a("v_lshl_add_u32 v1, v3, 4, v1")
            a("s_lshr_b32 s6, s%d, 2" % WAVE); a("s_lshl_b32 s6, s6, 12"); a("s_and_b32 s7, s%d, 1" % WAVE); a("s_lshl_b32 s7, s7, 6")
            a("s_add_u32 s6, s6, s7"); a("s_add_u32 s6, s6, %d" % RB); a("v_add_u32 v1, s6, v1")
            Lok = a.newlabel("zok"); Lz = a.newlabel("zp")
            a("s_cmp_lg_u32 s%d, 0" % WAVE); a("s_cbranch_scc1 %s" % Lok)
            a("s_mov_b32 s6, 0"); a("v_mov_b32 v0, 32")
            a.label(Lz)
            a("v_readfirstlane_b32 s7, v5"); a("s_cmp_ge_u32 s7, 16"); a("s_cbranch_scc1 %s" % Lok)
            a("s_sleep 8")
            a("buffer_load_dword v5, v0, s[%d:%d], 0 offen sc1" % (SDBG, SDBG + 3))
            a("s_add_u32 s6, s6, 1"); a("s_waitcnt vmcnt(0)"); a("s_cmp_lt_u32 s6, 0x%x" % POLL_CAP); a("s_cbranch_scc1 %s" % Lz)
            a.label(Lok)
            a("s_waitcnt lgkmcnt(0)"); a("s_barrier")
            R = F1
            for rg in range(4):
                for gp in range(4):
                    a("ds_read_b32 v%d, v1 offset:%d" % (R + rg * 4 + gp, rg * 8192 + (gp >> 1) * 1024 + (gp & 1) * 128))
            a("s_lshl_b32 s6, s%d, 3" % S_HP); a("s_add_u32 s6, s6, s%d" % WAVE); a("s_lshl_b32 s6, s6, 10")
            a("v_lshlrev_b32 v3, 2, v%d" % LANE)
            a("s_waitcnt lgkmcnt(0)")
            for k in (0, 2):
                a("v_pk_add_f32 %s, %s, %s" % (vr(R + k, 2), vr(R + k, 2), vr(R + 4 + k, 2))); a("v_pk_add_f32 %s, %s, %s" % (vr(R + 8 + k, 2), vr(R + 8 + k, 2), vr(R + 12 + k, 2)))
            for k in (0, 2): a("v_pk_add_f32 %s, %s, %s" % (vr(R + k, 2), vr(R + k, 2), vr(R + 8 + k, 2)))
            for k in range(4):
                a.vmop("buffer_atomic_add_f32 v%d, v3, s[%d:%d], s6 offen offset:%d" % (R + k, SKV, SKV + 3, k * 256), "S")
            self.stamp(3)
            a.vmwait_all(); a("s_barrier")
            L = a.newlabel("arr")
            a("s_cmp_lg_u32 s%d, 7" % WAVE); a("s_cbranch_scc1 %s" % L)
            a("s_mov_b32 s6, 64")
            self.atomic_ret(6, 1, 2, 7)
            a("s_cmp_lg_u32 s7, 127"); a("s_cbranch_scc1 %s" % L)
            a("v_lshlrev_b32 v1, 7, v%d" % LANE); a("v_mov_b32 v2, 1")
            for k in range(4):
                a("s_mov_b32 s6, %d" % (224 * 128 + k * 8192))
                if k == 3: a("s_mov_b32 s10, -1"); a("s_mov_b32 s11, 0xffff"); a("s_mov_b64 exec, s[10:11]")
                a("buffer_atomic_add v2, v1, s[%d:%d], s6 offen sc1" % (SFL, SFL + 3))
            a("s_mov_b64 exec, -1")
            a.label(L)

    def a2(self):
        a = self.a
        PQ, WR, KVF, ACC, TA = 16, 48, 80, 112, 8
        S_R0, S_WN = 8, 9
        KVL = 57344
        Lend = "A_end"
        self.stamp(4)
        a("s_sub_u32 s10, s%d, 28" % SLOT)
        a("s_and_b32 s6, s10, 30"); a("s_cmp_eq_u32 s6, 14"); a("s_cbranch_scc1 %s" % Lend)
        if "noa2" in self.opts: a("s_branch %s" % Lend)
        a("s_cmp_ge_u32 s10, 16"); a("s_cselect_b32 s6, 2, 0"); a("s_sub_u32 s10, s10, s6")
        a("s_mul_i32 s6, s10, 9363"); a("s_lshr_b32 s6, s6, 16")
        a("s_mul_i32 s7, s6, 7"); a("s_sub_u32 s%d, s10, s7" % S_WN)
        a("s_lshl_b32 s7, s%d, 2" % XCD); a("s_add_u32 s%d, s6, s7" % S_R0)
        self.srd(SWO, P_WO, 401408); self.srd(SOUT, P_OUT, 3670016)
        a("v_and_b32 v1, 15, v%d" % LANE); a("v_lshrrev_b32 v2, 4, v%d" % LANE)
        a("v_lshrrev_b32 v3, 1, v1"); a("v_xor_b32 v3, v3, v2")
        a("v_lshrrev_b32 v4, 2, v3"); a("v_lshl_add_u32 v4, v2, 1, v4")
        a("v_and_b32 v3, 3, v3"); a("v_and_b32 v5, 1, v1"); a("v_lshl_or_b32 v3, v3, 1, v5")
        a("s_mul_i32 s6, s%d, 56" % WAVE); a("v_add_u32 v4, s6, v4"); a("v_mul_u32_u24 v4, 896, v4")
        a("v_lshl_add_u32 v4, v3, 4, v4")
        a("s_mul_i32 s13, s%d, 7168" % WAVE); a("s_lshl_b32 s10, s%d, 7" % S_WN)
        for n in range(7):
            a("s_add_u32 m0, s13, %d" % (n * 1024)); a("s_add_u32 s6, s10, %d" % (n * 8 * 896))
            a.vmop("buffer_load_dwordx4 v4, s[%d:%d], s6 offen lds" % (SWO, SWO + 3), "WO")
        a("v_bfe_u32 v3, v%d, 2, 2" % LANE); a("v_and_b32 v4, 3, v%d" % LANE)
        a("v_mul_u32_u24 v5, 7, v2")
        a("s_lshr_b32 s6, s%d, 2" % WAVE); a("s_mul_i32 s6, s6, 28672")
        a("v_lshlrev_b32 v4, 3, v4"); a("v_add_u32 v4, s6, v4")
        for ph in range(7):
            a("v_add_u32 v0, %d, v3" % (4 * ph))
            a("v_mul_u32_u24 v6, 37, v0"); a("v_lshrrev_b32 v6, 8, v6"); a("v_mul_u32_u24 v6, 21, v6")
            a("v_add3_u32 v0, v0, v6, v5")
            a("v_and_b32 v6, 1, v0"); a("v_lshlrev_b32 v6, 2, v6")
            a("v_lshrrev_b32 v0, 1, v0"); a("v_and_b32 v15, 3, v0"); a("v_xor_b32 v6, v6, v15")
            a("v_lshlrev_b32 v6, 5, v6"); a("v_lshl_add_u32 v6, v0, 8, v6")
            a("v_add_u32 v%d, v6, v4" % (TA + ph))
        a("v_lshlrev_b32 v15, 4, v%d" % LANE)
        L = a.newlabel("pw")
        a("s_cmp_lg_u32 s%d, 0" % WAVE); a("s_cbranch_scc1 %s" % L)
        a("s_bitcmp1_b32 s101, 1"); a("s_cbranch_scc1 %s" % L)
        self.poll_flag(3, 4, S_F1, 4)
        a.label(L)
        a.vmwait("WO"); a("s_barrier")
        a("s_and_b32 s6, s%d, 3" % WAVE); a("s_lshl_b32 s7, s%d, 2" % S_R0); a("s_add_u32 s6, s6, s7"); a("s_mul_i32 s6, s6, 14336")
        a("s_lshr_b32 s7, s%d, 2" % WAVE); a("s_mul_i32 s7, s7, 7168"); a("s_add_u32 s6, s6, s7"); a("s_add_u32 s7, s6, 3584")
        g0 = [0, 3, 7, 10]
        for hl in range(8):
            a.vmop("buffer_load_dwordx4 %s, v15, s[%d:%d], s%d offen offset:%d %s" % (vr(PQ + hl * 4, 4), SPQ, SPQ + 3, 6 + (hl >> 2), 256 * g0[hl & 3], self.HL), "PQ")
        def wo_read(dst, tile, ph):
            if tile: a("v_xor_b32 v0, %d, v%d" % (32 * tile, TA + ph % 7)); ad = 0
            else: ad = TA + ph % 7
            a("ds_read_b64_tr_b16 %s, v%d offset:%d" % (vr(dst, 2), ad, 14336 * (ph // 7)))
        for ks in range(2):
            for tile in range(4):
                for h2 in range(2): wo_read(WR + (ks * 4 + tile) * 4 + 2 * h2, tile, 2 * ks + h2)
        a("s_lshl_b32 s12, s%d, 13" % WAVE)
        a("s_lshl_b32 s6, s%d, 12" % WAVE); a("s_add_u32 s6, s6, %d" % KVL)
        a("s_cmp_eq_u32 s%d, 6" % WAVE); a("s_cselect_b32 s6, 0, s6"); a("s_cmp_eq_u32 s%d, 7" % WAVE); a("s_cselect_b32 s6, 28672, s6")
        a("v_add_u32 v5, s6, v15")
        a("s_lshr_b32 s7, s%d, 2" % WAVE); a("s_cmp_eq_u32 s7, 1")
        a("s_mov_b32 s6, %d" % KVL); a("s_cselect_b32 s6, %d, s6" % (KVL + 16384)); a("v_add_u32 v3, s6, v15")
        a("s_cselect_b32 s6, 0, %d" % (KVL + 8192)); a("v_add_u32 v4, s6, v15")
        a("s_mov_b32 s6, 28672"); a("s_cselect_b32 s6, s6, %d" % (KVL + 12288)); a("v_add_u32 v6, s6, v15")
        a("s_mov_b32 s10, 0"); a("s_mov_b32 s11, 0xffff0000"); a("s_mov_b32 s13, 0x%x" % EPS)
        a.vmwait("PQ")
        a("s_mov_b64 exec, s[10:11]")
        for hl in range(0, 8, 2): a("v_mov_b32 v%d, 0" % (PQ + hl * 4 + 2)); a("v_mov_b32 v%d, 0" % (PQ + hl * 4 + 3))
        a("s_mov_b64 exec, 0xffff")
        for hl in range(1, 8, 2): a("v_mov_b32 v%d, 0" % (PQ + hl * 4)); a("v_mov_b32 v%d, 0" % (PQ + hl * 4 + 1))
        a("s_mov_b64 exec, -1")
        a("s_waitcnt lgkmcnt(0)")
        self.stamp(5)
        L = a.newlabel("aw")
        a("s_cmp_lg_u32 s%d, 0" % WAVE); a("s_cbranch_scc1 %s" % L)
        a("s_bitcmp1_b32 s101, 0"); a("s_cbranch_scc1 %s" % L)
        self.poll_flag(1, 2, S_F0, 0)
        a.label(L)
        a("s_barrier")
        self.stamp(6)
        a("s_add_u32 s6, s12, 4096")
        for k in range(8):
            a.vmop("buffer_load_dwordx4 %s, v15, s[%d:%d], s%d offen offset:%d %s" % (vr(KVF + 4 * k, 4), SKV, SKV + 3, 12 if k < 4 else 6, 1024 * (k & 3), self.HL), ("KV", k >> 1))
        for fr in range(4):
            a.vmwait(("KV", fr))
            for k in range(4): a("v_cvt_pk_bf16_f32 v%d, v%d, v%d" % (KVF + 8 * fr + k, KVF + 8 * fr + 2 * k, KVF + 8 * fr + 2 * k + 1))
            a("ds_write_b128 v5, %s offset:%d" % (vr(KVF + 8 * fr, 4), fr * 1024))
        a("s_waitcnt lgkmcnt(0)"); a("s_barrier")
        def kv_read(hp):
            b = KVF + 16 * (hp & 1)
            ad, off = [(3, 0), (3, 4096), (4, 0), (6, 0)][hp]
            for k in range(4): a("ds_read_b128 %s, v%d offset:%d" % (vr(b + 4 * k, 4), ad, off + 1024 * k))
        kv_read(0)
        N = ACC
        Oreg = lambda k: PQ + k
        for hp in range(4):
            if hp + 1 < 4: kv_read(hp + 1)
            a("s_waitcnt lgkmcnt(%d)" % (4 if hp + 1 < 4 else 0))
            b = KVF + 16 * (hp & 1)
            for h2 in range(2):
                for j in (1, 0):
                    a("v_mfma_f32_16x16x32_bf16 %s, %s, %s, 0" % (vr(N + h2 * 8 + 4 * j, 4), vr(b + 8 * h2 + 4 * j, 4), vr(PQ + (2 * hp + h2) * 4, 4)))
            for h2 in range(2): a("v_add_f32 v%d, s13, v%d" % (h2, N + h2 * 8 + 7))
            for h2 in range(2): a("v_rcp_f32 v%d, v%d" % (h2, h2))
            for h2 in range(2):
                if "smul" in self.opts:
                    for t in range(7): a("v_mul_f32 v%d, v%d, v%d" % (N + h2 * 8 + t, N + h2 * 8 + t, h2))
                else:
                    for t in range(0, 8, 2):
                        a("v_pk_mul_f32 %s, v[0:1], %s op_sel:[%d,0] op_sel_hi:[%d,1]" % (vr(N + h2 * 8 + t, 2), vr(N + h2 * 8 + t, 2), h2, h2))
            reg = lambda f: N + (f // 7) * 8 + f % 7
            for k in range(7): a("v_cvt_pk_bf16_f32 v%d, v%d, v%d" % (Oreg(7 * hp + k), reg(2 * k), reg(2 * k + 1)))
        def w_read(ks):
            b = KVF + 16 * (ks & 1)
            for tile in range(4):
                for h2 in range(2): wo_read(b + 4 * tile + 2 * h2, tile, 2 * ks + h2)
        w_read(2); w_read(3)
        for ks in range(7):
            if ks >= 2: a("s_waitcnt lgkmcnt(%d)" % (8 if ks + 1 < 7 else 0))
            for tile in range(4):
                c = vr(ACC + 4 * tile, 4)
                w = WR + (ks * 4 + tile) * 4 if ks < 2 else KVF + 16 * (ks & 1) + 4 * tile
                a("v_mfma_f32_16x16x32_bf16 %s, %s, %s, %s" % (c, vr(w, 4), vr(Oreg(4 * ks), 4), "0" if ks == 0 else c))
            if ks >= 2 and ks + 2 < 7: w_read(ks + 2)
        a("s_barrier")
        a("s_lshl_b32 s6, s%d, 12" % WAVE); a("v_add_u32 v5, s6, v15")
        for tile in range(4): a("ds_write_b128 v5, %s offset:%d" % (vr(ACC + 4 * tile, 4), tile * 1024))
        a("v_lshrrev_b32 v3, 3, v%d" % LANE); a("v_and_b32 v4, 7, v%d" % LANE)
        a("v_lshlrev_b32 v5, 9, v4"); a("v_lshl_add_u32 v5, v3, 4, v5")
        a("s_and_b32 s6, s%d, 3" % WAVE); a("s_lshl_b32 s7, s6, 12"); a("s_lshr_b32 s10, s%d, 2" % WAVE); a("s_lshl_b32 s11, s10, 7"); a("s_add_u32 s7, s7, s11")
        a("v_add_u32 v5, s7, v5")
        a("v_mul_u32_u24 v3, 1792, v3"); a("v_lshl_add_u32 v3, v4, 4, v3")
        a("s_lshl_b32 s7, s%d, 2" % S_R0); a("s_add_u32 s6, s6, s7"); a("s_lshl_b32 s6, s6, 1"); a("s_add_u32 s6, s6, s10"); a("s_mul_i32 s6, s6, %d" % (8 * 1792))
        a("s_lshl_b32 s7, s%d, 7" % S_WN); a("s_add_u32 s6, s6, s7")
        a("s_waitcnt lgkmcnt(0)"); a("s_barrier")
        self.stamp(7)
        R = KVF
        for sw in range(2):
            for gg in range(2): a("ds_read_b128 %s, v5 offset:%d" % (vr(R + sw * 8 + gg * 4, 4), sw * 16384 + gg * 256))
        a("s_waitcnt lgkmcnt(0)")
        for k in range(0, 8, 2): a("v_pk_add_f32 %s, %s, %s" % (vr(R + k, 2), vr(R + k, 2), vr(R + 8 + k, 2)))
        for k in range(4): a("v_cvt_pk_bf16_f32 v%d, v%d, v%d" % (R + 8 + k, R + 2 * k, R + 2 * k + 1))
        a.vmop("buffer_store_dwordx4 %s, v3, s[%d:%d], s6 offen" % (vr(R + 8, 4), SOUT, SOUT + 3), "S")
        self.stamp(8)
        a.label(Lend)
        self.dump_stamps()
        a("s_endpgm")

    def build(self):
        a = self.a
        a.raw(open("concat_heads__linear_attn_block__ssm_conv_s4d__prompt.s.ref").read().split("; Override launch")[0].rstrip())
        a.raw("; @launch grid=(%d,1,1) block=(512,1,1) lds=%d" % (NWG, LDS))
        a.raw('.amdgcn_target "amdgcn-amd-amdhsa--gfx950"\n.text\n.globl %s\n.p2align 8\n.type %s,@function\n%s:' % (KNAME, KNAME, KNAME))
        a("s_cmp_ge_u32 s2, %d" % NWG); a("s_cbranch_scc1 K_exit")
        a("s_load_dwordx16 s[16:31], s[0:1], 0"); a("s_load_dwordx8 s[32:39], s[0:1], 64"); a("s_load_dwordx2 s[40:41], s[0:1], 96")
        a("s_and_b32 s%d, s2, 7" % XCD); a("s_lshr_b32 s%d, s2, 3" % SLOT)
        a("v_lshrrev_b32 v1, 6, v0"); a("v_and_b32 v7, 63, v0")
        a("v_readfirstlane_b32 s%d, v1" % WAVE)
        a("s_nop 3")
        Bl = "K_exit" if "onlya" in self.opts else "B_entry"
        a("s_cmp_lt_u32 s%d, 28" % SLOT); a("s_cbranch_scc1 %s" % Bl)
        if "onlyb" in self.opts: a("s_branch K_exit")
        a("s_setprio 2")
        a("s_cmp_ge_u32 s%d, 44" % SLOT); a("s_cbranch_scc1 Q_entry")
        self.gemm(False)
        a("s_branch A2_entry")
        a.label("Q_entry"); a.vm = []
        self.gemm(True)
        a.label("A2_entry"); a.fence(8); a.vm = []
        self.a2()
        a.label("B_entry"); a.vm = []
        if "onlya" not in self.opts:
            from gen_b import gen_b
            gen_b(self)
        a.label("K_exit")
        a("s_endpgm")
        a.raw('''.section .rodata,"a"
.p2align 6
.amdhsa_kernel %s
  .amdhsa_next_free_vgpr 128
  .amdhsa_next_free_sgpr 102
  .amdhsa_accum_offset 128
  .amdhsa_group_segment_fixed_size 0
  .amdhsa_kernarg_size 104
  .amdhsa_user_sgpr_count 2
  .amdhsa_user_sgpr_kernarg_segment_ptr 1
  .amdhsa_system_sgpr_workgroup_id_x 1
.end_amdhsa_kernel''' % KNAME)
        return a.text()

if __name__ == "__main__":
    stamps = "--stamps" in sys.argv
    out = [x for x in sys.argv[1:] if not x.startswith("--")][0]
    open(out, "w").write(Gen(stamps, [x[2:] for x in sys.argv[1:] if x.startswith("--")]).build())
```

```python
import sys
from asmlib import *

KNAME = "concat_heads__linear_attn_block__ssm_conv_s4d__prompt_kernel"
NWG = 464
LDS = 81920
WS_PQ, WS_UT, WS_KV, WS_FL, WS_TS = 0, 0x200000, 0x400000, 0x480000, 0x500000
LOG2E = 0x3fb8aa3b
EPS = 0x358637bd
POLL_CAP = 1 << 15

XCD, SLOT, WAVE = 3, 4, 5
P_X, P_W, P_WO, P_U, P_LA, P_AI, P_CR, P_CI, P_DT, P_DS, P_OUT, P_DBG, P_WS = 16, 18, 20, 22, 24, 26, 28, 30, 32, 34, 36, 38, 40
S_F0, S_F1, S_FA = 42, 43, 100
SX, SW, SPQ, SKV, SOUT, SDBG, SWO, SUT, SU, SFL = 44, 48, 52, 56, 60, 64, 68, 52, 44, 72
TS0 = 80
LANE = 7

class Gen:
    def __init__(self, stamps=False, opts=()):
        self.a = Asm()
        self.opts = set(opts)
        self.stamps = stamps
        self.SLEEP = 2
        self.HL = "nt" if "nt" in self.opts else ("" if "plain" in self.opts else "sc1")

    def srd(self, d, p, nbytes, off=0):
        a = self.a
        if off:
            a("s_add_u32 s%d, s%d, 0x%x" % (d, p, off)); a("s_addc_u32 s%d, s%d, 0" % (d + 1, p + 1))
        else:
            a("s_mov_b32 s%d, s%d" % (d, p)); a("s_mov_b32 s%d, s%d" % (d + 1, p + 1))
        a("s_mov_b32 s%d, 0x%x" % (d + 2, nbytes)); a("s_mov_b32 s%d, 0x00020000" % (d + 3))

    def stamp(self, k):
        if not self.stamps: return
        self.a("s_memrealtime s[%d:%d]" % (TS0 + 2 * k, TS0 + 2 * k + 1))
        self.a("s_waitcnt lgkmcnt(0)")

    def dump_stamps(self, role='A'):
        if not self.stamps: return
        a = self.a
        a.vmwait_all()
        self.stamp(9)
        if "hstamps" in self.opts:
            L = a.newlabel("hs")
            a("s_cmp_lg_u32 s%d, 0" % WAVE); a("s_cbranch_scc1 %s" % L)
            wg, pairs, base = (288, [(1, 2), (3, 4), (5, 6), (7, 8), (9, 9)], [36, 40, 44, 48, 52]) if role == "A" else (32, [(1, 2), (3, 4), (5, 9)], [56, 60, 12])
            a("s_cmp_lg_u32 s2, %d" % wg); a("s_cbranch_scc1 %s" % L)
            a("s_mov_b64 exec, 1")
            for (k1, k2), off in zip(pairs, base):
                a("s_sub_u32 s6, s%d, s%d" % (TS0 + 2 * k1, TS0)); a("s_sub_u32 s7, s%d, s%d" % (TS0 + 2 * k2, TS0))
                a("s_mul_i32 s7, s7, 10000"); a("s_add_u32 s6, s6, s7"); a("v_mov_b32 v1, s6"); a("v_mov_b32 v0, %d" % off)
                a("buffer_store_dword v1, v0, s[%d:%d], 0 offen" % (SDBG, SDBG + 3))
            a("s_mov_b64 exec, -1")
            a.label(L)
            return
        self.srd(76, P_WS, 0x100000, WS_TS)
        a("s_lshl_b32 s6, s2, 3"); a("s_add_u32 s6, s6, s%d" % WAVE); a("s_lshl_b32 s6, s6, 6")
        a("v_mov_b32 v0, s6")
        a("s_mov_b64 exec, 1")
        for k in range(10):
            a("v_mov_b32 v1, s%d" % (TS0 + 2 * k))
            a("buffer_store_dword v1, v0, s[76:79], 0 offen offset:%d" % (4 * k))
        a("s_mov_b64 exec, -1")

    def atomic_ret(self, s_off, va, vb, s_dst):
        a = self.a
        a("v_mov_b32 v%d, s%d" % (va, s_off)); a("v_mov_b32 v%d, 1" % vb)
        a("s_mov_b64 exec, 1")
        a("buffer_atomic_add v%d, v%d, s[%d:%d], 0 offen sc0 sc1" % (vb, va, SDBG, SDBG + 3))
        a("s_mov_b64 exec, -1")
        a("s_waitcnt vmcnt(0)")
        a("v_readfirstlane_b32 s%d, v%d" % (s_dst, vb))

    def poll_flag(self, va, vv, s_old, off=0):
        a = self.a
        L = a.newlabel("poll"); D = a.newlabel("polld")
        a("s_mov_b32 s6, 0"); a("v_mov_b32 v%d, s%d" % (va, S_FA))
        a("s_mov_b64 exec, 1")
        a.label(L)
        a("buffer_load_dword v%d, v%d, s[%d:%d], 0 offen offset:%d sc1" % (vv, va, SFL, SFL + 3, off))
        a("s_add_u32 s6, s6, 1")
        a("s_waitcnt vmcnt(0)")
        a("v_cmp_ne_u32 vcc, s%d, v%d" % (s_old, vv))
        a("s_cbranch_vccnz %s" % D)
        a("s_sleep %d" % self.SLEEP)
        a("s_cmp_lt_u32 s6, 0x%x" % POLL_CAP)
        a("s_cbranch_scc1 %s" % L)
        a.label(D)
        a("s_mov_b64 exec, -1")

    def phi(self, base, n, tmp):
        a = self.a
        for k in range(0, n, 2): a("v_pk_mul_f32 %s, %s, s[14:15]" % (vr(tmp + k, 2), vr(base + k, 2)))
        for k in range(n):
            a("v_exp_f32_e64 v%d, v%d clamp" % (tmp + k, tmp + k))
            a("v_max_f32 v%d, s13, v%d" % (base + k, base + k))
        for k in range(0, n, 2): a("v_pk_add_f32 %s, %s, %s" % (vr(base + k, 2), vr(base + k, 2), vr(tmp + k, 2)))

    def gemm(self, isq):
        a = self.a
        XA, XW, XR0, XR1, FLV, DA, FA = 1, 2, 3, 4, 12, 6, 8
        FS = 32 if isq else 24
        F0, F1 = 16, 16 + FS
        ACC = 16 + 2 * FS
        XS = 96
        U = 7 if isq else 14
        RING = 4; XBASE = 32768; XRING = 3
        S_WB, S_T, S_RB, S_HP, S_M = 9, 10, 11, 12, 8
        S_X = 76
        Xs = lambda c, q: XS + ((c & 3) * 2 + q) * 4
        if isq:
            a("s_sub_u32 s10, s%d, 44" % SLOT)
            a("s_cmp_ge_u32 s10, 7"); a("s_cselect_b32 s6, 1, 0")
            a("s_mul_i32 s7, s6, 7"); a("s_sub_u32 s%d, s10, s7" % S_HP)
            a("s_lshl_b32 s%d, s%d, 7" % (S_WB, S_HP))
        else:
            a("s_sub_u32 s7, s%d, 28" % SLOT); a("s_lshr_b32 s6, s7, 3"); a("s_and_b32 s%d, s7, 7" % S_HP)
            a("s_mul_i32 s%d, s%d, 112" % (S_WB, S_HP)); a("s_add_u32 s%d, s%d, 896" % (S_WB, S_WB))
        a("s_lshl_b32 s%d, s%d, 1" % (S_RB, XCD)); a("s_add_u32 s%d, s%d, s6" % (S_RB, S_RB))
        a("s_lshl_b32 s6, s%d, 3" % S_RB); a("s_add_u32 s6, s6, s%d" % WAVE); a("s_mul_i32 s%d, s6, 14336" % S_X)
        a("s_add_u32 s%d, s%d, 7168" % (S_X + 1, S_X))
        a("s_lshl_b32 s%d, s2, 7" % S_FA)
        t = F0; I, Gq = F0 + 8, F0 + 9
        a("v_and_b32 v%d, 15, v%d" % (I, LANE)); a("v_lshrrev_b32 v%d, 4, v%d" % (Gq, LANE))
        a("v_lshrrev_b32 v%d, 3, v%d" % (t, LANE)); a("v_and_b32 v%d, 7, v%d" % (t + 1, LANE))
        a("v_xor_b32 v%d, v%d, v%d" % (t + 1, t + 1, t))
        a("v_mul_u32_u24 v%d, 896, v%d" % (t + 2, t)); a("v_lshl_add_u32 v%d, v%d, 4, v%d" % (XA, t + 1, t + 2))
        a("s_lshl_b32 s78, s%d, 11" % WAVE); a("s_add_u32 s78, s78, %d" % XBASE)
        a("s_and_b32 s6, s%d, 2" % WAVE); a("s_lshl_b32 s6, s6, 1")
        a("v_or_b32 v%d, s6, v%d" % (t + 4, Gq))
        a("v_lshrrev_b32 v%d, 1, v%d" % (t + 5, I)); a("v_xor_b32 v%d, v%d, v%d" % (t + 5, t + 5, t + 4))
        a("v_and_b32 v%d, 1, v%d" % (t + 6, I)); a("v_lshl_or_b32 v%d, v%d, 1, v%d" % (t + 5, t + 5, t + 6))
        a("v_lshrrev_b32 v%d, 3, v%d" % (t + 6, t + 5))
        a("v_and_b32 v%d, 7, v%d" % (t + 5, t + 5))
        if not isq: a("v_min_u32 v%d, 6, v%d" % (t + 5, t + 5))
        a("s_lshl_b32 s6, s%d, 2" % WAVE); a("v_add_u32 v%d, s6, v%d" % (t + 7, Gq)); a("v_mul_u32_u24 v%d, 2688, v%d" % (t + 7, t + 7))
        a("v_mul_u32_u24 v%d, %d, v%d" % (t + 6, 32 * 2688 if isq else 896, t + 6))
        a("v_lshl_add_u32 v%d, v%d, 4, v%d" % (t + 7, t + 5, t + 7)); a("v_add_u32 v%d, v%d, v%d" % (DA, t + 7, t + 6))
        a("s_lshl_b32 s%d, s%d, 10" % (S_M, WAVE))
        a("v_mov_b32 v0, s%d" % S_FA)
        a("s_waitcnt lgkmcnt(0)")
        self.srd(SX, P_X, 1835008); self.srd(SW, P_W, 1204224)
        self.stamp(0)
        def dma(u):
            if "nodma" in self.opts: return
            a("s_add_u32 m0, s%d, %d" % (S_M, (u % RING) * 8192))
            a("s_add_u32 s%d, s%d, %d" % (S_T, S_WB, ((64 if isq else 32) * u) * 2688))
            a.vmop("buffer_load_dwordx4 v%d, s[%d:%d], s%d offen lds" % (DA, SW, SW + 3, S_T), ("W", u))
        def xload(c):
            if "noxl" in self.opts: return
            for q in range(2):
                a("s_add_u32 m0, s78, %d" % ((c % XRING) * 16384 + q * 1024))
                a("s_add_u32 s%d, s%d, %d" % (S_T, S_X + q, c * 128))
                a.vmop("buffer_load_dwordx4 v%d, s[%d:%d], s%d offen lds" % (XA, SX, SX + 3, S_T), ("X", c))
        self.srd(SKV, P_WS, 65536, WS_KV)
        if isq:
            L = a.newlabel("nz")
            a("s_cmp_lg_u32 s%d, 0" % S_HP); a("s_cbranch_scc1 %s" % L)
            for k in range(2): a("v_mov_b32 v%d, 0" % (F1 + k))
            a("s_lshl_b32 s6, s%d, 12" % S_RB); a("s_lshl_b32 s7, s%d, 9" % WAVE); a("s_add_u32 s6, s6, s7")
            a("v_lshlrev_b32 v5, 3, v%d" % LANE)
            a("buffer_store_dwordx2 v[%d:%d], v5, s[%d:%d], s6 offen sc1" % (F1, F1 + 1, SKV, SKV + 3))
            a.label(L)
        xload(0); dma(0); a("s_barrier")
        if isq:
            xload(1); dma(1); a("s_barrier"); xload(2); dma(2); dma(3)
        else:
            dma(1); xload(1); a("s_barrier"); dma(2); dma(3); xload(2)
        self.srd(SFL, P_WS, 131072, WS_FL)
        a.vmop("buffer_load_dwordx2 %s, v0, s[%d:%d], 0 offen sc1" % (vr(FLV, 2), SFL, SFL + 3), "FL")
        self.srd(SDBG, P_DBG, 256); self.srd(SPQ, P_WS, 1835008, WS_PQ)
        a("s_lshr_b32 s6, s%d, 1" % WAVE); a("s_lshl_b32 s6, s6, 12"); a("s_add_u32 s6, s6, %d" % XBASE)
        a("v_and_b32 v%d, 7, v%d" % (t, I)); a("v_xor_b32 v%d, v%d, v%d" % (t, t, Gq)); a("v_lshlrev_b32 v%d, 4, v%d" % (t, t)); a("v_lshl_add_u32 v%d, v%d, 7, v%d" % (t, I, t))
        a("v_xor_b32 v%d, 64, v%d" % (t + 1, t)); a("v_add_u32 v%d, s6, v%d" % (XR0, t)); a("v_add_u32 v%d, s6, v%d" % (XR1, t + 1))
        a("v_bfe_u32 v%d, v%d, 2, 2" % (t, LANE)); a("v_and_b32 v%d, 3, v%d" % (t + 1, LANE))
        a("v_and_b32 v%d, 1, v%d" % (t + 2, Gq)); a("v_lshl_or_b32 v%d, v%d, 2, v%d" % (t + 2, t + 2, t))
        a("v_lshl_add_u32 v%d, v%d, 3, v%d" % (t + 3, Gq, t)); a("v_lshlrev_b32 v%d, 8, v%d" % (t + 3, t + 3))
        a("s_and_b32 s7, s%d, 1" % WAVE)
        for tt in range(4):
            if isq:
                a("s_lshl_b32 s6, s7, 6"); a("s_add_u32 s6, s6, %d" % (128 * (tt >> 1) + 32 * (tt & 1))); sh = 3
            else:
                a("s_mul_i32 s6, s7, %d" % (48 if tt < 2 else 56)); a("s_add_u32 s6, s6, %d" % (32 * tt if tt < 2 else 128 + 32 * (tt - 2))); sh = 3
            a("v_lshlrev_b32 v%d, %d, v%d" % (t + 4, sh, t + 1)); a("v_add_u32 v%d, s6, v%d" % (t + 4, t + 4))
            a("v_lshrrev_b32 v%d, 5, v%d" % (t + 5, t + 4)); a("v_xor_b32 v%d, v%d, v%d" % (t + 5, t + 5, t + 2))
            a("v_and_b32 v%d, 31, v%d" % (t + 4, t + 4)); a("v_lshl_or_b32 v%d, v%d, 5, v%d" % (t + 4, t + 5, t + 4))
            a("v_add_u32 v%d, v%d, v%d" % (FA + tt, t + 4, t + 3))
        a("s_mov_b32 s14, 0x%x" % LOG2E); a("s_mov_b32 s15, 0x%x" % LOG2E); a("s_mov_b32 s13, 0x%x" % EPS)
        def xwrite(c):
            if "noxw" in self.opts: return
            for q in range(2): a("ds_write_b128 v%d, %s offset:%d" % (XW, vr(Xs(c, q), 4), (c & 1) * 16384 + q * 1024))
        def freads_l(u):
            out = []
            if "nofr" in self.opts: return out
            Fb = F1 if u & 1 else F0
            c = chunk(u)
            for rt in range(2):
                for kk in ((0, 1) if isq else (u & 1,)):
                    d = Fb + 16 + ((rt * 2 + kk) * 4 if isq else rt * 4)
                    out.append("ds_read_b128 %s, v%d offset:%d" % (vr(d, 4), XR1 if kk else XR0, (c % XRING) * 16384 + rt * 2048))
            for tt in range(4):
                for hh in range(2):
                    out.append("ds_read_b64_tr_b16 %s, v%d offset:%d" % (vr(Fb + 4 * tt + 2 * hh, 2), FA + tt, (u % RING) * 8192 + hh * 1024))
            return out
        def freads(u):
            for x in freads_l(u): a(x)
        def newchunk(u): return isq or (u & 1) == 0
        def chunk(u): return u if isq else u >> 1
        def mfmas_l(u):
            out = []
            if "nomf" in self.opts: return out
            Fb = F1 if u & 1 else F0
            for tt in range(4):
                for rt in range(2):
                    if isq:
                        acc = ACC + (rt * 2 + (tt & 1)) * 4; x = Fb + 16 + (rt * 2 + (tt >> 1)) * 4; first = (u == 0 and tt < 2)
                        out.append("v_mfma_f32_16x16x32_bf16 %s, %s, %s, %s" % (vr(acc, 4), vr(Fb + 4 * tt, 4), vr(x, 4), "0" if first else vr(acc, 4)))
                    else:
                        acc = ACC + (tt * 2 + rt) * 4; x = Fb + 16 + rt * 4; first = (u == 0)
                        out.append("v_mfma_f32_16x16x32_bf16 %s, %s, %s, %s" % (vr(acc, 4), vr(x, 4), vr(Fb + 4 * tt, 4), "0" if first else vr(acc, 4)))
            return out
        if "twice" in self.opts:
            a("s_mov_b32 s78, 0"); Ltw = a.newlabel("tw"); a.label(Ltw)
        a.vmwait(("W", 0), ("X", 0)); a("s_barrier")
        self.stamp(1)
        if isq:
            L = a.newlabel("nzs")
            a("s_or_b32 s6, s%d, s%d" % (S_HP, WAVE)); a("s_cmp_lg_u32 s6, 0"); a("s_cbranch_scc1 %s" % L)
            a("v_mov_b32 v0, 32"); a("v_mov_b32 v5, 1"); a("s_mov_b64 exec, 1")
            a("buffer_atomic_add v5, v0, s[%d:%d], 0 offen sc1" % (SDBG, SDBG + 3)); a("s_mov_b64 exec, -1")
            a.label(L)
        freads(0)
        for u in range(U):
            if u + 1 < U:
                M = mfmas_l(u); Rd = freads_l(u + 1)
                a("s_waitcnt lgkmcnt(0)")
                for x in M[:2]: a(x)
                a.vmwait(("W", u + 1), ("X", chunk(u + 1)))
                a("s_barrier")
                if u + RING < U: dma(u + RING)
                if newchunk(u + 1) and chunk(u) + XRING < 7: xload(chunk(u) + XRING)
                for k in range(2, 8):
                    for x in Rd[2 * (k - 2):2 * (k - 2) + 2]: a(x)
                    if k < len(M): a(M[k])
                if u == (4 if isq else 10):
                    a.vmwait("FL")
                    Lsn = a.newlabel("snap")
                    a("s_cmp_lg_u32 s%d, 0" % WAVE); a("s_cbranch_scc1 %s" % Lsn)
                    a("s_lshl_b32 s6, s%d, 1" % XCD); a("s_cmp_ge_u32 s%d, 44" % SLOT); a("s_addc_u32 s6, s6, 0")
                    a("s_and_b32 s7, s6, 3"); a("s_lshl_b32 s7, s7, 6"); a("s_lshr_b32 s6, s6, 2"); a("s_lshl_b32 s6, s6, 2"); a("s_add_u32 s6, s6, s7"); a("s_add_u32 s6, s6, 16")
                    a("v_mov_b32 v0, 32"); a("v_writelane_b32 v0, 64, 1"); a("v_writelane_b32 v0, s6, 2")
                    a("s_mov_b64 exec, 7")
                    a("buffer_load_dword v5, v0, s[%d:%d], 0 offen sc1" % (SDBG, SDBG + 3))
                    a("s_mov_b64 exec, -1")
                    a.label(Lsn)
            else:
                a("s_waitcnt lgkmcnt(0)")
                for x in mfmas_l(u): a(x)
        if "twice" in self.opts:
            a("s_add_u32 s78, s78, 1"); a("s_cmp_lt_u32 s78, 2"); a("s_cbranch_scc1 %s" % Ltw)
        a("v_readfirstlane_b32 s%d, v%d" % (S_F0, FLV)); a("v_readfirstlane_b32 s%d, v%d" % (S_F1, FLV + 1))
        a.vmwait_all()
        a("v_readlane_b32 s6, v5, 1"); a("v_readlane_b32 s7, v5, 2")
        a("s_cmp_ge_u32 s6, 128"); a("s_cselect_b32 s6, 1, 0"); a("s_cmp_ge_u32 s7, 7"); a("s_cselect_b32 s7, 2, 0"); a("s_or_b32 s101, s6, s7")
        self.stamp(2)
        T = XS
        if isq:
            self.phi(ACC, 16, T)
            a("s_lshl_b32 s6, s%d, 2" % S_RB); a("s_lshr_b32 s7, s%d, 1" % WAVE); a("s_add_u32 s6, s6, s7"); a("s_mul_i32 s6, s6, 28672")
            a("s_lshl_b32 s7, s%d, 11" % S_HP); a("s_add_u32 s6, s6, s7")
            a("s_and_b32 s7, s%d, 1" % WAVE); a("s_lshl_b32 s7, s7, 10"); a("s_add_u32 s6, s6, s7"); a("s_add_u32 s7, s6, 14336")
            a("v_lshrrev_b32 v1, 4, v%d" % LANE); a("v_and_b32 v2, 1, v1"); a("v_lshrrev_b32 v1, 1, v1"); a("v_lshl_or_b32 v1, v2, 1, v1")
            a("v_and_b32 v2, 15, v%d" % LANE); a("v_lshlrev_b32 v2, 4, v2"); a("v_lshl_add_u32 v0, v1, 8, v2")
            for rt in range(2):
                d = T + 16 + rt * 4
                for k in range(4): a("v_cvt_pk_bf16_f32 v%d, v%d, v%d" % (d + k, ACC + rt * 8 + 2 * k, ACC + rt * 8 + 2 * k + 1))
            for rt in range(2):
                d = T + 16 + rt * 4
                a("v_permlane16_swap_b32 v%d, v%d" % (d, d + 2)); a("v_permlane16_swap_b32 v%d, v%d" % (d + 1, d + 3))
                a.vmop("buffer_store_dwordx4 %s, v0, s[%d:%d], s%d offen sc1" % (vr(d, 4), SPQ, SPQ + 3, 6 + rt), "S")
            self.stamp(3)
            a.vmwait_all(); a("s_barrier")
            L = a.newlabel("arrq")
            a("s_cmp_lg_u32 s%d, 7" % WAVE); a("s_cbranch_scc1 %s" % L)
            a("s_and_b32 s6, s%d, 3" % S_RB); a("s_lshl_b32 s6, s6, 6"); a("s_lshr_b32 s7, s%d, 2" % S_RB); a("s_lshl_b32 s7, s7, 2")
            a("s_add_u32 s6, s6, s7"); a("s_add_u32 s6, s6, 16")
            self.atomic_ret(6, 1, 2, 7)
            a("s_cmp_lg_u32 s7, 6"); a("s_cbranch_scc1 %s" % L)
            a("s_and_b32 s6, s%d, 1" % S_RB); a("s_lshl_b32 s6, s6, 4"); a("s_add_u32 s6, s6, 28"); a("s_lshl_b32 s6, s6, 3"); a("s_add_u32 s6, s6, s%d" % XCD); a("s_lshl_b32 s6, s6, 7")
            a("v_lshlrev_b32 v1, 10, v%d" % LANE); a("v_mov_b32 v2, 1"); a("s_mov_b64 exec, 0x3fff")
            a("buffer_atomic_add v2, v1, s[%d:%d], s6 offen offset:4 sc1" % (SFL, SFL + 3))
            a("s_mov_b64 exec, -1")
            a.label(L)
        else:
            self.phi(ACC, 16, T)
            PK = T + 16
            for k in range(16): a("v_cvt_pk_bf16_f32 v%d, v%d, v%d" % (PK + k, ACC + 2 * k, ACC + 2 * k + 1))
            a("s_and_b32 s7, s%d, 1" % WAVE); a("s_cmp_eq_u32 s7, 1")
            a("s_cselect_b32 s6, 0x000f000f, 0"); a("s_mov_b32 s7, s6"); a("s_mov_b64 exec, s[6:7]")
            for k in range(4): a("v_mov_b32 v%d, 0" % (PK + k))
            a("s_cselect_b32 s6, 0, 0xf000f000"); a("s_mov_b32 s7, s6"); a("s_mov_b64 exec, s[6:7]")
            for k in range(4): a("v_mov_b32 v%d, 0" % (PK + 4 + k))
            a("s_mov_b32 s6, 0xe000e000"); a("s_mov_b32 s7, s6"); a("s_mov_b64 exec, s[6:7]")
            for k in range(4): a("v_mov_b32 v%d, 0" % (PK + 12 + k))
            a("s_mov_b32 s6, 0x10001000"); a("s_mov_b32 s7, s6"); a("s_mov_b64 exec, s[6:7]"); a("s_mov_b32 s6, 0x3f803f80")
            for k in range(4): a("v_mov_b32 v%d, s6" % (PK + 12 + k))
            a("s_mov_b64 exec, -1")
            KT = F0
            for je in range(2):
                for jd in range(2):
                    a("v_mfma_f32_16x16x32_bf16 %s, %s, %s, 0" % (vr(KT + 4 * (2 * je + jd), 4), vr(PK + 8 + 4 * je, 4), vr(PK + 4 * jd, 4)))
            RB = XBASE + 16384
            a("s_lshl_b32 s6, s%d, 12" % WAVE); a("s_add_u32 s6, s6, %d" % RB); a("v_lshl_add_u32 v0, v%d, 4, s6" % LANE)
            a("v_bfe_u32 v1, v%d, 2, 2" % LANE); a("v_lshrrev_b32 v2, 4, v%d" % LANE); a("v_mul_u32_u24 v2, 7, v2")
            a("s_and_b32 s6, s%d, 2" % WAVE); a("s_lshl_b32 s6, s6, 1"); a("v_add_u32 v1, s6, v1"); a("v_add_u32 v2, v2, v1")
            a("v_cmp_eq_u32 vcc, 7, v1"); a("v_mov_b32 v3, 28"); a("v_cndmask_b32 v2, v2, v3, vcc")
            for tau in range(4): a("ds_write_b128 v0, %s offset:%d" % (vr(KT + 4 * tau, 4), tau * 1024))
            a("v_lshrrev_b32 v1, 4, v2"); a("v_lshlrev_b32 v1, 11, v1"); a("v_bfe_u32 v3, v2, 2, 2"); a("v_lshl_add_u32 v1, v3, 8, v1")
            a("v_and_b32 v3, 3, v2"); a("v_lshl_add_u32 v1, v3, 2, v1"); a("v_and_b32 v3, 3, v%d" % LANE); a("v_lshl_add_u32 v1, v3, 4, v1")
            a("s_lshr_b32 s6, s%d, 2" % WAVE); a("s_lshl_b32 s6, s6, 12"); a("s_and_b32 s7, s%d, 1" % WAVE); a("s_lshl_b32 s7, s7, 6")
            a("s_add_u32 s6, s6, s7"); a("s_add_u32 s6, s6, %d" % RB); a("v_add_u32 v1, s6, v1")
            Lok = a.newlabel("zok"); Lz = a.newlabel("zp")
            a("s_cmp_lg_u32 s%d, 0" % WAVE); a("s_cbranch_scc1 %s" % Lok)
            a("s_mov_b32 s6, 0"); a("v_mov_b32 v0, 32")
            a.label(Lz)
            a("v_readfirstlane_b32 s7, v5"); a("s_cmp_ge_u32 s7, 16"); a("s_cbranch_scc1 %s" % Lok)
            a("s_sleep 8")
            a("buffer_load_dword v5, v0, s[%d:%d], 0 offen sc1" % (SDBG, SDBG + 3))
            a("s_add_u32 s6, s6, 1"); a("s_waitcnt vmcnt(0)"); a("s_cmp_lt_u32 s6, 0x%x" % POLL_CAP); a("s_cbranch_scc1 %s" % Lz)
            a.label(Lok)
            a("s_waitcnt lgkmcnt(0)"); a("s_barrier")
            R = F1
            for rg in range(4):
                for gp in range(4):
                    a("ds_read_b32 v%d, v1 offset:%d" % (R + rg * 4 + gp, rg * 8192 + (gp >> 1) * 1024 + (gp & 1) * 128))
            a("s_lshl_b32 s6, s%d, 3" % S_HP); a("s_add_u32 s6, s6, s%d" % WAVE); a("s_lshl_b32 s6, s6, 10")
            a("v_lshlrev_b32 v3, 2, v%d" % LANE)
            a("s_waitcnt lgkmcnt(0)")
            for k in (0, 2):
                a("v_pk_add_f32 %s, %s, %s" % (vr(R + k, 2), vr(R + k, 2), vr(R + 4 + k, 2))); a("v_pk_add_f32 %s, %s, %s" % (vr(R + 8 + k, 2), vr(R + 8 + k, 2), vr(R + 12 + k, 2)))
            for k in (0, 2): a("v_pk_add_f32 %s, %s, %s" % (vr(R + k, 2), vr(R + k, 2), vr(R + 8 + k, 2)))
            for k in range(4):
                a.vmop("buffer_atomic_add_f32 v%d, v3, s[%d:%d], s6 offen offset:%d" % (R + k, SKV, SKV + 3, k * 256), "S")
            self.stamp(3)
            a.vmwait_all(); a("s_barrier")
            L = a.newlabel("arr")
            a("s_cmp_lg_u32 s%d, 7" % WAVE); a("s_cbranch_scc1 %s" % L)
            a("s_mov_b32 s6, 64")
            self.atomic_ret(6, 1, 2, 7)
            a("s_cmp_lg_u32 s7, 127"); a("s_cbranch_scc1 %s" % L)
            a("v_lshlrev_b32 v1, 7, v%d" % LANE); a("v_mov_b32 v2, 1")
            for k in range(4):
                a("s_mov_b32 s6, %d" % (224 * 128 + k * 8192))
                if k == 3: a("s_mov_b32 s10, -1"); a("s_mov_b32 s11, 0xffff"); a("s_mov_b64 exec, s[10:11]")
                a("buffer_atomic_add v2, v1, s[%d:%d], s6 offen sc1" % (SFL, SFL + 3))
            a("s_mov_b64 exec, -1")
            a.label(L)

    def a2(self):
        a = self.a
        PQ, WR, KVF, ACC, TA = 16, 48, 80, 112, 8
        S_R0, S_WN = 8, 9
        KVL = 57344
        Lend = "A_end"
        self.stamp(4)
        a("s_sub_u32 s10, s%d, 28" % SLOT)
        a("s_and_b32 s6, s10, 30"); a("s_cmp_eq_u32 s6, 14"); a("s_cbranch_scc1 %s" % Lend)
        if "noa2" in self.opts: a("s_branch %s" % Lend)
        a("s_cmp_ge_u32 s10, 16"); a("s_cselect_b32 s6, 2, 0"); a("s_sub_u32 s10, s10, s6")
        a("s_mul_i32 s6, s10, 9363"); a("s_lshr_b32 s6, s6, 16")
        a("s_mul_i32 s7, s6, 7"); a("s_sub_u32 s%d, s10, s7" % S_WN)
        a("s_lshl_b32 s7, s%d, 2" % XCD); a("s_add_u32 s%d, s6, s7" % S_R0)
        self.srd(SWO, P_WO, 401408); self.srd(SOUT, P_OUT, 3670016)
        a("v_and_b32 v1, 15, v%d" % LANE); a("v_lshrrev_b32 v2, 4, v%d" % LANE)
        a("v_lshrrev_b32 v3, 1, v1"); a("v_xor_b32 v3, v3, v2")
        a("v_lshrrev_b32 v4, 2, v3"); a("v_lshl_add_u32 v4, v2, 1, v4")
        a("v_and_b32 v3, 3, v3"); a("v_and_b32 v5, 1, v1"); a("v_lshl_or_b32 v3, v3, 1, v5")
        a("s_mul_i32 s6, s%d, 56" % WAVE); a("v_add_u32 v4, s6, v4"); a("v_mul_u32_u24 v4, 896, v4")
        a("v_lshl_add_u32 v4, v3, 4, v4")
        a("s_mul_i32 s13, s%d, 7168" % WAVE); a("s_lshl_b32 s10, s%d, 7" % S_WN)
        for n in range(7):
            a("s_add_u32 m0, s13, %d" % (n * 1024)); a("s_add_u32 s6, s10, %d" % (n * 8 * 896))
            a.vmop("buffer_load_dwordx4 v4, s[%d:%d], s6 offen lds" % (SWO, SWO + 3), "WO")
        a("v_bfe_u32 v3, v%d, 2, 2" % LANE); a("v_and_b32 v4, 3, v%d" % LANE)
        a("v_mul_u32_u24 v5, 7, v2")
        a("s_lshr_b32 s6, s%d, 2" % WAVE); a("s_mul_i32 s6, s6, 28672")
        a("v_lshlrev_b32 v4, 3, v4"); a("v_add_u32 v4, s6, v4")
        for ph in range(7):
            a("v_add_u32 v0, %d, v3" % (4 * ph))
            a("v_mul_u32_u24 v6, 37, v0"); a("v_lshrrev_b32 v6, 8, v6"); a("v_mul_u32_u24 v6, 21, v6")
            a("v_add3_u32 v0, v0, v6, v5")
            a("v_and_b32 v6, 1, v0"); a("v_lshlrev_b32 v6, 2, v6")
            a("v_lshrrev_b32 v0, 1, v0"); a("v_and_b32 v15, 3, v0"); a("v_xor_b32 v6, v6, v15")
            a("v_lshlrev_b32 v6, 5, v6"); a("v_lshl_add_u32 v6, v0, 8, v6")
            a("v_add_u32 v%d, v6, v4" % (TA + ph))
        a("v_lshlrev_b32 v15, 4, v%d" % LANE)
        L = a.newlabel("pw")
        a("s_cmp_lg_u32 s%d, 0" % WAVE); a("s_cbranch_scc1 %s" % L)
        a("s_bitcmp1_b32 s101, 1"); a("s_cbranch_scc1 %s" % L)
        self.poll_flag(3, 4, S_F1, 4)
        a.label(L)
        a.vmwait("WO"); a("s_barrier")
        a("s_and_b32 s6, s%d, 3" % WAVE); a("s_lshl_b32 s7, s%d, 2" % S_R0); a("s_add_u32 s6, s6, s7"); a("s_mul_i32 s6, s6, 14336")
        a("s_lshr_b32 s7, s%d, 2" % WAVE); a("s_mul_i32 s7, s7, 7168"); a("s_add_u32 s6, s6, s7"); a("s_add_u32 s7, s6, 3584")
        g0 = [0, 3, 7, 10]
        for hl in range(8):
            a.vmop("buffer_load_dwordx4 %s, v15, s[%d:%d], s%d offen offset:%d %s" % (vr(PQ + hl * 4, 4), SPQ, SPQ + 3, 6 + (hl >> 2), 256 * g0[hl & 3], self.HL), "PQ")
        def wo_read(dst, tile, ph):
            if tile: a("v_xor_b32 v0, %d, v%d" % (32 * tile, TA + ph % 7)); ad = 0
            else: ad = TA + ph % 7
            a("ds_read_b64_tr_b16 %s, v%d offset:%d" % (vr(dst, 2), ad, 14336 * (ph // 7)))
        for ks in range(2):
            for tile in range(4):
                for h2 in range(2): wo_read(WR + (ks * 4 + tile) * 4 + 2 * h2, tile, 2 * ks + h2)
        a("s_lshl_b32 s12, s%d, 13" % WAVE)
        a("s_lshl_b32 s6, s%d, 12" % WAVE); a("s_add_u32 s6, s6, %d" % KVL)
        a("s_cmp_eq_u32 s%d, 6" % WAVE); a("s_cselect_b32 s6, 0, s6"); a("s_cmp_eq_u32 s%d, 7" % WAVE); a("s_cselect_b32 s6, 28672, s6")
        a("v_add_u32 v5, s6, v15")
        a("s_lshr_b32 s7, s%d, 2" % WAVE); a("s_cmp_eq_u32 s7, 1")
        a("s_mov_b32 s6, %d" % KVL); a("s_cselect_b32 s6, %d, s6" % (KVL + 16384)); a("v_add_u32 v3, s6, v15")
        a("s_cselect_b32 s6, 0, %d" % (KVL + 8192)); a("v_add_u32 v4, s6, v15")
        a("s_mov_b32 s6, 28672"); a("s_cselect_b32 s6, s6, %d" % (KVL + 12288)); a("v_add_u32 v6, s6, v15")
        a("s_mov_b32 s10, 0"); a("s_mov_b32 s11, 0xffff0000"); a("s_mov_b32 s13, 0x%x" % EPS)
        a.vmwait("PQ")
        a("s_mov_b64 exec, s[10:11]")
        for hl in range(0, 8, 2): a("v_mov_b32 v%d, 0" % (PQ + hl * 4 + 2)); a("v_mov_b32 v%d, 0" % (PQ + hl * 4 + 3))
        a("s_mov_b64 exec, 0xffff")
        for hl in range(1, 8, 2): a("v_mov_b32 v%d, 0" % (PQ + hl * 4)); a("v_mov_b32 v%d, 0" % (PQ + hl * 4 + 1))
        a("s_mov_b64 exec, -1")
        a("s_waitcnt lgkmcnt(0)")
        self.stamp(5)
        L = a.newlabel("aw")
        a("s_cmp_lg_u32 s%d, 0" % WAVE); a("s_cbranch_scc1 %s" % L)
        a("s_bitcmp1_b32 s101, 0"); a("s_cbranch_scc1 %s" % L)
        self.poll_flag(1, 2, S_F0, 0)
        a.label(L)
        a("s_barrier")
        self.stamp(6)
        a("s_add_u32 s6, s12, 4096")
        for k in range(8):
            a.vmop("buffer_load_dwordx4 %s, v15, s[%d:%d], s%d offen offset:%d %s" % (vr(KVF + 4 * k, 4), SKV, SKV + 3, 12 if k < 4 else 6, 1024 * (k & 3), self.HL), ("KV", k >> 1))
        for fr in range(4):
            a.vmwait(("KV", fr))
            for k in range(4): a("v_cvt_pk_bf16_f32 v%d, v%d, v%d" % (KVF + 8 * fr + k, KVF + 8 * fr + 2 * k, KVF + 8 * fr + 2 * k + 1))
            a("ds_write_b128 v5, %s offset:%d" % (vr(KVF + 8 * fr, 4), fr * 1024))
        a("s_waitcnt lgkmcnt(0)"); a("s_barrier")
        def kv_read(hp):
            b = KVF + 16 * (hp & 1)
            ad, off = [(3, 0), (3, 4096), (4, 0), (6, 0)][hp]
            for k in range(4): a("ds_read_b128 %s, v%d offset:%d" % (vr(b + 4 * k, 4), ad, off + 1024 * k))
        kv_read(0)
        N = ACC
        Oreg = lambda k: PQ + k
        for hp in range(4):
            if hp + 1 < 4: kv_read(hp + 1)
            a("s_waitcnt lgkmcnt(%d)" % (4 if hp + 1 < 4 else 0))
            b = KVF + 16 * (hp & 1)
            for h2 in range(2):
                for j in (1, 0):
                    a("v_mfma_f32_16x16x32_bf16 %s, %s, %s, 0" % (vr(N + h2 * 8 + 4 * j, 4), vr(b + 8 * h2 + 4 * j, 4), vr(PQ + (2 * hp + h2) * 4, 4)))
            for h2 in range(2): a("v_add_f32 v%d, s13, v%d" % (h2, N + h2 * 8 + 7))
            for h2 in range(2): a("v_rcp_f32 v%d, v%d" % (h2, h2))
            for h2 in range(2):
                if "smul" in self.opts:
                    for t in range(7): a("v_mul_f32 v%d, v%d, v%d" % (N + h2 * 8 + t, N + h2 * 8 + t, h2))
                else:
                    for t in range(0, 8, 2):
                        a("v_pk_mul_f32 %s, v[0:1], %s op_sel:[%d,0] op_sel_hi:[%d,1]" % (vr(N + h2 * 8 + t, 2), vr(N + h2 * 8 + t, 2), h2, h2))
            reg = lambda f: N + (f // 7) * 8 + f % 7
            for k in range(7): a("v_cvt_pk_bf16_f32 v%d, v%d, v%d" % (Oreg(7 * hp + k), reg(2 * k), reg(2 * k + 1)))
        def w_read(ks):
            b = KVF + 16 * (ks & 1)
            for tile in range(4):
                for h2 in range(2): wo_read(b + 4 * tile + 2 * h2, tile, 2 * ks + h2)
        w_read(2); w_read(3)
        for ks in range(7):
            if ks >= 2: a("s_waitcnt lgkmcnt(%d)" % (8 if ks + 1 < 7 else 0))
            for tile in range(4):
                c = vr(ACC + 4 * tile, 4)
                w = WR + (ks * 4 + tile) * 4 if ks < 2 else KVF + 16 * (ks & 1) + 4 * tile
                a("v_mfma_f32_16x16x32_bf16 %s, %s, %s, %s" % (c, vr(w, 4), vr(Oreg(4 * ks), 4), "0" if ks == 0 else c))
            if ks >= 2 and ks + 2 < 7: w_read(ks + 2)
        a("s_barrier")
        a("s_lshl_b32 s6, s%d, 12" % WAVE); a("v_add_u32 v5, s6, v15")
        for tile in range(4): a("ds_write_b128 v5, %s offset:%d" % (vr(ACC + 4 * tile, 4), tile * 1024))
        a("v_lshrrev_b32 v3, 3, v%d" % LANE); a("v_and_b32 v4, 7, v%d" % LANE)
        a("v_lshlrev_b32 v5, 9, v4"); a("v_lshl_add_u32 v5, v3, 4, v5")
        a("s_and_b32 s6, s%d, 3" % WAVE); a("s_lshl_b32 s7, s6, 12"); a("s_lshr_b32 s10, s%d, 2" % WAVE); a("s_lshl_b32 s11, s10, 7"); a("s_add_u32 s7, s7, s11")
        a("v_add_u32 v5, s7, v5")
        a("v_mul_u32_u24 v3, 1792, v3"); a("v_lshl_add_u32 v3, v4, 4, v3")
        a("s_lshl_b32 s7, s%d, 2" % S_R0); a("s_add_u32 s6, s6, s7"); a("s_lshl_b32 s6, s6, 1"); a("s_add_u32 s6, s6, s10"); a("s_mul_i32 s6, s6, %d" % (8 * 1792))
        a("s_lshl_b32 s7, s%d, 7" % S_WN); a("s_add_u32 s6, s6, s7")
        a("s_waitcnt lgkmcnt(0)"); a("s_barrier")
        self.stamp(7)
        R = KVF
        for sw in range(2):
            for gg in range(2): a("ds_read_b128 %s, v5 offset:%d" % (vr(R + sw * 8 + gg * 4, 4), sw * 16384 + gg * 256))
        a("s_waitcnt lgkmcnt(0)")
        for k in range(0, 8, 2): a("v_pk_add_f32 %s, %s, %s" % (vr(R + k, 2), vr(R + k, 2), vr(R + 8 + k, 2)))
        for k in range(4): a("v_cvt_pk_bf16_f32 v%d, v%d, v%d" % (R + 8 + k, R + 2 * k, R + 2 * k + 1))
        a.vmop("buffer_store_dwordx4 %s, v3, s[%d:%d], s6 offen" % (vr(R + 8, 4), SOUT, SOUT + 3), "S")
        self.stamp(8)
        a.label(Lend)
        self.dump_stamps()
        a("s_endpgm")

    def build(self):
        a = self.a
        a.raw(open("concat_heads__linear_attn_block__ssm_conv_s4d__prompt.s.ref").read().split("; Override launch")[0].rstrip())
        a.raw("; @launch grid=(%d,1,1) block=(512,1,1) lds=%d" % (NWG, LDS))
        a.raw('.amdgcn_target "amdgcn-amd-amdhsa--gfx950"\n.text\n.globl %s\n.p2align 8\n.type %s,@function\n%s:' % (KNAME, KNAME, KNAME))
        a("s_cmp_ge_u32 s2, %d" % NWG); a("s_cbranch_scc1 K_exit")
        a("s_load_dwordx16 s[16:31], s[0:1], 0"); a("s_load_dwordx8 s[32:39], s[0:1], 64"); a("s_load_dwordx2 s[40:41], s[0:1], 96")
        a("s_and_b32 s%d, s2, 7" % XCD); a("s_lshr_b32 s%d, s2, 3" % SLOT)
        a("v_lshrrev_b32 v1, 6, v0"); a("v_and_b32 v7, 63, v0")
        a("v_readfirstlane_b32 s%d, v1" % WAVE)
        a("s_nop 3")
        Bl = "K_exit" if "onlya" in self.opts else "B_entry"
        a("s_cmp_lt_u32 s%d, 28" % SLOT); a("s_cbranch_scc1 %s" % Bl)
        if "onlyb" in self.opts: a("s_branch K_exit")
        a("s_setprio 2")
        a("s_cmp_ge_u32 s%d, 44" % SLOT); a("s_cbranch_scc1 Q_entry")
        self.gemm(False)
        a("s_branch A2_entry")
        a.label("Q_entry"); a.vm = []
        self.gemm(True)
        a.label("A2_entry"); a.fence(8); a.vm = []
        self.a2()
        a.label("B_entry"); a.vm = []
        if "onlya" not in self.opts:
            from gen_b import gen_b
            gen_b(self)
        a.label("K_exit")
        a("s_endpgm")
        a.raw('''.section .rodata,"a"
.p2align 6
.amdhsa_kernel %s
  .amdhsa_next_free_vgpr 128
  .amdhsa_next_free_sgpr 102
  .amdhsa_accum_offset 128
  .amdhsa_group_segment_fixed_size 0
  .amdhsa_kernarg_size 104
  .amdhsa_user_sgpr_count 2
  .amdhsa_user_sgpr_kernarg_segment_ptr 1
  .amdhsa_system_sgpr_workgroup_id_x 1
.end_amdhsa_kernel''' % KNAME)
        return a.text()

if __name__ == "__main__":
    stamps = "--stamps" in sys.argv
    out = [x for x in sys.argv[1:] if not x.startswith("--")][0]
    open(out, "w").write(Gen(stamps, [x[2:] for x in sys.argv[1:] if x.startswith("--")]).build())
```

```python
import sys
from asmlib import *

KNAME = "concat_heads__linear_attn_block__ssm_conv_s4d__prompt_kernel"
NWG = 464
LDS = 81920
WS_PQ, WS_UT, WS_KV, WS_FL, WS_TS = 0, 0x200000, 0x400000, 0x480000, 0x500000
LOG2E = 0x3fb8aa3b
EPS = 0x358637bd
POLL_CAP = 1 << 15

XCD, SLOT, WAVE = 3, 4, 5
P_X, P_W, P_WO, P_U, P_LA, P_AI, P_CR, P_CI, P_DT, P_DS, P_OUT, P_DBG, P_WS = 16, 18, 20, 22, 24, 26, 28, 30, 32, 34, 36, 38, 40
S_F0, S_F1, S_FA = 42, 43, 100
SX, SW, SPQ, SKV, SOUT, SDBG, SWO, SUT, SU, SFL = 44, 48, 52, 56, 60, 64, 68, 52, 44, 72
TS0 = 80
LANE = 7

class Gen:
    def __init__(self, stamps=False, opts=()):
        self.a = Asm()
        self.opts = set(opts)
        self.stamps = stamps
        self.SLEEP = 2
        self.HL = "nt" if "nt" in self.opts else ("" if "plain" in self.opts else "sc1")

    def srd(self, d, p, nbytes, off=0):
        a = self.a
        if off:
            a("s_add_u32 s%d, s%d, 0x%x" % (d, p, off)); a("s_addc_u32 s%d, s%d, 0" % (d + 1, p + 1))
        else:
            a("s_mov_b32 s%d, s%d" % (d, p)); a("s_mov_b32 s%d, s%d" % (d + 1, p + 1))
        a("s_mov_b32 s%d, 0x%x" % (d + 2, nbytes)); a("s_mov_b32 s%d, 0x00020000" % (d + 3))

    def stamp(self, k):
        if not self.stamps: return
        self.a("s_memrealtime s[%d:%d]" % (TS0 + 2 * k, TS0 + 2 * k + 1))
        self.a("s_waitcnt lgkmcnt(0)")

    def dump_stamps(self, role='A'):
        if not self.stamps: return
        a = self.a
        a.vmwait_all()
        self.stamp(9)
        if "hstamps" in self.opts:
            L = a.newlabel("hs")
            a("s_cmp_lg_u32 s%d, 0" % WAVE); a("s_cbranch_scc1 %s" % L)
            wg, pairs, base = (288, [(1, 2), (3, 4), (5, 6), (7, 8), (9, 9)], [36, 40, 44, 48, 52]) if role == "A" else (32, [(1, 2), (3, 4), (5, 9)], [56, 60, 12])
            a("s_cmp_lg_u32 s2, %d" % wg); a("s_cbranch_scc1 %s" % L)
            a("s_mov_b64 exec, 1")
            for (k1, k2), off in zip(pairs, base):
                a("s_sub_u32 s6, s%d, s%d" % (TS0 + 2 * k1, TS0)); a("s_sub_u32 s7, s%d, s%d" % (TS0 + 2 * k2, TS0))
                a("s_mul_i32 s7, s7, 10000"); a("s_add_u32 s6, s6, s7"); a("v_mov_b32 v1, s6"); a("v_mov_b32 v0, %d" % off)
                a("buffer_store_dword v1, v0, s[%d:%d], 0 offen" % (SDBG, SDBG + 3))
            a("s_mov_b64 exec, -1")
            a.label(L)
            return
        self.srd(76, P_WS, 0x100000, WS_TS)
        a("s_lshl_b32 s6, s2, 3"); a("s_add_u32 s6, s6, s%d" % WAVE); a("s_lshl_b32 s6, s6, 6")
        a("v_mov_b32 v0, s6")
        a("s_mov_b64 exec, 1")
        for k in range(10):
            a("v_mov_b32 v1, s%d" % (TS0 + 2 * k))
            a("buffer_store_dword v1, v0, s[76:79], 0 offen offset:%d" % (4 * k))
        a("s_mov_b64 exec, -1")

    def atomic_ret(self, s_off, va, vb, s_dst):
        a = self.a
        a("v_mov_b32 v%d, s%d" % (va, s_off)); a("v_mov_b32 v%d, 1" % vb)
        a("s_mov_b64 exec, 1")
        a("buffer_atomic_add v%d, v%d, s[%d:%d], 0 offen sc0 sc1" % (vb, va, SDBG, SDBG + 3))
        a("s_mov_b64 exec, -1")
        a("s_waitcnt vmcnt(0)")
        a("v_readfirstlane_b32 s%d, v%d" % (s_dst, vb))

    def poll_flag(self, va, vv, s_old, off=0):
        a = self.a
        L = a.newlabel("poll"); D = a.newlabel("polld")
        a("s_mov_b32 s6, 0"); a("v_mov_b32 v%d, s%d" % (va, S_FA))
        a("s_mov_b64 exec, 1")
        a.label(L)
        a("buffer_load_dword v%d, v%d, s[%d:%d], 0 offen offset:%d sc1" % (vv, va, SFL, SFL + 3, off))
        a("s_add_u32 s6, s6, 1")
        a("s_waitcnt vmcnt(0)")
        a("v_cmp_ne_u32 vcc, s%d, v%d" % (s_old, vv))
        a("s_cbranch_vccnz %s" % D)
        a("s_sleep %d" % self.SLEEP)
        a("s_cmp_lt_u32 s6, 0x%x" % POLL_CAP)
        a("s_cbranch_scc1 %s" % L)
        a.label(D)
        a("s_mov_b64 exec, -1")

    def phi(self, base, n, tmp):
        a = self.a
        for k in range(0, n, 2): a("v_pk_mul_f32 %s, %s, s[14:15]" % (vr(tmp + k, 2), vr(base + k, 2)))
        for k in range(n):
            a("v_exp_f32_e64 v%d, v%d clamp" % (tmp + k, tmp + k))
            a("v_max_f32 v%d, s13, v%d" % (base + k, base + k))
        for k in range(0, n, 2): a("v_pk_add_f32 %s, %s, %s" % (vr(base + k, 2), vr(base + k, 2), vr(tmp + k, 2)))

    def gemm(self, isq):
        a = self.a
        XA, XW, XR0, XR1, FLV, DA, FA = 1, 2, 3, 4, 12, 6, 8
        FS = 32 if isq else 24
        F0, F1 = 16, 16 + FS
        ACC = 16 + 2 * FS
        XS = 96
        U = 7 if isq else 14
        RING = 4; XBASE = 32768; XRING = 3
        S_WB, S_T, S_RB, S_HP, S_M = 9, 10, 11, 12, 8
        S_X = 76
        Xs = lambda c, q: XS + ((c & 3) * 2 + q) * 4
        if isq:
            a("s_sub_u32 s10, s%d, 44" % SLOT)
            a("s_cmp_ge_u32 s10, 7"); a("s_cselect_b32 s6, 1, 0")
            a("s_mul_i32 s7, s6, 7"); a("s_sub_u32 s%d, s10, s7" % S_HP)
            a("s_lshl_b32 s%d, s%d, 7" % (S_WB, S_HP))
        else:
            a("s_sub_u32 s7, s%d, 28" % SLOT); a("s_lshr_b32 s6, s7, 3"); a("s_and_b32 s%d, s7, 7" % S_HP)
            a("s_mul_i32 s%d, s%d, 112" % (S_WB, S_HP)); a("s_add_u32 s%d, s%d, 896" % (S_WB, S_WB))
        a("s_lshl_b32 s%d, s%d, 1" % (S_RB, XCD)); a("s_add_u32 s%d, s%d, s6" % (S_RB, S_RB))
        a("s_lshl_b32 s6, s%d, 3" % S_RB); a("s_add_u32 s6, s6, s%d" % WAVE); a("s_mul_i32 s%d, s6, 14336" % S_X)
        a("s_add_u32 s%d, s%d, 7168" % (S_X + 1, S_X))
        a("s_lshl_b32 s%d, s2, 7" % S_FA)
        t = F0; I, Gq = F0 + 8, F0 + 9
        a("v_and_b32 v%d, 15, v%d" % (I, LANE)); a("v_lshrrev_b32 v%d, 4, v%d" % (Gq, LANE))
        a("v_lshrrev_b32 v%d, 3, v%d" % (t, LANE)); a("v_and_b32 v%d, 7, v%d" % (t + 1, LANE))
        a("v_xor_b32 v%d, v%d, v%d" % (t + 1, t + 1, t))
        a("v_mul_u32_u24 v%d, 896, v%d" % (t + 2, t)); a("v_lshl_add_u32 v%d, v%d, 4, v%d" % (XA, t + 1, t + 2))
        a("s_lshl_b32 s78, s%d, 11" % WAVE); a("s_add_u32 s78, s78, %d" % XBASE)
        a("s_and_b32 s6, s%d, 2" % WAVE); a("s_lshl_b32 s6, s6, 1")
        a("v_or_b32 v%d, s6, v%d" % (t + 4, Gq))
        a("v_lshrrev_b32 v%d, 1, v%d" % (t + 5, I)); a("v_xor_b32 v%d, v%d, v%d" % (t + 5, t + 5, t + 4))
        a("v_and_b32 v%d, 1, v%d" % (t + 6, I)); a("v_lshl_or_b32 v%d, v%d, 1, v%d" % (t + 5, t + 5, t + 6))
        a("v_lshrrev_b32 v%d, 3, v%d" % (t + 6, t + 5))
        a("v_and_b32 v%d, 7, v%d" % (t + 5, t + 5))
        if not isq: a("v_min_u32 v%d, 6, v%d" % (t + 5, t + 5))
        a("s_lshl_b32 s6, s%d, 2" % WAVE); a("v_add_u32 v%d, s6, v%d" % (t + 7, Gq)); a("v_mul_u32_u24 v%d, 2688, v%d" % (t + 7, t + 7))
        a("v_mul_u32_u24 v%d, %d, v%d" % (t + 6, 32 * 2688 if isq else 896, t + 6))
        a("v_lshl_add_u32 v%d, v%d, 4, v%d" % (t + 7, t + 5, t + 7)); a("v_add_u32 v%d, v%d, v%d" % (DA, t + 7, t + 6))
        a("s_lshl_b32 s%d, s%d, 10" % (S_M, WAVE))
        a("v_mov_b32 v0, s%d" % S_FA)
        a("s_waitcnt lgkmcnt(0)")
        self.srd(SX, P_X, 1835008); self.srd(SW, P_W, 1204224)
        self.stamp(0)
        def dma(u):
            if "nodma" in self.opts: return
            a("s_add_u32 m0, s%d, %d" % (S_M, (u % RING) * 8192))
            a("s_add_u32 s%d, s%d, %d" % (S_T, S_WB, ((64 if isq else 32) * u) * 2688))
            a.vmop("buffer_load_dwordx4 v%d, s[%d:%d], s%d offen lds" % (DA, SW, SW + 3, S_T), ("W", u))
        def xload(c):
            if "noxl" in self.opts: return
            for q in range(2):
                a("s_add_u32 m0, s78, %d" % ((c % XRING) * 16384 + q * 1024))
                a("s_add_u32 s%d, s%d, %d" % (S_T, S_X + q, c * 128))
                a.vmop("buffer_load_dwordx4 v%d, s[%d:%d], s%d offen lds" % (XA, SX, SX + 3, S_T), ("X", c))
        self.srd(SKV, P_WS, 65536, WS_KV)
        if isq:
            L = a.newlabel("nz")
            a("s_cmp_lg_u32 s%d, 0" % S_HP); a("s_cbranch_scc1 %s" % L)
            for k in range(2): a("v_mov_b32 v%d, 0" % (F1 + k))
            a("s_lshl_b32 s6, s%d, 12" % S_RB); a("s_lshl_b32 s7, s%d, 9" % WAVE); a("s_add_u32 s6, s6, s7")
            a("v_lshlrev_b32 v5, 3, v%d" % LANE)
            a("buffer_store_dwordx2 v[%d:%d], v5, s[%d:%d], s6 offen sc1" % (F1, F1 + 1, SKV, SKV + 3))
            a.label(L)
        xload(0); dma(0); a("s_barrier")
        if isq:
            xload(1); dma(1); a("s_barrier"); xload(2); dma(2); dma(3)
        else:
            dma(1); xload(1); a("s_barrier"); dma(2); dma(3); xload(2)
        self.srd(SFL, P_WS, 131072, WS_FL)
        a.vmop("buffer_load_dwordx2 %s, v0, s[%d:%d], 0 offen sc1" % (vr(FLV, 2), SFL, SFL + 3), "FL")
        self.srd(SDBG, P_DBG, 256); self.srd(SPQ, P_WS, 1835008, WS_PQ)
        a("s_lshr_b32 s6, s%d, 1" % WAVE); a("s_lshl_b32 s6, s6, 12"); a("s_add_u32 s6, s6, %d" % XBASE)
        a("v_and_b32 v%d, 7, v%d" % (t, I)); a("v_xor_b32 v%d, v%d, v%d" % (t, t, Gq)); a("v_lshlrev_b32 v%d, 4, v%d" % (t, t)); a("v_lshl_add_u32 v%d, v%d, 7, v%d" % (t, I, t))
        a("v_xor_b32 v%d, 64, v%d" % (t + 1, t)); a("v_add_u32 v%d, s6, v%d" % (XR0, t)); a("v_add_u32 v%d, s6, v%d" % (XR1, t + 1))
        a("v_bfe_u32 v%d, v%d, 2, 2" % (t, LANE)); a("v_and_b32 v%d, 3, v%d" % (t + 1, LANE))
        a("v_and_b32 v%d, 1, v%d" % (t + 2, Gq)); a("v_lshl_or_b32 v%d, v%d, 2, v%d" % (t + 2, t + 2, t))
        a("v_lshl_add_u32 v%d, v%d, 3, v%d" % (t + 3, Gq, t)); a("v_lshlrev_b32 v%d, 8, v%d" % (t + 3, t + 3))
        a("s_and_b32 s7, s%d, 1" % WAVE)
        for tt in range(4):
            if isq:
                a("s_lshl_b32 s6, s7, 6"); a("s_add_u32 s6, s6, %d" % (128 * (tt >> 1) + 32 * (tt & 1))); sh = 3
            else:
                a("s_mul_i32 s6, s7, %d" % (48 if tt < 2 else 56)); a("s_add_u32 s6, s6, %d" % (32 * tt if tt < 2 else 128 + 32 * (tt - 2))); sh = 3
            a("v_lshlrev_b32 v%d, %d, v%d" % (t + 4, sh, t + 1)); a("v_add_u32 v%d, s6, v%d" % (t + 4, t + 4))
            a("v_lshrrev_b32 v%d, 5, v%d" % (t + 5, t + 4)); a("v_xor_b32 v%d, v%d, v%d" % (t + 5, t + 5, t + 2))
            a("v_and_b32 v%d, 31, v%d" % (t + 4, t + 4)); a("v_lshl_or_b32 v%d, v%d, 5, v%d" % (t + 4, t + 5, t + 4))
            a("v_add_u32 v%d, v%d, v%d" % (FA + tt, t + 4, t + 3))
        a("s_mov_b32 s14, 0x%x" % LOG2E); a("s_mov_b32 s15, 0x%x" % LOG2E); a("s_mov_b32 s13, 0x%x" % EPS)
        def xwrite(c):
            if "noxw" in self.opts: return
            for q in range(2): a("ds_write_b128 v%d, %s offset:%d" % (XW, vr(Xs(c, q), 4), (c & 1) * 16384 + q * 1024))
        def freads_l(u):
            out = []
            if "nofr" in self.opts: return out
            Fb = F1 if u & 1 else F0
            c = chunk(u)
            for rt in range(2):
                for kk in ((0, 1) if isq else (u & 1,)):
                    d = Fb + 16 + ((rt * 2 + kk) * 4 if isq else rt * 4)
                    out.append("ds_read_b128 %s, v%d offset:%d" % (vr(d, 4), XR1 if kk else XR0, (c % XRING) * 16384 + rt * 2048))
            for tt in range(4):
                for hh in range(2):
                    out.append("ds_read_b64_tr_b16 %s, v%d offset:%d" % (vr(Fb + 4 * tt + 2 * hh, 2), FA + tt, (u % RING) * 8192 + hh * 1024))
            return out
        def freads(u):
            for x in freads_l(u): a(x)
        def newchunk(u): return isq or (u & 1) == 0
        def chunk(u): return u if isq else u >> 1
        def mfmas_l(u):
            out = []
            if "nomf" in self.opts: return out
            Fb = F1 if u & 1 else F0
            for tt in range(4):
                for rt in range(2):
                    if isq:
                        acc = ACC + (rt * 2 + (tt & 1)) * 4; x = Fb + 16 + (rt * 2 + (tt >> 1)) * 4; first = (u == 0 and tt < 2)
                        out.append("v_mfma_f32_16x16x32_bf16 %s, %s, %s, %s" % (vr(acc, 4), vr(Fb + 4 * tt, 4), vr(x, 4), "0" if first else vr(acc, 4)))
                    else:
                        acc = ACC + (tt * 2 + rt) * 4; x = Fb + 16 + rt * 4; first = (u == 0)
                        out.append("v_mfma_f32_16x16x32_bf16 %s, %s, %s, %s" % (vr(acc, 4), vr(x, 4), vr(Fb + 4 * tt, 4), "0" if first else vr(acc, 4)))
            return out
        if "twice" in self.opts:
            a("s_mov_b32 s78, 0"); Ltw = a.newlabel("tw"); a.label(Ltw)
        a.vmwait(("W", 0), ("X", 0)); a("s_barrier")
        self.stamp(1)
        if isq:
            L = a.newlabel("nzs")
            a("s_or_b32 s6, s%d, s%d" % (S_HP, WAVE)); a("s_cmp_lg_u32 s6, 0"); a("s_cbranch_scc1 %s" % L)
            a("v_mov_b32 v0, 32"); a("v_mov_b32 v5, 1"); a("s_mov_b64 exec, 1")
            a("buffer_atomic_add v5, v0, s[%d:%d], 0 offen sc1" % (SDBG, SDBG + 3)); a("s_mov_b64 exec, -1")
            a.label(L)
        freads(0)
        for u in range(U):
            if u + 1 < U:
                M = mfmas_l(u); Rd = freads_l(u + 1)
                a("s_waitcnt lgkmcnt(0)")
                for x in M[:2]: a(x)
                a.vmwait(("W", u + 1), ("X", chunk(u + 1)))
                a("s_barrier")
                if u + RING < U: dma(u + RING)
                if newchunk(u + 1) and chunk(u) + XRING < 7: xload(chunk(u) + XRING)
                for k in range(2, 8):
                    for x in Rd[2 * (k - 2):2 * (k - 2) + 2]: a(x)
                    if k < len(M): a(M[k])
                if u == (4 if isq else 10):
                    a.vmwait("FL")
                    Lsn = a.newlabel("snap")
                    a("s_cmp_lg_u32 s%d, 0" % WAVE); a("s_cbranch_scc1 %s" % Lsn)
                    a("s_lshl_b32 s6, s%d, 1" % XCD); a("s_cmp_ge_u32 s%d, 44" % SLOT); a("s_addc_u32 s6, s6, 0")
                    a("s_and_b32 s7, s6, 3"); a("s_lshl_b32 s7, s7, 6"); a("s_lshr_b32 s6, s6, 2"); a("s_lshl_b32 s6, s6, 2"); a("s_add_u32 s6, s6, s7"); a("s_add_u32 s6, s6, 16")
                    a("v_mov_b32 v0, 32"); a("v_writelane_b32 v0, 64, 1"); a("v_writelane_b32 v0, s6, 2")
                    a("s_mov_b64 exec, 7")
                    a("buffer_load_dword v5, v0, s[%d:%d], 0 offen sc1" % (SDBG, SDBG + 3))
                    a("s_mov_b64 exec, -1")
                    a.label(Lsn)
            else:
                a("s_waitcnt lgkmcnt(0)")
                for x in mfmas_l(u): a(x)
        if "twice" in self.opts:
            a("s_add_u32 s78, s78, 1"); a("s_cmp_lt_u32 s78, 2"); a("s_cbranch_scc1 %s" % Ltw)
        a("v_readfirstlane_b32 s%d, v%d" % (S_F0, FLV)); a("v_readfirstlane_b32 s%d, v%d" % (S_F1, FLV + 1))
        a.vmwait_all()
        a("v_readlane_b32 s6, v5, 1"); a("v_readlane_b32 s7, v5, 2")
        a("s_cmp_ge_u32 s6, 128"); a("s_cselect_b32 s6, 1, 0"); a("s_cmp_ge_u32 s7, 7"); a("s_cselect_b32 s7, 2, 0"); a("s_or_b32 s101, s6, s7")
        self.stamp(2)
        T = XS
        if isq:
            self.phi(ACC, 16, T)
            a("s_lshl_b32 s6, s%d, 2" % S_RB); a("s_lshr_b32 s7, s%d, 1" % WAVE); a("s_add_u32 s6, s6, s7"); a("s_mul_i32 s6, s6, 28672")
            a("s_lshl_b32 s7, s%d, 11" % S_HP); a("s_add_u32 s6, s6, s7")
            a("s_and_b32 s7, s%d, 1" % WAVE); a("s_lshl_b32 s7, s7, 10"); a("s_add_u32 s6, s6, s7"); a("s_add_u32 s7, s6, 14336")
            a("v_lshrrev_b32 v1, 4, v%d" % LANE); a("v_and_b32 v2, 1, v1"); a("v_lshrrev_b32 v1, 1, v1"); a("v_lshl_or_b32 v1, v2, 1, v1")
            a("v_and_b32 v2, 15, v%d" % LANE); a("v_lshlrev_b32 v2, 4, v2"); a("v_lshl_add_u32 v0, v1, 8, v2")
            for rt in range(2):
                d = T + 16 + rt * 4
                for k in range(4): a("v_cvt_pk_bf16_f32 v%d, v%d, v%d" % (d + k, ACC + rt * 8 + 2 * k, ACC + rt * 8 + 2 * k + 1))
            for rt in range(2):
                d = T + 16 + rt * 4
                a("v_permlane16_swap_b32 v%d, v%d" % (d, d + 2)); a("v_permlane16_swap_b32 v%d, v%d" % (d + 1, d + 3))
                a.vmop("buffer_store_dwordx4 %s, v0, s[%d:%d], s%d offen sc1" % (vr(d, 4), SPQ, SPQ + 3, 6 + rt), "S")
            self.stamp(3)
            a.vmwait_all(); a("s_barrier")
            L = a.newlabel("arrq")
            a("s_cmp_lg_u32 s%d, 7" % WAVE); a("s_cbranch_scc1 %s" % L)
            a("s_and_b32 s6, s%d, 3" % S_RB); a("s_lshl_b32 s6, s6, 6"); a("s_lshr_b32 s7, s%d, 2" % S_RB); a("s_lshl_b32 s7, s7, 2")
            a("s_add_u32 s6, s6, s7"); a("s_add_u32 s6, s6, 16")
            self.atomic_ret(6, 1, 2, 7)
            a("s_cmp_lg_u32 s7, 6"); a("s_cbranch_scc1 %s" % L)
            a("s_and_b32 s6, s%d, 1" % S_RB); a("s_lshl_b32 s6, s6, 4"); a("s_add_u32 s6, s6, 28"); a("s_lshl_b32 s6, s6, 3"); a("s_add_u32 s6, s6, s%d" % XCD); a("s_lshl_b32 s6, s6, 7")
            a("v_lshlrev_b32 v1, 10, v%d" % LANE); a("v_mov_b32 v2, 1"); a("s_mov_b64 exec, 0x3fff")
            a("buffer_atomic_add v2, v1, s[%d:%d], s6 offen offset:4 sc1" % (SFL, SFL + 3))
            a("s_mov_b64 exec, -1")
            a.label(L)
        else:
            self.phi(ACC, 16, T)
            PK = T + 16
            for k in range(16): a("v_cvt_pk_bf16_f32 v%d, v%d, v%d" % (PK + k, ACC + 2 * k, ACC + 2 * k + 1))
            a("s_and_b32 s7, s%d, 1" % WAVE); a("s_cmp_eq_u32 s7, 1")
            a("s_cselect_b32 s6, 0x000f000f, 0"); a("s_mov_b32 s7, s6"); a("s_mov_b64 exec, s[6:7]")
            for k in range(4): a("v_mov_b32 v%d, 0" % (PK + k))
            a("s_cselect_b32 s6, 0, 0xf000f000"); a("s_mov_b32 s7, s6"); a("s_mov_b64 exec, s[6:7]")
            for k in range(4): a("v_mov_b32 v%d, 0" % (PK + 4 + k))
            a("s_mov_b32 s6, 0xe000e000"); a("s_mov_b32 s7, s6"); a("s_mov_b64 exec, s[6:7]")
            for k in range(4): a("v_mov_b32 v%d, 0" % (PK + 12 + k))
            a("s_mov_b32 s6, 0x10001000"); a("s_mov_b32 s7, s6"); a("s_mov_b64 exec, s[6:7]"); a("s_mov_b32 s6, 0x3f803f80")
            for k in range(4): a("v_mov_b32 v%d, s6" % (PK + 12 + k))
            a("s_mov_b64 exec, -1")
            KT = F0
            for je in range(2):
                for jd in range(2):
                    a("v_mfma_f32_16x16x32_bf16 %s, %s, %s, 0" % (vr(KT + 4 * (2 * je + jd), 4), vr(PK + 8 + 4 * je, 4), vr(PK + 4 * jd, 4)))
            RB = XBASE + 16384
            a("s_lshl_b32 s6, s%d, 12" % WAVE); a("s_add_u32 s6, s6, %d" % RB); a("v_lshl_add_u32 v0, v%d, 4, s6" % LANE)
            a("v_bfe_u32 v1, v%d, 2, 2" % LANE); a("v_lshrrev_b32 v2, 4, v%d" % LANE); a("v_mul_u32_u24 v2, 7, v2")
            a("s_and_b32 s6, s%d, 2" % WAVE); a("s_lshl_b32 s6, s6, 1"); a("v_add_u32 v1, s6, v1"); a("v_add_u32 v2, v2, v1")
            a("v_cmp_eq_u32 vcc, 7, v1"); a("v_mov_b32 v3, 28"); a("v_cndmask_b32 v2, v2, v3, vcc")
            for tau in range(4): a("ds_write_b128 v0, %s offset:%d" % (vr(KT + 4 * tau, 4), tau * 1024))
            a("v_lshrrev_b32 v1, 4, v2"); a("v_lshlrev_b32 v1, 11, v1"); a("v_bfe_u32 v3, v2, 2, 2"); a("v_lshl_add_u32 v1, v3, 8, v1")
            a("v_and_b32 v3, 3, v2"); a("v_lshl_add_u32 v1, v3, 2, v1"); a("v_and_b32 v3, 3, v%d" % LANE); a("v_lshl_add_u32 v1, v3, 4, v1")
            a("s_lshr_b32 s6, s%d, 2" % WAVE); a("s_lshl_b32 s6, s6, 12"); a("s_and_b32 s7, s%d, 1" % WAVE); a("s_lshl_b32 s7, s7, 6")
            a("s_add_u32 s6, s6, s7"); a("s_add_u32 s6, s6, %d" % RB); a("v_add_u32 v1, s6, v1")
            Lok = a.newlabel("zok"); Lz = a.newlabel("zp")
            a("s_cmp_lg_u32 s%d, 0" % WAVE); a("s_cbranch_scc1 %s" % Lok)
            a("s_mov_b32 s6, 0"); a("v_mov_b32 v0, 32")
            a.label(Lz)
            a("v_readfirstlane_b32 s7, v5"); a("s_cmp_ge_u32 s7, 16"); a("s_cbranch_scc1 %s" % Lok)
            a("s_sleep 8")
            a("buffer_load_dword v5, v0, s[%d:%d], 0 offen sc1" % (SDBG, SDBG + 3))
            a("s_add_u32 s6, s6, 1"); a("s_waitcnt vmcnt(0)"); a("s_cmp_lt_u32 s6, 0x%x" % POLL_CAP); a("s_cbranch_scc1 %s" % Lz)
            a.label(Lok)
            a("s_waitcnt lgkmcnt(0)"); a("s_barrier")
            R = F1
            for rg in range(4):
                for gp in range(4):
                    a("ds_read_b32 v%d, v1 offset:%d" % (R + rg * 4 + gp, rg * 8192 + (gp >> 1) * 1024 + (gp & 1) * 128))
            a("s_lshl_b32 s6, s%d, 3" % S_HP); a("s_add_u32 s6, s6, s%d" % WAVE); a("s_lshl_b32 s6, s6, 10")
            a("v_lshlrev_b32 v3, 2, v%d" % LANE)
            a("s_waitcnt lgkmcnt(0)")
            for k in (0, 2):
                a("v_pk_add_f32 %s, %s, %s" % (vr(R + k, 2), vr(R + k, 2), vr(R + 4 + k, 2))); a("v_pk_add_f32 %s, %s, %s" % (vr(R + 8 + k, 2), vr(R + 8 + k, 2), vr(R + 12 + k, 2)))
            for k in (0, 2): a("v_pk_add_f32 %s, %s, %s" % (vr(R + k, 2), vr(R + k, 2), vr(R + 8 + k, 2)))
            for k in range(4):
                a.vmop("buffer_atomic_add_f32 v%d, v3, s[%d:%d], s6 offen offset:%d" % (R + k, SKV, SKV + 3, k * 256), "S")
            self.stamp(3)
            a.vmwait_all(); a("s_barrier")
            L = a.newlabel("arr")
            a("s_cmp_lg_u32 s%d, 7" % WAVE); a("s_cbranch_scc1 %s" % L)
            a("s_mov_b32 s6, 64")
            self.atomic_ret(6, 1, 2, 7)
            a("s_cmp_lg_u32 s7, 127"); a("s_cbranch_scc1 %s" % L)
            a("v_lshlrev_b32 v1, 7, v%d" % LANE); a("v_mov_b32 v2, 1")
            for k in range(4):
                a("s_mov_b32 s6, %d" % (224 * 128 + k * 8192))
                if k == 3: a("s_mov_b32 s10, -1"); a("s_mov_b32 s11, 0xffff"); a("s_mov_b64 exec, s[10:11]")
                a("buffer_atomic_add v2, v1, s[%d:%d], s6 offen sc1" % (SFL, SFL + 3))
            a("s_mov_b64 exec, -1")
            a.label(L)

    def a2(self):
        a = self.a
        PQ, WR, KVF, ACC, TA = 16, 48, 80, 112, 8
        S_R0, S_WN = 8, 9
        KVL = 57344
        Lend = "A_end"
        self.stamp(4)
        a("s_sub_u32 s10, s%d, 28" % SLOT)
        a("s_and_b32 s6, s10, 30"); a("s_cmp_eq_u32 s6, 14"); a("s_cbranch_scc1 %s" % Lend)
        if "noa2" in self.opts: a("s_branch %s" % Lend)
        a("s_cmp_ge_u32 s10, 16"); a("s_cselect_b32 s6, 2, 0"); a("s_sub_u32 s10, s10, s6")
        a("s_mul_i32 s6, s10, 9363"); a("s_lshr_b32 s6, s6, 16")
        a("s_mul_i32 s7, s6, 7"); a("s_sub_u32 s%d, s10, s7" % S_WN)
        a("s_lshl_b32 s7, s%d, 2" % XCD); a("s_add_u32 s%d, s6, s7" % S_R0)
        self.srd(SWO, P_WO, 401408); self.srd(SOUT, P_OUT, 3670016)
        a("v_and_b32 v1, 15, v%d" % LANE); a("v_lshrrev_b32 v2, 4, v%d" % LANE)
        a("v_lshrrev_b32 v3, 1, v1"); a("v_xor_b32 v3, v3, v2")
        a("v_lshrrev_b32 v4, 2, v3"); a("v_lshl_add_u32 v4, v2, 1, v4")
        a("v_and_b32 v3, 3, v3"); a("v_and_b32 v5, 1, v1"); a("v_lshl_or_b32 v3, v3, 1, v5")
        a("s_mul_i32 s6, s%d, 56" % WAVE); a("v_add_u32 v4, s6, v4"); a("v_mul_u32_u24 v4, 896, v4")
        a("v_lshl_add_u32 v4, v3, 4, v4")
        a("s_mul_i32 s13, s%d, 7168" % WAVE); a("s_lshl_b32 s10, s%d, 7" % S_WN)
        for n in range(7):
            a("s_add_u32 m0, s13, %d" % (n * 1024)); a("s_add_u32 s6, s10, %d" % (n * 8 * 896))
            a.vmop("buffer_load_dwordx4 v4, s[%d:%d], s6 offen lds" % (SWO, SWO + 3), "WO")
        a("v_bfe_u32 v3, v%d, 2, 2" % LANE); a("v_and_b32 v4, 3, v%d" % LANE)
        a("v_mul_u32_u24 v5, 7, v2")
        a("s_lshr_b32 s6, s%d, 2" % WAVE); a("s_mul_i32 s6, s6, 28672")
        a("v_lshlrev_b32 v4, 3, v4"); a("v_add_u32 v4, s6, v4")
        for ph in range(7):
            a("v_add_u32 v0, %d, v3" % (4 * ph))
            a("v_mul_u32_u24 v6, 37, v0"); a("v_lshrrev_b32 v6, 8, v6"); a("v_mul_u32_u24 v6, 21, v6")
            a("v_add3_u32 v0, v0, v6, v5")
            a("v_and_b32 v6, 1, v0"); a("v_lshlrev_b32 v6, 2, v6")
            a("v_lshrrev_b32 v0, 1, v0"); a("v_and_b32 v15, 3, v0"); a("v_xor_b32 v6, v6, v15")
            a("v_lshlrev_b32 v6, 5, v6"); a("v_lshl_add_u32 v6, v0, 8, v6")
            a("v_add_u32 v%d, v6, v4" % (TA + ph))
        a("v_lshlrev_b32 v15, 4, v%d" % LANE)
        L = a.newlabel("pw")
        a("s_cmp_lg_u32 s%d, 0" % WAVE); a("s_cbranch_scc1 %s" % L)
        a("s_bitcmp1_b32 s101, 1"); a("s_cbranch_scc1 %s" % L)
        self.poll_flag(3, 4, S_F1, 4)
        a.label(L)
        a.vmwait("WO"); a("s_barrier")
        a("s_and_b32 s6, s%d, 3" % WAVE); a("s_lshl_b32 s7, s%d, 2" % S_R0); a("s_add_u32 s6, s6, s7"); a("s_mul_i32 s6, s6, 14336")
        a("s_lshr_b32 s7, s%d, 2" % WAVE); a("s_mul_i32 s7, s7, 7168"); a("s_add_u32 s6, s6, s7"); a("s_add_u32 s7, s6, 3584")
        g0 = [0, 3, 7, 10]
        for hl in range(8):
            a.vmop("buffer_load_dwordx4 %s, v15, s[%d:%d], s%d offen offset:%d %s" % (vr(PQ + hl * 4, 4), SPQ, SPQ + 3, 6 + (hl >> 2), 256 * g0[hl & 3], self.HL), "PQ")
        def wo_read(dst, tile, ph):
            if tile: a("v_xor_b32 v0, %d, v%d" % (32 * tile, TA + ph % 7)); ad = 0
            else: ad = TA + ph % 7
            a("ds_read_b64_tr_b16 %s, v%d offset:%d" % (vr(dst, 2), ad, 14336 * (ph // 7)))
        for ks in range(2):
            for tile in range(4):
                for h2 in range(2): wo_read(WR + (ks * 4 + tile) * 4 + 2 * h2, tile, 2 * ks + h2)
        a("s_lshl_b32 s12, s%d, 13" % WAVE)
        a("s_lshl_b32 s6, s%d, 12" % WAVE); a("s_add_u32 s6, s6, %d" % KVL)
        a("s_cmp_eq_u32 s%d, 6" % WAVE); a("s_cselect_b32 s6, 0, s6"); a("s_cmp_eq_u32 s%d, 7" % WAVE); a("s_cselect_b32 s6, 28672, s6")
        a("v_add_u32 v5, s6, v15")
        a("s_lshr_b32 s7, s%d, 2" % WAVE); a("s_cmp_eq_u32 s7, 1")
        a("s_mov_b32 s6, %d" % KVL); a("s_cselect_b32 s6, %d, s6" % (KVL + 16384)); a("v_add_u32 v3, s6, v15")
        a("s_cselect_b32 s6, 0, %d" % (KVL + 8192)); a("v_add_u32 v4, s6, v15")
        a("s_mov_b32 s6, 28672"); a("s_cselect_b32 s6, s6, %d" % (KVL + 12288)); a("v_add_u32 v6, s6, v15")
        a("s_mov_b32 s10, 0"); a("s_mov_b32 s11, 0xffff0000"); a("s_mov_b32 s13, 0x%x" % EPS)
        a.vmwait("PQ")
        a("s_mov_b64 exec, s[10:11]")
        for hl in range(0, 8, 2): a("v_mov_b32 v%d, 0" % (PQ + hl * 4 + 2)); a("v_mov_b32 v%d, 0" % (PQ + hl * 4 + 3))
        a("s_mov_b64 exec, 0xffff")
        for hl in range(1, 8, 2): a("v_mov_b32 v%d, 0" % (PQ + hl * 4)); a("v_mov_b32 v%d, 0" % (PQ + hl * 4 + 1))
        a("s_mov_b64 exec, -1")
        a("s_waitcnt lgkmcnt(0)")
        self.stamp(5)
        L = a.newlabel("aw")
        a("s_cmp_lg_u32 s%d, 0" % WAVE); a("s_cbranch_scc1 %s" % L)
        a("s_bitcmp1_b32 s101, 0"); a("s_cbranch_scc1 %s" % L)
        self.poll_flag(1, 2, S_F0, 0)
        a.label(L)
        a("s_barrier")
        self.stamp(6)
        a("s_add_u32 s6, s12, 4096")
        for k in range(8):
            a.vmop("buffer_load_dwordx4 %s, v15, s[%d:%d], s%d offen offset:%d %s" % (vr(KVF + 4 * k, 4), SKV, SKV + 3, 12 if k < 4 else 6, 1024 * (k & 3), self.HL), ("KV", k >> 1))
        for fr in range(4):
            a.vmwait(("KV", fr))
            for k in range(4): a("v_cvt_pk_bf16_f32 v%d, v%d, v%d" % (KVF + 8 * fr + k, KVF + 8 * fr + 2 * k, KVF + 8 * fr + 2 * k + 1))
            a("ds_write_b128 v5, %s offset:%d" % (vr(KVF + 8 * fr, 4), fr * 1024))
        a("s_waitcnt lgkmcnt(0)"); a("s_barrier")
        def kv_read(hp):
            b = KVF + 16 * (hp & 1)
            ad, off = [(3, 0), (3, 4096), (4, 0), (6, 0)][hp]
            for k in range(4): a("ds_read_b128 %s, v%d offset:%d" % (vr(b + 4 * k, 4), ad, off + 1024 * k))
        kv_read(0)
        N = ACC
        Oreg = lambda k: PQ + k
        for hp in range(4):
            if hp + 1 < 4: kv_read(hp + 1)
            a("s_waitcnt lgkmcnt(%d)" % (4 if hp + 1 < 4 else 0))
            b = KVF + 16 * (hp & 1)
            for h2 in range(2):
                for j in (1, 0):
                    a("v_mfma_f32_16x16x32_bf16 %s, %s, %s, 0" % (vr(N + h2 * 8 + 4 * j, 4), vr(b + 8 * h2 + 4 * j, 4), vr(PQ + (2 * hp + h2) * 4, 4)))
            for h2 in range(2): a("v_add_f32 v%d, s13, v%d" % (h2, N + h2 * 8 + 7))
            for h2 in range(2): a("v_rcp_f32 v%d, v%d" % (h2, h2))
            for h2 in range(2):
                if "smul" in self.opts:
                    for t in range(7): a("v_mul_f32 v%d, v%d, v%d" % (N + h2 * 8 + t, N + h2 * 8 + t, h2))
                else:
                    for t in range(0, 8, 2):
                        a("v_pk_mul_f32 %s, v[0:1], %s op_sel:[%d,0] op_sel_hi:[%d,1]" % (vr(N + h2 * 8 + t, 2), vr(N + h2 * 8 + t, 2), h2, h2))
            reg = lambda f: N + (f // 7) * 8 + f % 7
            for k in range(7): a("v_cvt_pk_bf16_f32 v%d, v%d, v%d" % (Oreg(7 * hp + k), reg(2 * k), reg(2 * k + 1)))
        def w_read(ks):
            b = KVF + 16 * (ks & 1)
            for tile in range(4):
                for h2 in range(2): wo_read(b + 4 * tile + 2 * h2, tile, 2 * ks + h2)
        w_read(2); w_read(3)
        for ks in range(7):
            if ks >= 2: a("s_waitcnt lgkmcnt(%d)" % (8 if ks + 1 < 7 else 0))
            for tile in range(4):
                c = vr(ACC + 4 * tile, 4)
                w = WR + (ks * 4 + tile) * 4 if ks < 2 else KVF + 16 * (ks & 1) + 4 * tile
                a("v_mfma_f32_16x16x32_bf16 %s, %s, %s, %s" % (c, vr(w, 4), vr(Oreg(4 * ks), 4), "0" if ks == 0 else c))
            if ks >= 2 and ks + 2 < 7: w_read(ks + 2)
        a("s_barrier")
        a("s_lshl_b32 s6, s%d, 12" % WAVE); a("v_add_u32 v5, s6, v15")
        for tile in range(4): a("ds_write_b128 v5, %s offset:%d" % (vr(ACC + 4 * tile, 4), tile * 1024))
        a("v_lshrrev_b32 v3, 3, v%d" % LANE); a("v_and_b32 v4, 7, v%d" % LANE)
        a("v_lshlrev_b32 v5, 9, v4"); a("v_lshl_add_u32 v5, v3, 4, v5")
        a("s_and_b32 s6, s%d, 3" % WAVE); a("s_lshl_b32 s7, s6, 12"); a("s_lshr_b32 s10, s%d, 2" % WAVE); a("s_lshl_b32 s11, s10, 7"); a("s_add_u32 s7, s7, s11")
        a("v_add_u32 v5, s7, v5")
        a("v_mul_u32_u24 v3, 1792, v3"); a("v_lshl_add_u32 v3, v4, 4, v3")
        a("s_lshl_b32 s7, s%d, 2" % S_R0); a("s_add_u32 s6, s6, s7"); a("s_lshl_b32 s6, s6, 1"); a("s_add_u32 s6, s6, s10"); a("s_mul_i32 s6, s6, %d" % (8 * 1792))
        a("s_lshl_b32 s7, s%d, 7" % S_WN); a("s_add_u32 s6, s6, s7")
        a("s_waitcnt lgkmcnt(0)"); a("s_barrier")
        self.stamp(7)
        R = KVF
        for sw in range(2):
            for gg in range(2): a("ds_read_b128 %s, v5 offset:%d" % (vr(R + sw * 8 + gg * 4, 4), sw * 16384 + gg * 256))
        a("s_waitcnt lgkmcnt(0)")
        for k in range(0, 8, 2): a("v_pk_add_f32 %s, %s, %s" % (vr(R + k, 2), vr(R + k, 2), vr(R + 8 + k, 2)))
        for k in range(4): a("v_cvt_pk_bf16_f32 v%d, v%d, v%d" % (R + 8 + k, R + 2 * k, R + 2 * k + 1))
        thr = [x for x in self.opts if x.startswith("thr")]
        if thr:
            k, T = thr[0][3:].split("_")
            a("s_sub_u32 s7, s%d, s%d" % (TS0 + 2 * int(k), TS0)); a("s_cmp_gt_u32 s7, %d" % int(T)); a("s_cbranch_scc1 %s" % Lend)
        a.vmop("buffer_store_dwordx4 %s, v3, s[%d:%d], s6 offen" % (vr(R + 8, 4), SOUT, SOUT + 3), "S")
        self.stamp(8)
        a.label(Lend)
        self.dump_stamps()
        a("s_endpgm")

    def build(self):
        a = self.a
        a.raw(open("concat_heads__linear_attn_block__ssm_conv_s4d__prompt.s.ref").read().split("; Override launch")[0].rstrip())
        a.raw("; @launch grid=(%d,1,1) block=(512,1,1) lds=%d" % (NWG, LDS))
        a.raw('.amdgcn_target "amdgcn-amd-amdhsa--gfx950"\n.text\n.globl %s\n.p2align 8\n.type %s,@function\n%s:' % (KNAME, KNAME, KNAME))
        a("s_cmp_ge_u32 s2, %d" % NWG); a("s_cbranch_scc1 K_exit")
        a("s_load_dwordx16 s[16:31], s[0:1], 0"); a("s_load_dwordx8 s[32:39], s[0:1], 64"); a("s_load_dwordx2 s[40:41], s[0:1], 96")
        a("s_and_b32 s%d, s2, 7" % XCD); a("s_lshr_b32 s%d, s2, 3" % SLOT)
        a("v_lshrrev_b32 v1, 6, v0"); a("v_and_b32 v7, 63, v0")
        a("v_readfirstlane_b32 s%d, v1" % WAVE)
        a("s_nop 3")
        Bl = "K_exit" if "onlya" in self.opts else "B_entry"
        a("s_cmp_lt_u32 s%d, 28" % SLOT); a("s_cbranch_scc1 %s" % Bl)
        if "onlyb" in self.opts: a("s_branch K_exit")
        a("s_setprio 2")
        a("s_cmp_ge_u32 s%d, 44" % SLOT); a("s_cbranch_scc1 Q_entry")
        self.gemm(False)
        a("s_branch A2_entry")
        a.label("Q_entry"); a.vm = []
        self.gemm(True)
        a.label("A2_entry"); a.fence(8); a.vm = []
        self.a2()
        a.label("B_entry"); a.vm = []
        if "onlya" not in self.opts:
            from gen_b import gen_b
            gen_b(self)
        a.label("K_exit")
        a("s_endpgm")
        a.raw('''.section .rodata,"a"
.p2align 6
.amdhsa_kernel %s
  .amdhsa_next_free_vgpr 128
  .amdhsa_next_free_sgpr 102
  .amdhsa_accum_offset 128
  .amdhsa_group_segment_fixed_size 0
  .amdhsa_kernarg_size 104
  .amdhsa_user_sgpr_count 2
  .amdhsa_user_sgpr_kernarg_segment_ptr 1
  .amdhsa_system_sgpr_workgroup_id_x 1
.end_amdhsa_kernel''' % KNAME)
        return a.text()

if __name__ == "__main__":
    stamps = "--stamps" in sys.argv
    out = [x for x in sys.argv[1:] if not x.startswith("--")][0]
    open(out, "w").write(Gen(stamps, [x[2:] for x in sys.argv[1:] if x.startswith("--")]).build())
```

```python
from asmlib import *
from gen import *

def gen_b(G):
    a = G.a
    S_J, S_GAM, S_RBK, S_CQ, S_D, S_S, S_KB, S_UB = 8, 9, 10, 11, 12, 13, 14, 15
    S_CH, S_HF = 48, 49
    LA, AI, CR, CI, DT, DS, KA, KT, FY, FX2 = 10, 11, 12, 13, 14, 15, 16, 17, 18, 19
    ACC = 20
    w0, w1, w2, w3, w4, w5, w6, t3, t5, w7, w8, w9, w10, t7 = [32 + 2 * k for k in range(14)]
    s_ = [60 + 2 * k for k in range(9)]
    S3a, S3b, S4a, S4b = 78, 80, 82, 84
    TP = [86 + 2 * k for k in range(6)]
    hw3, hw4, ht3, hw5, hw6, ht5, hw7, hw8, ht7 = range(98, 107)
    hs = list(range(107, 116)); hS3a, hS3b, hS4a, hS4b = range(116, 120)
    PT = list(range(32, 40)); PR = list(range(40, 48))
    YF, XF, XF2 = 60, 76, 32
    RS = 288
    USTG = 73728
    a("s_setprio 3")
    a("s_cmp_ge_u32 s%d, 14" % SLOT); a("s_cselect_b32 s6, 27, 0")
    a("s_lshl_b32 s7, s%d, 1" % SLOT); a("s_sub_u32 s7, s7, s6")
    a("s_mul_i32 s%d, s%d, 28" % (S_J, XCD)); a("s_add_u32 s%d, s%d, s7" % (S_J, S_J))
    a("s_lshr_b32 s%d, s%d, 5" % (S_GAM, S_J)); a("s_and_b32 s%d, s%d, 31" % (S_RBK, S_J)); a("s_lshr_b32 s%d, s%d, 1" % (S_CQ, S_J))
    a("s_and_b32 s%d, s%d, 3" % (S_CH, WAVE)); a("s_lshr_b32 s%d, s%d, 2" % (S_HF, WAVE))
    a("s_lshl_b32 s%d, s%d, 2" % (S_D, S_CQ)); a("s_add_u32 s%d, s%d, s%d" % (S_D, S_D, S_CH))
    a("v_and_b32 v1, 15, v%d" % LANE); a("v_lshrrev_b32 v2, 4, v%d" % LANE)
    a("v_lshrrev_b32 v3, 3, v%d" % LANE); a("v_mul_u32_u24 v3, 896, v3")
    a("v_and_b32 v4, 7, v%d" % LANE); a("v_lshl_add_u32 v3, v4, 4, v3")
    a("s_lshl_b32 s6, s%d, 3" % S_RBK); a("s_add_u32 s6, s6, s%d" % WAVE); a("s_mul_i32 s6, s6, 7168"); a("s_lshl_b32 s7, s%d, 7" % S_GAM); a("s_add_u32 s6, s6, s7")
    a("s_lshl_b32 s7, s%d, 10" % WAVE); a("s_add_u32 m0, s7, %d" % USTG)
    a("v_lshlrev_b32 v4, 2, v%d" % LANE); a("s_lshl_b32 s7, s%d, 1" % S_D); a("s_add_u32 s7, s7, s%d" % S_HF); a("s_lshl_b32 s7, s7, 8"); a("v_add_u32 v4, s7, v4")
    a("s_lshl_b32 s7, s%d, 1" % S_D); a("v_mov_b32 v5, s7")
    a("s_add_u32 s%d, s%d, 512" % (S_FA, S_J)); a("s_lshl_b32 s%d, s%d, 7" % (S_FA, S_FA)); a("v_mov_b32 v9, s%d" % S_FA)
    a("s_waitcnt lgkmcnt(0)")
    G.srd(SU, P_U, 1835008)
    G.stamp(0)
    a.vmop("buffer_load_dwordx4 v3, s[%d:%d], s6 offen lds" % (SU, SU + 3), "UT")
    G.srd(SFL, P_WS, 131072, WS_FL)
    a.vmop("buffer_load_dwordx2 v[124:125], v9, s[%d:%d], 0 offen sc1" % (SFL, SFL + 3), "UT")
    for r, p in ((LA, P_LA), (AI, P_AI), (CR, P_CR), (CI, P_CI)):
        a.vmop("global_load_dword v%d, v4, s[%d:%d]" % (r, p, p + 1), "PAR")
    a.vmop("global_load_ushort v%d, v5, s[%d:%d]" % (DT, P_DT, P_DT + 1), "PAR")
    a.vmop("global_load_ushort v%d, v5, s[%d:%d]" % (DS, P_DS, P_DS + 1), "PAR")
    if "pfb" in G.opts:
        a("s_lshl_b32 s6, s%d, 3" % SLOT); a("s_add_u32 s6, s6, s%d" % WAVE)
        a("s_mul_i32 s7, s%d, 28" % XCD); a("s_add_u32 s7, s7, s6"); a("s_sub_u32 s7, s7, 147")
        a("s_cmp_ge_u32 s6, 147")
        a("s_cselect_b32 s56, s%d, s%d" % (P_X, P_W)); a("s_cselect_b32 s57, s%d, s%d" % (P_X + 1, P_W + 1)); a("s_cselect_b32 s7, s7, s6")
        a("s_sub_u32 s58, s6, 175"); a("s_cmp_ge_u32 s6, 175")
        a("s_cselect_b32 s56, s%d, s56" % P_WO); a("s_cselect_b32 s57, s%d, s57" % (P_WO + 1)); a("s_cselect_b32 s7, s58, s7")
        a("s_lshl_b32 s7, s7, 13"); a("v_lshlrev_b32 v6, 7, v%d" % LANE); a("v_add_u32 v6, s7, v6")
        a.vmop("global_load_dword v127, v6, s[56:57]", "PF")
    G.srd(SUT, P_WS, 1835008, WS_UT); G.srd(SDBG, P_DBG, 256); G.srd(SOUT, P_OUT, 3670016)
    a("v_bfe_u32 v3, v%d, 2, 2" % LANE); a("v_lshl_add_u32 v3, v2, 3, v3"); a("v_lshlrev_b32 v3, 7, v3")
    a("v_and_b32 v4, 3, v%d" % LANE); a("v_lshl_add_u32 v3, v4, 3, v3")
    a("s_lshl_b32 s6, s%d, 5" % S_CH); a("s_lshl_b32 s7, s%d, 12" % S_HF); a("s_add_u32 s6, s6, s7"); a("s_add_u32 s6, s6, %d" % USTG); a("v_add_u32 v3, s6, v3")
    a("s_lshl_b32 s6, s%d, 6" % S_GAM); a("s_lshl_b32 s7, s%d, 4" % S_CH); a("s_add_u32 s6, s6, s7"); a("s_lshl_b32 s6, s6, 12")
    a("s_lshl_b32 s7, s%d, 7" % S_RBK); a("s_add_u32 s6, s6, s7"); a("s_lshl_b32 s7, s%d, 6" % S_HF); a("s_add_u32 s6, s6, s7")
    a("v_lshlrev_b32 v4, 12, v1"); a("v_lshl_add_u32 v4, v2, 4, v4")
    a("s_mul_i32 s%d, s%d, 9216" % (S_KB, WAVE))
    a("v_mul_u32_u24 v5, %d, v1" % RS); a("v_lshl_add_u32 v5, v2, 4, v5"); a("v_add_u32 v%d, s%d, v5" % (FY, S_KB))
    a("v_min_u32 v6, 8, v1"); a("v_mul_u32_u24 v6, %d, v6" % RS); a("v_lshl_add_u32 v6, v2, 4, v6"); a("v_add_u32 v%d, s%d, v6" % (FX2, S_KB))
    a.vmwait("UT"); a("s_barrier")
    for hh in range(2): a("ds_read_b64_tr_b16 %s, v3 offset:%d" % (vr(YF + 2 * hh, 2), hh * 512))
    a("v_readfirstlane_b32 s%d, v124" % S_F0); a("v_readfirstlane_b32 s%d, v125" % S_F1)
    a("s_waitcnt lgkmcnt(0)")
    a.vmop("buffer_store_dwordx4 %s, v4, s[%d:%d], s6 offen sc1" % (vr(YF, 4), SUT, SUT + 3), "UTS")
    G.stamp(1)
    a("s_and_b32 s6, s%d, 3" % S_GAM); a("s_lshl_b32 s6, s6, 6"); a("s_lshr_b32 s7, s%d, 2" % S_GAM); a("s_lshl_b32 s7, s7, 2")
    a("s_add_u32 s6, s6, s7"); a("s_add_u32 s51, s6, 4")
    SKX = 68
    G.srd(SKX, P_WS, 448 * 4096, WS_KX)
    def bcast_group(Lskip):
        a("s_cmp_lg_u32 s7, 31"); a("s_cbranch_scc1 %s" % Lskip)
        a("v_lshlrev_b32 v3, 7, v%d" % LANE); a("v_mov_b32 v4, 1"); a("s_lshl_b32 s6, s%d, 12" % S_GAM); a("s_add_u32 s6, s6, 65536")
        a("s_mov_b64 exec, 0xffffffff")
        a("buffer_atomic_add v4, v3, s[%d:%d], s6 offen sc1" % (SFL, SFL + 3))
        a("s_mov_b64 exec, -1")
    a("s_cmp_ge_u32 s%d, 14" % SLOT); a("s_cbranch_scc1 B_heavy")
    a("s_waitcnt vmcnt(0)"); a("s_barrier")
    a("s_cmp_lg_u32 s%d, 7" % WAVE); a("s_cbranch_scc1 B_join")
    G.atomic_ret(51, 3, 4, 7)
    bcast_group("B_join")
    a("s_branch B_join")
    a.label("B_heavy")
    a.vmwait("PAR")
    a("v_lshlrev_b32 v%d, 16, v%d" % (DT, DT)); a("v_lshlrev_b32 v%d, 16, v%d" % (DS, DS))
    a("s_mov_b32 s50, 0x%x" % LOG2E)
    a("v_mul_f32 v%d, s50, v%d" % (DT, DT)); a("v_exp_f32 v%d, v%d" % (DT, DT))
    a("s_mov_b32 s6, 0x7fff7fff")
    a("v_and_b32 v3, s6, v%d" % CR); a("v_and_b32 v5, s6, v%d" % CI)
    a("v_pk_max_u16 v3, v3, v5")
    a("v_lshrrev_b32 v4, 16, v3"); a("v_and_b32 v3, 0xffff, v3"); a("v_max_u32 v3, v3, v4")
    a("v_cvt_pk_bf16_f32 v%d, v%d, v%d" % (DT, DT, DT)); a("v_lshlrev_b32 v%d, 16, v%d" % (DT, DT))
    for sh in (1, 2, 4, 8): a("v_max_u32_dpp v3, v3, v3 row_shr:%d row_mask:0xf bank_mask:0xf" % sh)
    a("v_max_u32_dpp v3, v3, v3 row_bcast:15 row_mask:0xa bank_mask:0xf")
    a("v_max_u32_dpp v3, v3, v3 row_bcast:31 row_mask:0xc bank_mask:0xf")
    a("v_mul_f32 v%d, 0x%x, v%d" % (KA, LOG2E | 0x80000000, DT)); a("v_mul_f32 v%d, 0.15915494, v%d" % (KT, DT))
    a("v_readlane_b32 s6, v3, 63")
    a("s_lshr_b32 s6, s6, 7"); a("s_sub_u32 s%d, 136, s6" % S_S)
    a("s_mov_b32 m0, s%d" % S_KB); a("v_mov_b32 v3, 0x3c00")
    a("ds_write_addtid_b32 v3 offset:0")
    for k in range(12): a("v_mov_b32 v%d, 0" % (ACC + k))
    a("s_mov_b32 s77, 0"); a("s_mov_b32 s78, 0x41000000"); a("s_mov_b32 s79, 0x43000000")

    def cmul_batch(lst):
        assert len(lst) <= len(TP)
        for (d, x, y), t in zip(lst, TP): a("v_pk_mul_f32 %s, %s, %s op_sel:[0,0] op_sel_hi:[0,1]" % (vr(t, 2), vr(x, 2), vr(y, 2)))
        for (d, x, y), t in zip(lst, TP): a("v_pk_fma_f32 %s, %s, %s, %s op_sel:[1,1,0] op_sel_hi:[1,0,1] neg_lo:[1,0,0]" % (vr(d, 2), vr(x, 2), vr(y, 2), vr(t, 2)))
    def cvt(h, x, conj=False): a("v_cvt_pk_f16_f32 v%d, v%d, %sv%d" % (h, x, "-" if conj else "", x + 1))
    def wr(reg, row): a("ds_write_addtid_b32 v%d offset:%d" % (reg, row * RS))
    def prods(lst, extra=()):
        extra = list(extra)
        n = len(lst)
        for k in range(n + 4):
            if k < n: a("v_pk_mul_f16 v%d, v%d, v%d op_sel:[0,0] op_sel_hi:[0,1]" % (PT[k % 8], lst[k][1], lst[k][2]))
            if 0 <= k - 2 < n:
                j = k - 2
                a("v_pk_fma_f16 v%d, v%d, v%d, v%d op_sel:[1,1,0] op_sel_hi:[1,0,1] neg_lo:[1,0,0]" % (PR[j % 8], lst[j][1], lst[j][2], PT[j % 8]))
            if 0 <= k - 4 < n: wr(PR[(k - 4) % 8], lst[k - 4][0])
            if extra: a(extra.pop(0))
        for x in extra: a(x)
    X0, X1, X2 = 16, 1, 17
    a.label("KG_loop")
    for r, d in ((LA, 3), (AI, 4), (CR, 5), (CI, 6)):
        a("v_lshlrev_b32 v%d, 16, v%d" % (d, r)); a("v_lshrrev_b32 v%d, 16, v%d" % (r, r))
    a("v_mul_f32 v3, s50, v3"); a("v_exp_f32 v3, v3")
    a("v_mul_f32 v4, v4, v%d" % KT)
    a("v_ldexp_f32 v%d, v5, s%d" % (s_[0], S_S)); a("v_ldexp_f32 v%d, v6, s%d" % (s_[0] + 1, S_S))
    a("v_cvt_pk_bf16_f32 v3, v3, v3"); a("v_lshlrev_b32 v3, 16, v3"); a("v_mul_f32 v3, v3, v%d" % KA)
    m = [TP[0], TP[0] + 1, TP[1]]; ph = [TP[1] + 1, TP[2], TP[2] + 1]
    a("v_mul_f32 v%d, s78, v4" % ph[1]); a("v_mul_f32 v%d, s79, v4" % ph[2])
    a("v_fract_f32 v%d, v4" % ph[0]); a("v_fract_f32 v%d, v%d" % (ph[1], ph[1])); a("v_fract_f32 v%d, v%d" % (ph[2], ph[2]))
    a("v_mul_f32 v%d, s78, v3" % m[1]); a("v_mul_f32 v%d, s79, v3" % m[2])
    W = [w0, w3, w7]
    for k in range(3): a("v_cos_f32 v%d, v%d" % (W[k], ph[k])); a("v_sin_f32 v%d, v%d" % (W[k] + 1, ph[k]))
    a("v_exp_f32 v%d, v3" % m[0]); a("v_exp_f32 v%d, v%d" % (m[1], m[1])); a("v_exp_f32 v%d, v%d" % (m[2], m[2]))
    cvt(hs[0], s_[0])
    for k in range(3): a("v_mul_f32 v%d, v%d, v%d" % (W[k], W[k], m[k])); a("v_mul_f32 v%d, v%d, v%d" % (W[k] + 1, W[k] + 1, m[k]))
    cmul_batch([(w4, w3, w3), (w8, w7, w7), (s_[1], s_[0], w0), (w1, w0, w0)])
    Lit1 = a.newlabel("it1"); Lnp = a.newlabel("nopub")
    a("s_cmp_lg_u32 s77, 0"); a("s_cbranch_scc1 %s" % Lnp)
    a.vmwait("UTS"); a("s_barrier")
    a("s_cmp_lg_u32 s%d, 7" % WAVE); a("s_cbranch_scc1 %s" % Lnp)
    a("v_mov_b32 v3, s51"); a("v_mov_b32 v8, 1"); a("s_mov_b64 exec, 1")
    a("buffer_atomic_add v8, v3, s[%d:%d], 0 offen sc0 sc1" % (SDBG, SDBG + 3))
    a("s_mov_b64 exec, -1")
    a.label(Lnp)
    kp = [int(o[2:]) for o in G.opts if o.startswith("kp")]
    a("s_setprio %d" % (kp[0] if kp else 3))
    cvt(hw3, w3, True); cvt(hw7, w7); wr(hw3, 1)
    cmul_batch([(w5, w4, w4), (w9, w8, w8), (s_[2], s_[1], w0), (s_[3], s_[1], w1), (w2, w1, w1), (t3, w3, w4)])
    cvt(hw4, w4, True); cvt(hw8, w8); cvt(hs[1], s_[1]); wr(hw4, 2); wr(hs[1], X0 + 0)
    cmul_batch([(w6, w5, w5), (w10, w9, w9), (s_[4], s_[2], w1), (t7, w7, w8), (s_[5], s_[1], w2), (s_[6], s_[2], w2)])
    cvt(hw5, w5, True); cvt(ht3, t3, True); cvt(hs[2], s_[2]); cvt(hs[3], s_[3])
    wr(hw5, 4); wr(ht3, 3); wr(hs[2], X0 + 1); wr(hs[3], X0 + 2)
    cmul_batch([(t5, w5, w6), (s_[7], s_[3], w2), (s_[8], s_[4], w2), (S3a, s_[4], w9)])
    cvt(hw6, w6, True); cvt(ht7, t7); cvt(hs[4], s_[4]); cvt(hs[5], s_[5]); cvt(hs[6], s_[6])
    wr(hw6, 8); wr(hs[4], X0 + 3); wr(hs[5], X0 + 4); wr(hs[6], X0 + 5)
    cmul_batch([(S3b, s_[8], w9), (S4a, s_[8], w10)])
    cvt(ht5, t5, True); cvt(hs[7], s_[7]); cvt(hs[8], s_[8]); cvt(hS3a, S3a)
    wr(ht5, 12); wr(hs[7], X0 + 6); wr(hs[8], X0 + 7)
    cmul_batch([(S4b, S3b, w10)])
    cvt(hS3b, S3b); cvt(hS4a, S4a)
    lo = [None, hw3, hw4, ht3]; hi = [None, hw5, hw6, ht5]; M = [None, hw7, hw8, ht7]
    prods([(m0 + 4 * m1, lo[m0], hi[m1]) for m1 in (1, 2, 3) for m0 in (1, 2, 3)] + [(X0 + 8 + k, hs[k + 1], hw7) for k in range(8)],
          ["v_cvt_pk_f16_f32 v%d, v%d, v%d" % (hS4b, S4b, S4b + 1)])
    rd1 = []
    for ks in range(4):
        rd1.append("ds_read_b128 %s, v%d offset:%d" % (vr(YF + 4 * ks, 4), FY, ks * 64))
        rd1.append("ds_read_b128 %s, v%d offset:%d" % (vr(XF + 4 * ks, 4), FY, X0 * RS + ks * 64))
    for x in rd1: a(x)
    wr(hS3a, X1 + 8); wr(hS3b, X1 + 9); wr(hS4a, X2 + 0); wr(hS4b, X2 + 4); wr(hs[0], X2 + 8)
    p2 = ([(X1 + k, hs[2 * k + 2], hw8) for k in range(4)] + [(X1 + 4 + k, hs[2 * k + 2], ht7) for k in range(4)]
          + [(X1 + 8 + 2 * i, hS3a, M[i]) for i in (1, 2, 3)] + [(X1 + 9 + 2 * i, hS3b, M[i]) for i in (1, 2, 3)]
          + [(X2 + i, hS4a, M[i]) for i in (1, 2, 3)] + [(X2 + 4 + i, hS4b, M[i]) for i in (1, 2, 3)])
    prods(p2[:8])
    Lc1 = a.newlabel("chk1"); Lc2 = a.newlabel("chk2")
    a("s_cmp_lg_u32 s77, 0"); a("s_cbranch_scc1 %s" % Lc2)
    a("s_cmp_lg_u32 s%d, 7" % WAVE); a("s_cbranch_scc1 %s" % Lc2)
    a("s_waitcnt vmcnt(0)"); a("v_readfirstlane_b32 s7, v8")
    bcast_group(Lc2)
    a.label(Lc2)
    a("s_waitcnt lgkmcnt(8)")
    mf0 = ["v_mfma_f32_16x16x32_f16 %s, %s, %s, %s" % (vr(ACC, 4), vr(XF + 4 * ks, 4), vr(YF + 4 * ks, 4), vr(ACC, 4)) for ks in range(4)]
    prods(p2[8:], [mf0[0], "s_nop 0", mf0[1], "s_nop 0", mf0[2], "s_nop 0", mf0[3]])
    for ks in range(4):
        a("ds_read_b128 %s, v%d offset:%d" % (vr(XF + 4 * ks, 4), FY, X1 * RS + ks * 64))
        a("ds_read_b128 %s, v%d offset:%d" % (vr(XF2 + 4 * ks, 4), FX2, X2 * RS + ks * 64))
    for ks in range(4):
        a("s_waitcnt lgkmcnt(%d)" % (6 - 2 * ks))
        a("v_mfma_f32_16x16x32_f16 %s, %s, %s, %s" % (vr(ACC + 4, 4), vr(XF + 4 * ks, 4), vr(YF + 4 * ks, 4), vr(ACC + 4, 4)))
        a("v_mfma_f32_16x16x32_f16 %s, %s, %s, %s" % (vr(ACC + 8, 4), vr(XF2 + 4 * ks, 4), vr(YF + 4 * ks, 4), vr(ACC + 8, 4)))
    a("s_add_u32 s77, s77, 1"); a("s_cmp_lt_u32 s77, 2"); a("s_cbranch_scc1 KG_loop")
    G.stamp(2)
    a("v_lshlrev_b32 v8, 4, v%d" % LANE)
    a("v_add_f32 v%d, v%d, v%d" % (DT, DT, DT)); a("s_sub_u32 s7, 0, s%d" % S_S)
    for k in range(12): a("v_mul_f32 v%d, v%d, v%d" % (ACC + k, ACC + k, DT))
    for k in range(12): a("v_ldexp_f32 v%d, v%d, s7" % (ACC + k, ACC + k))
    a("v_add_u32 v3, s%d, v8" % S_KB)
    for k in range(3): a("ds_write_b128 v3, %s offset:%d" % (vr(ACC + 4 * k, 4), 1024 * k))
    a("s_xor_b32 s6, s%d, 4" % WAVE); a("s_mul_i32 s6, s6, 9216"); a("v_add_u32 v3, s6, v8")
    a("s_lshl_b32 s6, s%d, 11" % S_CH); a("s_add_u32 s59, s6, %d" % USTG)
    a("v_cmp_le_u32 vcc, 2, v2")
    a("s_waitcnt lgkmcnt(0)"); a("s_barrier")
    G.stamp(3)
    LT2 = a.newlabel("own2"); Lj = a.newlabel("ownj")
    a("s_cmp_lg_u32 s%d, 0" % S_HF); a("s_cbranch_scc1 %s" % LT2)
    for q in range(2): a("ds_read_b128 %s, v3 offset:%d" % (vr(32 + 4 * q, 4), q * 1024))
    a("v_lshrrev_b32 v3, 1, v2"); a("v_lshlrev_b32 v3, 8, v3"); a("v_lshl_add_u32 v3, v1, 4, v3"); a("v_and_b32 v4, 1, v2"); a("v_lshl_add_u32 v3, v4, 3, v3")
    a("v_add_u32 v44, s59, v3")
    a("v_lshlrev_b32 v3, 7, v2"); a("v_lshl_add_u32 v3, v1, 3, v3"); a("v_add_u32 v3, 528, v3"); a("v_add_u32 v4, 4, v3")
    a("v_lshlrev_b32 v5, 7, v2"); a("v_lshl_add_u32 v5, v1, 2, v5"); a("v_add_u32 v5, %d, v5" % (784 - 256)); a("v_add_u32 v6, 64, v5")
    a("v_cndmask_b32 v3, v3, v5, vcc"); a("v_cndmask_b32 v4, v4, v6, vcc")
    a("v_add_u32 v3, s59, v3"); a("v_add_u32 v4, s59, v4")
    a("s_waitcnt lgkmcnt(0)")
    for k in range(0, 8, 2): a("v_pk_add_f32 %s, %s, %s" % (vr(32 + k, 2), vr(32 + k, 2), vr(ACC + k, 2)))
    for k in range(4): a("v_cvt_pk_bf16_f32 v%d, v%d, v%d" % (40 + k, 32 + 2 * k, 33 + 2 * k))
    a("ds_write_b64 v44, v[40:41] offset:16")
    a("ds_write_b32 v3, v42"); a("ds_write_b32 v4, v43")
    a("s_branch %s" % Lj)
    a.label(LT2)
    a("ds_read_b128 v[32:35], v3 offset:2048")
    a("v_mov_b32 v3, 0"); a("v_cndmask_b32 v3, v3, v%d, vcc" % DS); a("v_add_f32 v%d, v%d, v3" % (ACC + 8, ACC + 8))
    a("v_lshlrev_b32 v3, 7, v2"); a("v_lshl_add_u32 v3, v1, 1, v3"); a("v_add_u32 v3, 1040, v3")
    a("v_cmp_eq_u32 vcc, 32, v%d" % LANE); a("v_mov_b32 v5, 14"); a("v_cndmask_b32 v4, v3, v5, vcc")
    a("v_add_u32 v3, s59, v3"); a("v_add_u32 v4, s59, v4")
    a("s_waitcnt lgkmcnt(0)")
    for k in (0, 2): a("v_pk_add_f32 %s, %s, %s" % (vr(32 + k, 2), vr(32 + k, 2), vr(ACC + 8 + k, 2)))
    a("v_cvt_pk_bf16_f32 v36, v32, v33"); a("v_cvt_pk_bf16_f32 v37, v34, v35")
    a("s_mov_b32 s6, -1"); a("s_mov_b32 s7, 1"); a("s_mov_b64 exec, s[6:7]")
    a("ds_write_b16 v4, v36")
    a("s_mov_b64 exec, 0xffffffff")
    a("ds_write_b16_d16_hi v3, v36 offset:32")
    a("ds_write_b16 v3, v37 offset:64"); a("ds_write_b16_d16_hi v3, v37 offset:96")
    a("s_mov_b64 exec, -1")
    a.label(Lj)
    a("s_waitcnt lgkmcnt(0)"); a("s_barrier")
    Lnpub = a.newlabel("npub")
    a("s_cmp_eq_u32 s%d, 0" % S_HF); a("s_cbranch_scc1 %s" % Lnpub)
    a("v_add_u32 v3, s59, v8")
    a("ds_read_b128 v[32:35], v3"); a("ds_read_b128 v[36:39], v3 offset:1024")
    a("s_lshl_b32 s6, s%d, 12" % S_D)
    a("s_waitcnt lgkmcnt(0)")
    a("buffer_store_dwordx4 v[32:35], v8, s[%d:%d], s6 offen sc1" % (SKX, SKX + 3))
    a("s_mov_b64 exec, 1")
    a("buffer_store_dwordx4 v[36:39], v8, s[%d:%d], s6 offen offset:1024 sc1" % (SKX, SKX + 3))
    a("s_mov_b64 exec, -1")
    a.label(Lnpub)
    a.label("B_join"); a.fence(4)
    UR = 120
    a("v_lshlrev_b32 v8, 4, v%d" % LANE)
    G.poll_flag(3, 4, S_F0, 0)
    Lnsig = a.newlabel("nsig")
    a("s_cmp_lt_u32 s%d, 14" % SLOT); a("s_cbranch_scc1 %s" % Lnsig)
    a("s_cmp_eq_u32 s%d, 0" % S_HF); a("s_cbranch_scc1 %s" % Lnsig)
    a("s_xor_b32 s6, s%d, 128" % S_FA); a("v_mov_b32 v3, s6"); a("v_mov_b32 v4, 1"); a("s_mov_b64 exec, 1")
    a("buffer_atomic_add v4, v3, s[%d:%d], 0 offen offset:4 sc1" % (SFL, SFL + 3))
    a("s_mov_b64 exec, -1")
    a.label(Lnsig)
    a("s_setprio %d" % (0 if "bprio" not in G.opts else 1))
    a("s_lshl_b32 s6, s%d, 12" % S_D); a("s_lshl_b32 s7, s%d, 11" % S_HF); a("s_add_u32 s6, s6, s7")
    for k in range(2):
        a("buffer_load_dwordx4 %s, v8, s[%d:%d], s6 offen offset:%d %s" % (vr(UR + 4 * k, 4), SUT, SUT + 3, 1024 * k, G.HL))
    a("s_lshl_b32 s%d, s%d, 14" % (S_KB, S_CH)); a("s_lshl_b32 s%d, s%d, 12" % (S_UB, S_CH)); a("s_add_u32 s%d, s%d, 65536" % (S_UB, S_UB))
    D = lambda k: 48 + 8 * k
    Rr = 32
    a("v_lshrrev_b32 v4, 1, v8"); a("v_lshrrev_b32 v5, 2, v8"); a("v_lshrrev_b32 v6, 3, v8")
    Lown = a.newlabel("eown"); Lrd = a.newlabel("erd"); Lo1 = a.newlabel("eo1"); Lp1 = a.newlabel("ep1")
    a("s_cmp_ge_u32 s%d, 14" % SLOT); a("s_cbranch_scc1 %s" % Lown)
    a("s_cmp_lg_u32 s%d, 0" % S_HF); a("s_cbranch_scc1 B_noexp")
    Lq = a.newlabel("pq"); Lqd = a.newlabel("pqd")
    a("s_mov_b32 s6, 0"); a("s_add_u32 s7, s%d, 4" % S_F1); a("s_mov_b64 exec, 1")
    a.label(Lq)
    a("buffer_load_dword v3, v9, s[%d:%d], 0 offen offset:4 sc1" % (SFL, SFL + 3))
    a("s_add_u32 s6, s6, 1"); a("s_waitcnt vmcnt(0)")
    a("v_cmp_eq_u32 vcc, s7, v3"); a("s_cbranch_vccnz %s" % Lqd)
    a("s_sleep %d" % G.SLEEP); a("s_cmp_lt_u32 s6, 0x%x" % POLL_CAP); a("s_cbranch_scc1 %s" % Lq)
    a.label(Lqd)
    a("s_mov_b64 exec, -1")
    a("s_lshl_b32 s6, s%d, 12" % S_D)
    gl = lambda kind, dst, va, off: a("buffer_load_%s %s, v%d, s[%d:%d], s6 offen offset:%d %s" % (kind, dst, va, SKX, SKX + 3, off, G.HL))
    gl("dwordx4", vr(Rr, 4), 8, 16); gl("dword", "v%d" % (Rr + 4), 8, 12); gl("dwordx2", vr(Rr + 6, 2), 4, 272); gl("dword", "v%d" % (Rr + 5), 4, 268)
    gl("dword", "v%d" % (Rr + 8), 5, 784); gl("dword", "v%d" % (Rr + 9), 5, 780)
    a("s_branch %s" % Lrd)
    a.label(Lown)
    a("v_add_u32 v3, s59, v8"); a("v_add_u32 v4, s59, v4"); a("v_add_u32 v5, s59, v5"); a("v_add_u32 v6, s59, v6")
    a("s_cmp_lg_u32 s%d, 0" % S_HF); a("s_cbranch_scc1 %s" % Lo1)
    a("ds_read_b128 %s, v3 offset:16" % vr(Rr, 4)); a("ds_read_b32 v%d, v3 offset:12" % (Rr + 4))
    a("ds_read_b64 %s, v4 offset:272" % vr(Rr + 6, 2)); a("ds_read_b32 v%d, v4 offset:268" % (Rr + 5))
    a("ds_read_b32 v%d, v5 offset:784" % (Rr + 8)); a("ds_read_b32 v%d, v5 offset:780" % (Rr + 9))
    a("s_branch %s" % Lrd)
    a.label(Lo1)
    for p in range(2):
        a("ds_read_u16 v%d, v6 offset:%d" % (Rr + 10 + 2 * p, 1038 + 128 * p)); a("ds_read_u16 v%d, v6 offset:%d" % (Rr + 11 + 2 * p, 1040 + 128 * p))
    a("ds_read_u16 v%d, v6 offset:1036" % (Rr + 14))
    a.label(Lrd)
    a("s_mov_b32 s6, 0xffff"); a("s_mov_b32 s7, 0x01000302"); a("s_mov_b32 s76, 0x03020302"); a("s_mov_b32 s77, 0x01000100")
    a("v_and_b32 v3, 1, v%d" % LANE); a("v_cmp_eq_u32 vcc, 1, v3")
    a("s_waitcnt vmcnt(0) lgkmcnt(0)"); a.vm = []
    L3 = a.newlabel("e1"); L4 = a.newlabel("e2")
    a("s_cmp_lg_u32 s%d, 0" % S_HF); a("s_cbranch_scc1 %s" % L3)
    d = D(0)
    a("v_perm_b32 v%d, v%d, v%d, s7" % (d, Rr + 7, Rr + 7)); a("v_perm_b32 v%d, v%d, v%d, s76" % (d + 1, Rr + 6, Rr + 6))
    a("v_perm_b32 v%d, v%d, v%d, s7" % (d + 2, Rr + 6, Rr + 6)); a("v_perm_b32 v%d, v%d, v%d, s76" % (d + 3, Rr + 5, Rr + 5))
    a("s_mov_b64 exec, 0xffffffff")
    a("v_bfi_b32 v%d, s6, v%d, v%d" % (d, Rr + 3, Rr + 2)); a("v_bfi_b32 v%d, s6, v%d, v%d" % (d + 1, Rr + 2, Rr + 1))
    a("v_bfi_b32 v%d, s6, v%d, v%d" % (d + 2, Rr + 1, Rr)); a("v_bfi_b32 v%d, s6, v%d, v%d" % (d + 3, Rr, Rr + 4))
    a("s_mov_b64 exec, -1")
    d = D(1)
    a("v_perm_b32 v%d, v%d, v%d, s76" % (d, Rr + 8, Rr + 8)); a("v_perm_b32 v%d, v%d, v%d, s77" % (d + 1, Rr + 8, Rr + 8))
    a("v_bfi_b32 v%d, s6, v%d, v%d" % (d + 2, Rr + 8, Rr + 9)); a("v_perm_b32 v%d, v%d, v%d, s76" % (d + 3, Rr + 9, Rr + 9))
    a("v_mov_b32 v10, 0"); a("v_mov_b32 v11, 0")
    a("s_branch %s" % L4)
    a.label(L3)
    for p in range(2):
        d = D(p); V0, V1 = Rr + 10 + 2 * p, Rr + 11 + 2 * p
        a("v_lshl_or_b32 v%d, v%d, 16, v%d" % (d, V1, V1)); a("v_lshl_or_b32 v%d, v%d, 16, v%d" % (d + 2, V0, V0)); a("v_mov_b32 v%d, v%d" % (d + 3, d + 2))
        a("v_cndmask_b32 v%d, v%d, v%d, vcc" % (V0, V0, V1)); a("v_lshl_or_b32 v%d, v%d, 16, v%d" % (d + 1, V0, V1))
    a("v_mov_b32 v10, v%d" % (D(0) + 2)); a("v_lshl_or_b32 v11, v%d, 16, v%d" % (Rr + 14, Rr + 14))
    a.label(L4)
    a("v_sub_u32 v3, 1008, v8")
    a("s_sub_u32 s6, 1, s%d" % S_HF); a("s_lshl_b32 s6, s6, 11"); a("s_add_u32 s6, s6, s%d" % S_KB)
    for sg in range(4):
        a("v_xor_b32 v4, %d, v3" % (sg << 6)); a("v_add_u32 v%d, s6, v4" % (Rr + sg))
    for k in range(2): a("ds_write_b128 v%d, %s offset:%d" % (Rr, vr(D(k), 4), 1024 * (1 - k)))
    for k in range(2): a("ds_read_b64 %s, v%d offset:%d" % (vr(D(k) + 4, 2), Rr, 1024 * (1 - k) + 16))
    a("s_waitcnt lgkmcnt(0)")
    a("s_mov_b64 exec, 1"); a("v_mov_b32 v%d, v10" % (D(0) + 4)); a("v_mov_b32 v%d, v11" % (D(0) + 5)); a("s_mov_b64 exec, -1")
    E = 64
    for k in range(2):
        d = D(k); e = E + 12 * k
        for q in range(4): a("v_alignbit_b32 v%d, v%d, v%d, 16" % (e + q, d + q + 1, d + q))
        a("ds_write_b128 v%d, %s offset:%d" % (Rr + 1, vr(e, 4), 4096 + 1024 * (1 - k)))
        for q in range(4): a("v_mov_b32 v%d, v%d" % (e + 4 + q, d + 1 + q))
        a("ds_write_b128 v%d, %s offset:%d" % (Rr + 2, vr(e + 4, 4), 8192 + 1024 * (1 - k)))
        for q in range(4): a("v_alignbit_b32 v%d, v%d, v%d, 16" % (e + 8 + q, d + q + 2, d + q + 1))
        a("ds_write_b128 v%d, %s offset:%d" % (Rr + 3, vr(e + 8, 4), 12288 + 1024 * (1 - k)))
    a.label("B_noexp"); a.fence(2)
    a("s_waitcnt vmcnt(0)")
    a("s_barrier")
    a("s_lshl_b32 s6, s%d, 11" % S_HF); a("s_add_u32 s6, s6, s%d" % S_UB); a("v_add_u32 v9, s6, v8")
    for k in range(2): a("ds_write_b128 v9, %s offset:%d" % (vr(UR + 4 * k, 4), 1024 * k))
    AA, BA, CA, AB, BB = 112, 120, 96, 32, 64
    a("v_lshrrev_b32 v3, 2, v1"); a("v_and_b32 v4, 3, v1"); a("v_sub_u32 v4, 3, v4")
    a("v_lshlrev_b32 v3, 3, v3"); a("v_lshlrev_b32 v5, 4, v2"); a("v_sub_u32 v3, v5, v3")
    a("s_sub_u32 s6, 1, s%d" % S_HF); a("s_lshl_b32 s6, s6, 8"); a("s_add_u32 s6, s6, s%d" % S_KB)
    a("v_lshlrev_b32 v5, 6, v4"); a("v_lshlrev_b32 v4, 12, v4"); a("v_add_u32 v4, s6, v4")
    for mm in range(4):
        for wh in range(2):
            a("v_add_u32 v6, %d, v3" % (216 - 64 * mm + 8 * wh)); a("v_xor_b32 v6, v6, v5"); a("v_add_u32 v%d, v6, v4" % (AA + 2 * mm + wh))
    a("s_lshl_b32 s7, s%d, 8" % S_HF)
    a("v_lshlrev_b32 v3, 5, v1"); a("v_lshl_add_u32 v3, v2, 4, v3"); a("v_subrev_u32 v10, s7, v3")
    a("s_sub_u32 s6, s%d, 288" % S_UB); a("v_add_u32 v11, s6, v10"); a("v_mov_b32 v12, 0")
    a("s_cmp_eq_u32 s%d, 0" % S_HF); a("s_cselect_b32 s77, 0x00ff0000, 0"); a("s_cselect_b32 s79, 0x0fff000f, 0"); a("s_mov_b32 s76, 0"); a("s_mov_b32 s78, 0")
    a("s_waitcnt lgkmcnt(0)"); a("s_barrier")
    G.stamp(4)
    Llo = a.newlabel("conv_lo"); Lout = a.newlabel("conv_out")
    a("s_cmp_lt_u32 s%d, 14" % SLOT); a("s_cbranch_scc1 %s" % Llo)
    def conv(ts):
        n = max(ts) + 1
        def rdA(mm, s):
            off = 512 * (7 - s)
            return ["ds_read_b64 %s, v%d offset:%d" % (vr(AB + 4 * s, 2), AA + 2 * mm, off), "ds_read_b64 %s, v%d offset:%d" % (vr(AB + 4 * s + 2, 2), AA + 2 * mm + 1, off)]
        def rdB(mm, q): return ["ds_read_b128 %s, v11 offset:%d" % (vr(BB + 4 * q, 4), 512 * q - 64 * mm + 256)]
        lst = [(ti, s, t - s) for ti, t in enumerate(ts) for s in range(t + 1)]
        lst.sort(key=lambda z: (z[1], -z[2]))
        lastA = {}; lastB = {}
        for k, (ti, s, q) in enumerate(lst): lastA[s] = k; lastB[q] = k
        for s in range(n):
            for x in rdA(0, s) + rdB(0, s): a(x)
        for mm in range(4):
            a("v_cmp_gt_i32 vcc, %d, v10" % (32 + 64 * mm))
            a("s_waitcnt lgkmcnt(0)")
            for k in range(4): a("v_cndmask_b32 v%d, v%d, v12, vcc" % (BB + k, BB + k))
            if mm == 0:
                a("s_mov_b64 exec, s[76:77]"); a("v_mov_b32 v%d, 0" % AB); a("v_mov_b32 v%d, 0" % (AB + 1))
                a("s_mov_b64 exec, s[78:79]"); a("v_mov_b32 v%d, 0" % (AB + 2)); a("v_mov_b32 v%d, 0" % (AB + 3))
                a("s_mov_b64 exec, -1")
            seen = set(); pend = []
            for k, (ti, s, q) in enumerate(lst):
                c = vr(CA + 4 * ti, 4)
                first = mm == 0 and ti not in seen; seen.add(ti)
                a("v_mfma_f32_16x16x32_bf16 %s, %s, %s, %s" % (c, vr(AB + 4 * s, 4), vr(BB + 4 * q, 4), "0" if first else c))
                for x in pend: a(x)
                pend = []
                if mm + 1 < 4:
                    if lastA[s] == k: pend += rdA(mm + 1, s)
                    if lastB[q] == k: pend += rdB(mm + 1, q)
            if pend: a("s_nop 3")
            for x in pend: a(x)
    conv([7, 6, 5, 4])
    a("s_mov_b32 s76, 0x04050607")
    a("s_branch %s" % Lout)
    a.label(Llo)
    conv([3, 2, 1, 0])
    a("s_mov_b32 s76, 0x00010203")
    a.label(Lout); a.fence(8)
    G.stamp(5)
    a("s_barrier")
    L5 = a.newlabel("x1"); L6 = a.newlabel("x2")
    a("s_lshl_b32 s6, s%d, 11" % WAVE); a("v_add_u32 v3, s6, v8")
    a("s_xor_b32 s6, s%d, 4" % WAVE); a("s_lshl_b32 s6, s6, 11"); a("v_add_u32 v4, s6, v8")
    a("s_cmp_eq_u32 s%d, 0" % S_HF); a("s_cbranch_scc1 %s" % L5)
    for k in range(2): a("ds_write_b128 v3, %s offset:%d" % (vr(CA + 4 * k, 4), 1024 * k))
    a("s_nop 3")
    for k in range(8): a("v_mov_b32 v%d, v%d" % (CA + k, CA + 8 + k))
    a("s_branch %s" % L6)
    a.label(L5)
    for k in range(2): a("ds_write_b128 v3, %s offset:%d" % (vr(CA + 8 + 4 * k, 4), 1024 * k))
    a.label(L6)
    a("s_waitcnt lgkmcnt(0)"); a("s_barrier")
    for k in range(2): a("ds_read_b128 %s, v4 offset:%d" % (vr(32 + 4 * k, 4), 1024 * k))
    a("v_lshlrev_b32 v3, 5, v1"); a("v_lshl_add_u32 v3, v2, 3, v3")
    a("s_mul_i32 s6, s%d, 2112" % S_CH); a("s_lshl_b32 s7, s%d, 10" % S_HF); a("s_add_u32 s6, s6, s7"); a("s_add_u32 s6, s6, 32768"); a("v_add_u32 v3, s6, v3")
    a("v_bfe_u32 v5, v%d, 2, 2" % LANE); a("v_mul_u32_u24 v5, 2112, v5"); a("v_lshl_add_u32 v5, v2, 5, v5")
    a("v_and_b32 v4, 3, v%d" % LANE); a("v_lshl_add_u32 v5, v4, 3, v5"); a("s_lshl_b32 s6, s%d, 8" % WAVE); a("s_add_u32 s6, s6, 32768"); a("v_add_u32 v5, s6, v5")
    a("s_lshr_b32 s6, s%d, 1" % WAVE); a("s_lshl_b32 s6, s6, 3"); a("s_lshr_b32 s6, s76, s6"); a("s_and_b32 s6, s6, 0xff"); a("s_lshl_b32 s6, s6, 1")
    a("s_and_b32 s7, s%d, 1" % WAVE); a("s_add_u32 s6, s6, s7"); a("s_mul_i32 s6, s6, %d" % (128 * 1792))
    a("s_lshl_b32 s7, s%d, 3" % S_CQ); a("s_add_u32 s6, s6, s7"); a("s_add_u32 s6, s6, 896"); a("s_add_u32 s7, s6, %d" % (64 * 1792))
    a("v_mul_u32_u24 v4, 1792, v%d" % LANE)
    a("s_waitcnt lgkmcnt(0)")
    for k in range(0, 8, 2): a("v_pk_add_f32 %s, %s, %s" % (vr(CA + k, 2), vr(CA + k, 2), vr(32 + k, 2)))
    for k in range(4): a("v_cvt_pk_bf16_f32 v%d, v%d, v%d" % (40 + k, CA + 2 * k, CA + 2 * k + 1))
    for k in range(2): a("ds_write_b64 v3, %s offset:%d" % (vr(40 + 2 * k, 2), 512 * k))
    a("s_waitcnt lgkmcnt(0)"); a("s_barrier")
    for k in range(2): a("ds_read_b64_tr_b16 %s, v5 offset:%d" % (vr(44 + 2 * k, 2), 128 * k))
    for k in range(2):
        a("s_waitcnt lgkmcnt(%d)" % (1 - k))
        a.vmop("buffer_store_dwordx2 %s, v4, s[%d:%d], s%d offen" % (vr(44 + 2 * k, 2), SOUT, SOUT + 3, 6 + k), "S")
    G.stamp(6)
    G.dump_stamps('B')
```

```python
import sys
from asmlib import *

KNAME = "concat_heads__linear_attn_block__ssm_conv_s4d__prompt_kernel"
NWG = 464
LDS = 81920
WS_PQ, WS_UT, WS_KV, WS_FL, WS_TS, WS_KX = 0, 0x200000, 0x400000, 0x480000, 0x500000, 0x600000
LOG2E = 0x3fb8aa3b
EPS = 0x358637bd
POLL_CAP = 1 << 15

XCD, SLOT, WAVE = 3, 4, 5
P_X, P_W, P_WO, P_U, P_LA, P_AI, P_CR, P_CI, P_DT, P_DS, P_OUT, P_DBG, P_WS = 16, 18, 20, 22, 24, 26, 28, 30, 32, 34, 36, 38, 40
S_F0, S_F1, S_FA = 42, 43, 100
SX, SW, SPQ, SKV, SOUT, SDBG, SWO, SUT, SU, SFL = 44, 48, 52, 56, 60, 64, 68, 52, 44, 72
TS0 = 80
LANE = 7

class Gen:
    def __init__(self, stamps=False, opts=()):
        self.a = Asm()
        self.opts = set(opts)
        self.stamps = stamps
        self.SLEEP = 2
        for o in self.opts:
            if o.startswith('sleep'): self.SLEEP = int(o[5:])
        self.HL = "nt" if "nt" in self.opts else ("" if "plain" in self.opts else "sc1")

    def srd(self, d, p, nbytes, off=0):
        a = self.a
        if off:
            a("s_add_u32 s%d, s%d, 0x%x" % (d, p, off)); a("s_addc_u32 s%d, s%d, 0" % (d + 1, p + 1))
        else:
            a("s_mov_b32 s%d, s%d" % (d, p)); a("s_mov_b32 s%d, s%d" % (d + 1, p + 1))
        a("s_mov_b32 s%d, 0x%x" % (d + 2, nbytes)); a("s_mov_b32 s%d, 0x00020000" % (d + 3))

    def stamp(self, k):
        if not self.stamps: return
        self.a("s_memrealtime s[%d:%d]" % (TS0 + 2 * k, TS0 + 2 * k + 1))
        self.a("s_waitcnt lgkmcnt(0)")

    def dump_stamps(self, role='A'):
        if not self.stamps: return
        a = self.a
        a.vmwait_all()
        self.stamp(9)
        if "hstamps" in self.opts:
            L = a.newlabel("hs")
            a("s_cmp_lg_u32 s%d, 0" % WAVE); a("s_cbranch_scc1 %s" % L)
            wg, pairs, base = (288, [(1, 2), (3, 4), (5, 6), (7, 8), (9, 9)], [36, 40, 44, 48, 52]) if role == "A" else (32, [(1, 2), (3, 4), (5, 9)], [56, 60, 12])
            a("s_cmp_lg_u32 s2, %d" % wg); a("s_cbranch_scc1 %s" % L)
            a("s_mov_b64 exec, 1")
            for (k1, k2), off in zip(pairs, base):
                a("s_sub_u32 s6, s%d, s%d" % (TS0 + 2 * k1, TS0)); a("s_sub_u32 s7, s%d, s%d" % (TS0 + 2 * k2, TS0))
                a("s_mul_i32 s7, s7, 10000"); a("s_add_u32 s6, s6, s7"); a("v_mov_b32 v1, s6"); a("v_mov_b32 v0, %d" % off)
                a("buffer_store_dword v1, v0, s[%d:%d], 0 offen" % (SDBG, SDBG + 3))
            a("s_mov_b64 exec, -1")
            a.label(L)
            return
        self.srd(76, P_WS, 0x100000, WS_TS)
        a("s_lshl_b32 s6, s2, 3"); a("s_add_u32 s6, s6, s%d" % WAVE); a("s_lshl_b32 s6, s6, 6")
        a("v_mov_b32 v0, s6")
        a("s_mov_b64 exec, 1")
        for k in range(10):
            a("v_mov_b32 v1, s%d" % (TS0 + 2 * k))
            a("buffer_store_dword v1, v0, s[76:79], 0 offen offset:%d" % (4 * k))
        a("s_mov_b64 exec, -1")

    def atomic_ret(self, s_off, va, vb, s_dst, srd=None):
        a = self.a
        SDBG = srd if srd is not None else globals()["SDBG"]
        a("v_mov_b32 v%d, s%d" % (va, s_off)); a("v_mov_b32 v%d, 1" % vb)
        a("s_mov_b64 exec, 1")
        a("buffer_atomic_add v%d, v%d, s[%d:%d], 0 offen sc0 sc1" % (vb, va, SDBG, SDBG + 3))
        a("s_mov_b64 exec, -1")
        a("s_waitcnt vmcnt(0)")
        a("v_readfirstlane_b32 s%d, v%d" % (s_dst, vb))

    def poll_flag(self, va, vv, s_old, off=0):
        a = self.a
        L = a.newlabel("poll"); D = a.newlabel("polld")
        a("s_mov_b32 s6, 0"); a("v_mov_b32 v%d, s%d" % (va, S_FA))
        a("s_mov_b64 exec, 1")
        a.label(L)
        a("buffer_load_dword v%d, v%d, s[%d:%d], 0 offen offset:%d sc1" % (vv, va, SFL, SFL + 3, off))
        a("s_add_u32 s6, s6, 1")
        a("s_waitcnt vmcnt(0)")
        a("v_cmp_ne_u32 vcc, s%d, v%d" % (s_old, vv))
        a("s_cbranch_vccnz %s" % D)
        a("s_sleep %d" % self.SLEEP)
        a("s_cmp_lt_u32 s6, 0x%x" % POLL_CAP)
        a("s_cbranch_scc1 %s" % L)
        a.label(D)
        a("s_mov_b64 exec, -1")

    def poll2(self, va, vv):
        a = self.a
        L = a.newlabel("poll"); D = a.newlabel("polld")
        a("s_mov_b32 s6, 0"); a("v_mov_b32 v%d, s%d" % (va, S_FA))
        a("s_mov_b64 exec, 1")
        a.label(L)
        a("buffer_load_dwordx2 %s, v%d, s[%d:%d], 0 offen sc1" % (vr(vv, 2), va, SFL, SFL + 3))
        a("s_add_u32 s6, s6, 1")
        a("s_waitcnt vmcnt(0)")
        a("v_cmp_ne_u64 vcc, s[%d:%d], %s" % (S_F0, S_F1, vr(vv, 2)))
        a("s_cbranch_vccnz %s" % D)
        a("s_sleep %d" % self.SLEEP)
        a("s_cmp_lt_u32 s6, 0x%x" % POLL_CAP)
        a("s_cbranch_scc1 %s" % L)
        a.label(D)
        a("s_mov_b64 exec, -1")

    def phi(self, base, n, tmp):
        a = self.a
        for k in range(0, n, 2): a("v_pk_mul_f32 %s, %s, s[14:15]" % (vr(tmp + k, 2), vr(base + k, 2)))
        for k in range(n):
            a("v_exp_f32_e64 v%d, v%d clamp" % (tmp + k, tmp + k))
            a("v_max_f32 v%d, s13, v%d" % (base + k, base + k))
        for k in range(0, n, 2): a("v_pk_add_f32 %s, %s, %s" % (vr(base + k, 2), vr(base + k, 2), vr(tmp + k, 2)))

    def gemm(self, isq):
        a = self.a
        XA, XW, XR0, XR1, FLV, DA, FA = 1, 2, 3, 4, 12, 6, 8
        FS = 32 if isq else 24
        F0, F1 = 16, 16 + FS
        ACC = 16 + 2 * FS
        XS = 96
        U = 7 if isq else 14
        RING = 4; XBASE = 32768; XRING = 3
        S_WB, S_T, S_RB, S_HP, S_M = 9, 10, 11, 12, 8
        S_X = 76
        Xs = lambda c, q: XS + ((c & 3) * 2 + q) * 4
        if isq:
            a("s_sub_u32 s10, s%d, 44" % SLOT)
            a("s_cmp_ge_u32 s10, 7"); a("s_cselect_b32 s6, 1, 0")
            a("s_mul_i32 s7, s6, 7"); a("s_sub_u32 s%d, s10, s7" % S_HP)
            a("s_lshl_b32 s%d, s%d, 7" % (S_WB, S_HP))
        else:
            a("s_sub_u32 s7, s%d, 28" % SLOT); a("s_lshr_b32 s6, s7, 3"); a("s_and_b32 s%d, s7, 7" % S_HP)
            a("s_mul_i32 s%d, s%d, 112" % (S_WB, S_HP)); a("s_add_u32 s%d, s%d, 896" % (S_WB, S_WB))
        a("s_lshl_b32 s%d, s%d, 1" % (S_RB, XCD)); a("s_add_u32 s%d, s%d, s6" % (S_RB, S_RB))
        a("s_lshl_b32 s6, s%d, 3" % S_RB); a("s_add_u32 s6, s6, s%d" % WAVE); a("s_mul_i32 s%d, s6, 14336" % S_X)
        a("s_add_u32 s%d, s%d, 7168" % (S_X + 1, S_X))
        a("s_lshl_b32 s%d, s2, 7" % S_FA)
        a("s_and_b32 s6, s%d, 1" % S_RB); a("s_lshl_b32 s6, s6, 2"); a("s_add_u32 s6, s6, s%d" % S_HP)
        a("s_cmp_ge_u32 s6, 7"); a("s_cselect_b32 s7, 7, 0"); a("s_sub_u32 s6, s6, s7")
        if "norot" in self.opts: a("s_mov_b32 s6, 0")
        a("s_lshl_b32 s69, s6, 7"); a("s_mul_i32 s68, s6, %d" % (64 * 2688))
        t = F0; I, Gq = F0 + 8, F0 + 9
        a("v_and_b32 v%d, 15, v%d" % (I, LANE)); a("v_lshrrev_b32 v%d, 4, v%d" % (Gq, LANE))
        a("v_lshrrev_b32 v%d, 3, v%d" % (t, LANE)); a("v_and_b32 v%d, 7, v%d" % (t + 1, LANE))
        a("v_xor_b32 v%d, v%d, v%d" % (t + 1, t + 1, t))
        a("v_mul_u32_u24 v%d, 896, v%d" % (t + 2, t)); a("v_lshl_add_u32 v%d, v%d, 4, v%d" % (XA, t + 1, t + 2))
        a("s_lshl_b32 s78, s%d, 11" % WAVE); a("s_add_u32 s78, s78, %d" % XBASE)
        a("s_and_b32 s6, s%d, 2" % WAVE); a("s_lshl_b32 s6, s6, 1")
        a("v_or_b32 v%d, s6, v%d" % (t + 4, Gq))
        a("v_lshrrev_b32 v%d, 1, v%d" % (t + 5, I)); a("v_xor_b32 v%d, v%d, v%d" % (t + 5, t + 5, t + 4))
        a("v_and_b32 v%d, 1, v%d" % (t + 6, I)); a("v_lshl_or_b32 v%d, v%d, 1, v%d" % (t + 5, t + 5, t + 6))
        a("v_lshrrev_b32 v%d, 3, v%d" % (t + 6, t + 5))
        a("v_and_b32 v%d, 7, v%d" % (t + 5, t + 5))
        if not isq: a("v_min_u32 v%d, 6, v%d" % (t + 5, t + 5))
        a("s_lshl_b32 s6, s%d, 2" % WAVE); a("v_add_u32 v%d, s6, v%d" % (t + 7, Gq)); a("v_mul_u32_u24 v%d, 2688, v%d" % (t + 7, t + 7))
        a("v_mul_u32_u24 v%d, %d, v%d" % (t + 6, 32 * 2688 if isq else 896, t + 6))
        a("v_lshl_add_u32 v%d, v%d, 4, v%d" % (t + 7, t + 5, t + 7)); a("v_add_u32 v%d, v%d, v%d" % (DA, t + 7, t + 6))
        a("s_lshl_b32 s%d, s%d, 10" % (S_M, WAVE))
        a("v_mov_b32 v0, s%d" % S_FA)
        a("s_waitcnt lgkmcnt(0)")
        self.srd(SX, P_X, 1835008); self.srd(SW, P_W, 1204224)
        self.stamp(0)
        def dma(u):
            if "nodma" in self.opts: return
            a("s_add_u32 m0, s%d, %d" % (S_M, (u % RING) * 8192))
            a("s_add_u32 s%d, s%d, s68" % (S_T, S_WB))
            a.vmop("buffer_load_dwordx4 v%d, s[%d:%d], s%d offen lds" % (DA, SW, SW + 3, S_T), ("W", u))
            a("s_add_u32 s68, s68, %d" % ((64 if isq else 32) * 2688)); a("s_cmp_ge_u32 s68, %d" % (448 * 2688)); a("s_cselect_b32 s68, 0, s68")
        def xload(c):
            if "noxl" in self.opts: return
            for q in range(2):
                a("s_add_u32 m0, s78, %d" % ((c % XRING) * 16384 + q * 1024))
                a("s_add_u32 s%d, s%d, s69" % (S_T, S_X + q))
                a.vmop("buffer_load_dwordx4 v%d, s[%d:%d], s%d offen lds" % (XA, SX, SX + 3, S_T), ("X", c))
            a("s_add_u32 s69, s69, 128"); a("s_cmp_ge_u32 s69, 896"); a("s_cselect_b32 s69, 0, s69")
        self.srd(SKV, P_WS, 65536 + 8192, WS_KV)
        if isq:
            L = a.newlabel("nz")
            a("s_cmp_lg_u32 s%d, 0" % S_HP); a("s_cbranch_scc1 %s" % L)
            for k in range(2): a("v_mov_b32 v%d, 0" % (F1 + k))
            a("s_lshl_b32 s6, s%d, 12" % S_RB); a("s_lshl_b32 s7, s%d, 9" % WAVE); a("s_add_u32 s6, s6, s7")
            a("v_lshlrev_b32 v5, 3, v%d" % LANE)
            a("buffer_store_dwordx2 v[%d:%d], v5, s[%d:%d], s6 offen sc1" % (F1, F1 + 1, SKV, SKV + 3))
            a("s_cmp_lg_u32 s%d, 0" % WAVE); a("s_cbranch_scc1 %s" % L)
            a("s_lshl_b32 s6, s%d, 9" % S_RB); a("s_add_u32 s6, s6, 65536")
            a("buffer_store_dwordx2 v[%d:%d], v5, s[%d:%d], s6 offen sc1" % (F1, F1 + 1, SKV, SKV + 3))
            a.label(L)
        xload(0); dma(0); a("s_barrier")
        if isq:
            xload(1); dma(1); a("s_barrier"); xload(2); dma(2); dma(3)
        else:
            dma(1); xload(1); a("s_barrier"); dma(2); dma(3); xload(2)
        if "pfa" in self.opts:
            Lpf = a.newlabel("pf"); Lpx = a.newlabel("pfx")
            a("s_sub_u32 s6, s%d, 28" % SLOT)
            a("s_bitcmp1_b32 s%d, 0" % WAVE); a("s_cbranch_scc1 %s" % Lpx)
            a("s_lshl_b32 s6, s6, 2"); a("s_lshr_b32 s7, s%d, 1" % WAVE); a("s_add_u32 s6, s6, s7")
            a("s_mul_i32 s6, s6, %d" % (56 * 128)); a("s_add_u32 s6, s6, %d" % (128 * 2688))
            a("v_min_u32 v5, 55, v%d" % LANE); a("v_lshlrev_b32 v5, 7, v5")
            a("buffer_load_dword v127, v5, s[%d:%d], s6 offen" % (SW, SW + 3))
            a("s_branch %s" % Lpf)
            a.label(Lpx)
            a("s_cmp_lg_u32 s%d, 1" % WAVE); a("s_cbranch_scc1 %s" % Lpf)
            a("s_cmp_ge_u32 s6, 16"); a("s_cbranch_scc1 %s" % Lpf)
            a("s_lshl_b32 s7, s%d, 4" % XCD); a("s_add_u32 s6, s6, s7"); a("s_mul_i32 s6, s6, 14336")
            a("v_lshrrev_b32 v5, 2, v%d" % LANE); a("v_mul_u32_u24 v5, 896, v5"); a("v_and_b32 v127, 3, v%d" % LANE); a("v_lshl_add_u32 v5, v127, 7, v5")
            a("buffer_load_dword v127, v5, s[%d:%d], s6 offen offset:384" % (SX, SX + 3))
            a.label(Lpf)
        self.srd(SFL, P_WS, 131072, WS_FL)
        a.vmop("buffer_load_dwordx2 %s, v0, s[%d:%d], 0 offen sc1" % (vr(FLV, 2), SFL, SFL + 3), "FL")
        self.srd(SDBG, P_DBG, 256); self.srd(SPQ, P_WS, 1835008, WS_PQ)
        a("s_lshr_b32 s6, s%d, 1" % WAVE); a("s_lshl_b32 s6, s6, 12"); a("s_add_u32 s6, s6, %d" % XBASE)
        a("v_and_b32 v%d, 7, v%d" % (t, I)); a("v_xor_b32 v%d, v%d, v%d" % (t, t, Gq)); a("v_lshlrev_b32 v%d, 4, v%d" % (t, t)); a("v_lshl_add_u32 v%d, v%d, 7, v%d" % (t, I, t))
        a("v_xor_b32 v%d, 64, v%d" % (t + 1, t)); a("v_add_u32 v%d, s6, v%d" % (XR0, t)); a("v_add_u32 v%d, s6, v%d" % (XR1, t + 1))
        a("v_bfe_u32 v%d, v%d, 2, 2" % (t, LANE)); a("v_and_b32 v%d, 3, v%d" % (t + 1, LANE))
        a("v_and_b32 v%d, 1, v%d" % (t + 2, Gq)); a("v_lshl_or_b32 v%d, v%d, 2, v%d" % (t + 2, t + 2, t))
        a("v_lshl_add_u32 v%d, v%d, 3, v%d" % (t + 3, Gq, t)); a("v_lshlrev_b32 v%d, 8, v%d" % (t + 3, t + 3))
        a("s_and_b32 s7, s%d, 1" % WAVE)
        for tt in range(4):
            if isq:
                a("s_lshl_b32 s6, s7, 6"); a("s_add_u32 s6, s6, %d" % (128 * (tt >> 1) + 32 * (tt & 1))); sh = 3
            else:
                a("s_mul_i32 s6, s7, %d" % (48 if tt < 2 else 56)); a("s_add_u32 s6, s6, %d" % (32 * tt if tt < 2 else 128 + 32 * (tt - 2))); sh = 3
            a("v_lshlrev_b32 v%d, %d, v%d" % (t + 4, sh, t + 1)); a("v_add_u32 v%d, s6, v%d" % (t + 4, t + 4))
            a("v_lshrrev_b32 v%d, 5, v%d" % (t + 5, t + 4)); a("v_xor_b32 v%d, v%d, v%d" % (t + 5, t + 5, t + 2))
            a("v_and_b32 v%d, 31, v%d" % (t + 4, t + 4)); a("v_lshl_or_b32 v%d, v%d, 5, v%d" % (t + 4, t + 5, t + 4))
            a("v_add_u32 v%d, v%d, v%d" % (FA + tt, t + 4, t + 3))
        a("s_mov_b32 s14, 0x%x" % LOG2E); a("s_mov_b32 s15, 0x%x" % LOG2E); a("s_mov_b32 s13, 0x%x" % EPS)
        def xwrite(c):
            if "noxw" in self.opts: return
            for q in range(2): a("ds_write_b128 v%d, %s offset:%d" % (XW, vr(Xs(c, q), 4), (c & 1) * 16384 + q * 1024))
        def freads_l(u):
            out = []
            if "nofr" in self.opts: return out
            Fb = F1 if u & 1 else F0
            c = chunk(u)
            for rt in range(2):
                for kk in ((0, 1) if isq else (u & 1,)):
                    d = Fb + 16 + ((rt * 2 + kk) * 4 if isq else rt * 4)
                    out.append("ds_read_b128 %s, v%d offset:%d" % (vr(d, 4), XR1 if kk else XR0, (c % XRING) * 16384 + rt * 2048))
            for tt in range(4):
                for hh in range(2):
                    out.append("ds_read_b64_tr_b16 %s, v%d offset:%d" % (vr(Fb + 4 * tt + 2 * hh, 2), FA + tt, (u % RING) * 8192 + hh * 1024))
            return out
        def freads(u):
            for x in freads_l(u): a(x)
        def newchunk(u): return isq or (u & 1) == 0
        def chunk(u): return u if isq else u >> 1
        def mfmas_l(u):
            out = []
            if "nomf" in self.opts: return out
            Fb = F1 if u & 1 else F0
            for tt in range(4):
                for rt in range(2):
                    if isq:
                        acc = ACC + (rt * 2 + (tt & 1)) * 4; x = Fb + 16 + (rt * 2 + (tt >> 1)) * 4; first = (u == 0 and tt < 2)
                        out.append("v_mfma_f32_16x16x32_bf16 %s, %s, %s, %s" % (vr(acc, 4), vr(Fb + 4 * tt, 4), vr(x, 4), "0" if first else vr(acc, 4)))
                    else:
                        acc = ACC + (tt * 2 + rt) * 4; x = Fb + 16 + rt * 4; first = (u == 0)
                        out.append("v_mfma_f32_16x16x32_bf16 %s, %s, %s, %s" % (vr(acc, 4), vr(x, 4), vr(Fb + 4 * tt, 4), "0" if first else vr(acc, 4)))
            return out
        if "twice" in self.opts:
            a("s_mov_b32 s78, 0"); Ltw = a.newlabel("tw"); a.label(Ltw)
        a.vmwait(("W", 0), ("X", 0)); a("s_barrier")
        self.stamp(1)
        if isq:
            L = a.newlabel("nzs")
            a("s_or_b32 s6, s%d, s%d" % (S_HP, WAVE)); a("s_cmp_lg_u32 s6, 0"); a("s_cbranch_scc1 %s" % L)
            a("v_mov_b32 v0, 32"); a("v_mov_b32 v5, 1"); a("s_mov_b64 exec, 1")
            a("buffer_atomic_add v5, v0, s[%d:%d], 0 offen sc1" % (SDBG, SDBG + 3)); a("s_mov_b64 exec, -1")
            a.label(L)
        freads(0)
        for u in range(U):
            if u + 1 < U:
                M = mfmas_l(u); Rd = freads_l(u + 1)
                a("s_waitcnt lgkmcnt(0)")
                for x in M[:2]: a(x)
                a.vmwait(("W", u + 1), ("X", chunk(u + 1)))
                a("s_barrier")
                if u + RING < U: dma(u + RING)
                if newchunk(u + 1) and chunk(u) + XRING < 7: xload(chunk(u) + XRING)
                for k in range(2, 8):
                    for x in Rd[2 * (k - 2):2 * (k - 2) + 2]: a(x)
                    if k < len(M): a(M[k])
                if u == (4 if isq else 10):
                    a.vmwait("FL")
                    Lsn = a.newlabel("snap")
                    a("s_cmp_lg_u32 s%d, 7" % WAVE); a("s_cbranch_scc1 %s" % Lsn)
                    a("v_mov_b32 v0, 32")
                    a("buffer_load_dword v5, v0, s[%d:%d], 0 offen" % (SDBG, SDBG + 3))
                    a.label(Lsn)
            else:
                a("s_waitcnt lgkmcnt(0)")
                for x in mfmas_l(u): a(x)
        if "twice" in self.opts:
            a("s_add_u32 s78, s78, 1"); a("s_cmp_lt_u32 s78, 2"); a("s_cbranch_scc1 %s" % Ltw)
        a("v_readfirstlane_b32 s%d, v%d" % (S_F0, FLV)); a("v_readfirstlane_b32 s%d, v%d" % (S_F1, FLV + 1))
        a.vmwait_all()
        self.stamp(2)
        T = XS
        if isq:
            self.phi(ACC, 16, T)
            a("s_lshl_b32 s6, s%d, 2" % S_RB); a("s_lshr_b32 s7, s%d, 1" % WAVE); a("s_add_u32 s6, s6, s7"); a("s_mul_i32 s6, s6, 28672")
            a("s_lshl_b32 s7, s%d, 11" % S_HP); a("s_add_u32 s6, s6, s7")
            a("s_and_b32 s7, s%d, 1" % WAVE); a("s_lshl_b32 s7, s7, 10"); a("s_add_u32 s6, s6, s7"); a("s_add_u32 s7, s6, 14336")
            a("v_lshrrev_b32 v1, 4, v%d" % LANE); a("v_and_b32 v2, 1, v1"); a("v_lshrrev_b32 v1, 1, v1"); a("v_lshl_or_b32 v1, v2, 1, v1")
            a("v_and_b32 v2, 15, v%d" % LANE); a("v_lshlrev_b32 v2, 4, v2"); a("v_lshl_add_u32 v0, v1, 8, v2")
            for rt in range(2):
                d = T + 16 + rt * 4
                for k in range(4): a("v_cvt_pk_bf16_f32 v%d, v%d, v%d" % (d + k, ACC + rt * 8 + 2 * k, ACC + rt * 8 + 2 * k + 1))
            for rt in range(2):
                d = T + 16 + rt * 4
                a("v_permlane16_swap_b32 v%d, v%d" % (d, d + 2)); a("v_permlane16_swap_b32 v%d, v%d" % (d + 1, d + 3))
                a.vmop("buffer_store_dwordx4 %s, v0, s[%d:%d], s%d offen sc1" % (vr(d, 4), SPQ, SPQ + 3, 6 + rt), "S")
            self.stamp(3)
            Lok = a.newlabel("zok"); Lz = a.newlabel("zp")
            a("s_cmp_lg_u32 s%d, 7" % WAVE); a("s_cbranch_scc1 %s" % Lok)
            a("s_mov_b32 s6, 0"); a("v_mov_b32 v4, 32")
            a.label(Lz)
            a("v_readfirstlane_b32 s7, v5"); a("s_cmp_ge_u32 s7, 16"); a("s_cbranch_scc1 %s" % Lok)
            a("s_sleep 8")
            a("buffer_load_dword v5, v4, s[%d:%d], 0 offen sc1" % (SDBG, SDBG + 3))
            a("s_add_u32 s6, s6, 1"); a("s_waitcnt vmcnt(0)"); a("s_cmp_lt_u32 s6, 0x%x" % POLL_CAP); a("s_cbranch_scc1 %s" % Lz)
            a.label(Lok)
            a.vmwait_all(); a("s_barrier")
            L = a.newlabel("arrq")
            a("s_cmp_lg_u32 s%d, 7" % WAVE); a("s_cbranch_scc1 %s" % L)
            a("s_lshl_b32 s6, s%d, 8" % S_RB); a("s_add_u32 s6, s6, %d" % (65536 + 8 * 256))
            self.atomic_ret(6, 1, 2, 7, SKV)
            a("s_cmp_lg_u32 s7, 6"); a("s_cbranch_scc1 %s" % L)
            a("s_and_b32 s6, s%d, 1" % S_RB); a("s_lshl_b32 s6, s6, 4"); a("s_add_u32 s6, s6, 28"); a("s_lshl_b32 s6, s6, 3"); a("s_add_u32 s6, s6, s%d" % XCD); a("s_lshl_b32 s6, s6, 7")
            a("v_lshlrev_b32 v1, 10, v%d" % LANE); a("v_mov_b32 v2, 1"); a("s_mov_b64 exec, 0x3fff")
            a("buffer_atomic_add v2, v1, s[%d:%d], s6 offen offset:4 sc1" % (SFL, SFL + 3))
            a("s_mov_b64 exec, -1")
            a("s_mov_b32 s6, %d" % (65536 + 24 * 256))
            self.atomic_ret(6, 1, 2, 7, SKV)
            a("s_cmp_lg_u32 s7, 23"); a("s_cbranch_scc1 %s" % L)
            a("v_lshlrev_b32 v1, 7, v%d" % LANE); a("v_mov_b32 v2, 1")
            for k in range(4):
                a("s_mov_b32 s6, %d" % (224 * 128 + k * 8192))
                if k == 3: a("s_mov_b32 s10, -1"); a("s_mov_b32 s11, 0xffff"); a("s_mov_b64 exec, s[10:11]")
                a("buffer_atomic_add v2, v1, s[%d:%d], s6 offen sc1" % (SFL, SFL + 3))
            a("s_mov_b64 exec, -1")
            a.label(L)
        else:
            self.phi(ACC, 16, T)
            PK = T + 16
            for k in range(16): a("v_cvt_pk_bf16_f32 v%d, v%d, v%d" % (PK + k, ACC + 2 * k, ACC + 2 * k + 1))
            a("s_and_b32 s7, s%d, 1" % WAVE); a("s_cmp_eq_u32 s7, 1")
            a("s_cselect_b32 s6, 0x000f000f, 0"); a("s_mov_b32 s7, s6"); a("s_mov_b64 exec, s[6:7]")
            for k in range(4): a("v_mov_b32 v%d, 0" % (PK + k))
            a("s_cselect_b32 s6, 0, 0xf000f000"); a("s_mov_b32 s7, s6"); a("s_mov_b64 exec, s[6:7]")
            for k in range(4): a("v_mov_b32 v%d, 0" % (PK + 4 + k))
            a("s_mov_b32 s6, 0xe000e000"); a("s_mov_b32 s7, s6"); a("s_mov_b64 exec, s[6:7]")
            for k in range(4): a("v_mov_b32 v%d, 0" % (PK + 12 + k))
            a("s_mov_b32 s6, 0x10001000"); a("s_mov_b32 s7, s6"); a("s_mov_b64 exec, s[6:7]"); a("s_mov_b32 s6, 0x3f803f80")
            for k in range(4): a("v_mov_b32 v%d, s6" % (PK + 12 + k))
            a("s_mov_b64 exec, -1")
            KT = F0
            for je in range(2):
                for jd in range(2):
                    a("v_mfma_f32_16x16x32_bf16 %s, %s, %s, 0" % (vr(KT + 4 * (2 * je + jd), 4), vr(PK + 8 + 4 * je, 4), vr(PK + 4 * jd, 4)))
            RB = XBASE + 16384
            a("s_lshl_b32 s6, s%d, 12" % WAVE); a("s_add_u32 s6, s6, %d" % RB); a("v_lshl_add_u32 v0, v%d, 4, s6" % LANE)
            a("v_bfe_u32 v1, v%d, 2, 2" % LANE); a("v_lshrrev_b32 v2, 4, v%d" % LANE)
            a("s_and_b32 s6, s%d, 2" % WAVE); a("s_lshl_b32 s6, s6, 1"); a("v_add_u32 v1, s6, v1"); a("v_lshl_add_u32 v2, v1, 2, v2")
            a("v_cmp_eq_u32 vcc, 7, v1"); a("v_mov_b32 v3, 28"); a("v_cndmask_b32 v2, v2, v3, vcc")
            for tau in range(4): a("ds_write_b128 v0, %s offset:%d" % (vr(KT + 4 * tau, 4), tau * 1024))
            a("v_lshrrev_b32 v1, 4, v2"); a("v_lshlrev_b32 v1, 11, v1"); a("v_bfe_u32 v3, v2, 2, 2"); a("v_lshl_add_u32 v1, v3, 8, v1")
            a("v_and_b32 v3, 3, v2"); a("v_lshl_add_u32 v1, v3, 2, v1"); a("v_and_b32 v3, 3, v%d" % LANE); a("v_lshl_add_u32 v1, v3, 4, v1")
            a("s_lshr_b32 s6, s%d, 2" % WAVE); a("s_lshl_b32 s6, s6, 12"); a("s_and_b32 s7, s%d, 1" % WAVE); a("s_lshl_b32 s7, s7, 6")
            a("s_add_u32 s6, s6, s7"); a("s_add_u32 s6, s6, %d" % RB); a("v_add_u32 v1, s6, v1")
            Lok = a.newlabel("zok"); Lz = a.newlabel("zp")
            a("s_cmp_lg_u32 s%d, 7" % WAVE); a("s_cbranch_scc1 %s" % Lok)
            a("s_mov_b32 s6, 0"); a("v_mov_b32 v4, 32")
            a.label(Lz)
            a("v_readfirstlane_b32 s7, v5"); a("s_cmp_ge_u32 s7, 16"); a("s_cbranch_scc1 %s" % Lok)
            a("s_sleep 8")
            a("buffer_load_dword v5, v4, s[%d:%d], 0 offen sc1" % (SDBG, SDBG + 3))
            a("s_add_u32 s6, s6, 1"); a("s_waitcnt vmcnt(0)"); a("s_cmp_lt_u32 s6, 0x%x" % POLL_CAP); a("s_cbranch_scc1 %s" % Lz)
            a.label(Lok)
            a("s_waitcnt lgkmcnt(0)"); a("s_barrier")
            R = F1
            for rg in range(4):
                for gp in range(4):
                    a("ds_read_b32 v%d, v1 offset:%d" % (R + rg * 4 + gp, rg * 8192 + (gp >> 1) * 1024 + (gp & 1) * 128))
            a("s_lshl_b32 s6, s%d, 3" % S_HP); a("s_add_u32 s6, s6, s%d" % WAVE); a("s_lshl_b32 s6, s6, 10")
            a("v_lshlrev_b32 v3, 2, v%d" % LANE)
            a("s_waitcnt lgkmcnt(0)")
            for k in (0, 2):
                a("v_pk_add_f32 %s, %s, %s" % (vr(R + k, 2), vr(R + k, 2), vr(R + 4 + k, 2))); a("v_pk_add_f32 %s, %s, %s" % (vr(R + 8 + k, 2), vr(R + 8 + k, 2), vr(R + 12 + k, 2)))
            for k in (0, 2): a("v_pk_add_f32 %s, %s, %s" % (vr(R + k, 2), vr(R + k, 2), vr(R + 8 + k, 2)))
            for k in range(4 if "noat" not in self.opts else 0):
                a.vmop("buffer_atomic_add_f32 v%d, v3, s[%d:%d], s6 offen offset:%d" % (R + k, SKV, SKV + 3, k * 256), "S")
            self.stamp(3)
            a.vmwait_all(); a("s_barrier")
            L = a.newlabel("arr")
            a("s_cmp_lg_u32 s%d, 7" % WAVE); a("s_cbranch_scc1 %s" % L)
            a("s_lshl_b32 s6, s%d, 8" % S_HP); a("s_add_u32 s6, s6, 65536")
            self.atomic_ret(6, 1, 2, 7, SKV)
            a("s_cmp_lg_u32 s7, 15"); a("s_cbranch_scc1 %s" % L)
            a("s_mov_b32 s6, %d" % (65536 + 24 * 256))
            self.atomic_ret(6, 1, 2, 7, SKV)
            a("s_cmp_lg_u32 s7, 23"); a("s_cbranch_scc1 %s" % L)
            a("v_lshlrev_b32 v1, 7, v%d" % LANE); a("v_mov_b32 v2, 1")
            for k in range(4):
                a("s_mov_b32 s6, %d" % (224 * 128 + k * 8192))
                if k == 3: a("s_mov_b32 s10, -1"); a("s_mov_b32 s11, 0xffff"); a("s_mov_b64 exec, s[10:11]")
                a("buffer_atomic_add v2, v1, s[%d:%d], s6 offen sc1" % (SFL, SFL + 3))
            a("s_mov_b64 exec, -1")
            a.label(L)

    def a2(self):
        a = self.a
        PQ, WR, KVF, ACC, TA = 16, 48, 80, 112, 8
        S_R0, S_WN = 8, 9
        KVL = 57344
        Lend = "A_end"
        self.stamp(4)
        a("s_sub_u32 s10, s%d, 28" % SLOT)
        a("s_and_b32 s6, s10, 30"); a("s_cmp_eq_u32 s6, 14"); a("s_cbranch_scc1 %s" % Lend)
        if "noa2" in self.opts: a("s_branch %s" % Lend)
        a("s_cmp_ge_u32 s10, 16"); a("s_cselect_b32 s6, 2, 0"); a("s_sub_u32 s10, s10, s6")
        a("s_mul_i32 s6, s10, 9363"); a("s_lshr_b32 s6, s6, 16")
        a("s_mul_i32 s7, s6, 7"); a("s_sub_u32 s%d, s10, s7" % S_WN)
        a("s_lshl_b32 s7, s%d, 2" % XCD); a("s_add_u32 s%d, s6, s7" % S_R0)
        self.srd(SWO, P_WO, 401408); self.srd(SOUT, P_OUT, 3670016)
        a("v_and_b32 v1, 15, v%d" % LANE); a("v_lshrrev_b32 v2, 4, v%d" % LANE)
        a("v_lshrrev_b32 v3, 3, v%d" % LANE); a("v_bfe_u32 v4, v%d, 1, 2" % LANE); a("v_lshrrev_b32 v5, 2, v3"); a("v_xor_b32 v4, v4, v5")
        a("s_and_b32 s6, s%d, 1" % WAVE); a("s_lshl_b32 s6, s6, 1"); a("v_xor_b32 v4, s6, v4")
        a("v_and_b32 v5, 1, v%d" % LANE); a("v_lshl_or_b32 v4, v4, 1, v5")
        a("s_mul_i32 s6, s%d, 56" % WAVE); a("v_add_u32 v3, s6, v3"); a("v_mul_u32_u24 v3, 896, v3")
        a("v_lshl_add_u32 v4, v4, 4, v3"); a("v_xor_b32 v5, 64, v4")
        a("s_mul_i32 s13, s%d, 7168" % WAVE); a("s_lshl_b32 s10, s%d, 7" % S_WN)
        for n in range(7):
            a("s_add_u32 m0, s13, %d" % (n * 1024)); a("s_add_u32 s6, s10, %d" % (n * 8 * 896))
            a.vmop("buffer_load_dwordx4 v%d, s[%d:%d], s6 offen lds" % (4 + (n & 1), SWO, SWO + 3), "WO")
        a("v_bfe_u32 v3, v%d, 2, 2" % LANE); a("v_and_b32 v6, 3, v%d" % LANE)
        a("v_lshl_add_u32 v0, v3, 2, v2"); a("v_lshlrev_b32 v0, 7, v0"); a("v_lshl_add_u32 v0, v3, 5, v0"); a("v_lshl_add_u32 v0, v6, 3, v0")
        a("s_lshr_b32 s6, s%d, 2" % WAVE); a("s_mul_i32 s6, s6, 28672"); a("v_add_u32 v%d, s6, v0" % TA)
        for tl in range(1, 4): a("v_xor_b32 v%d, %d, v%d" % (TA + tl, 32 * tl, TA))
        a("v_lshlrev_b32 v15, 4, v%d" % LANE)
        L = a.newlabel("pw")
        a("s_cmp_lg_u32 s%d, 0" % WAVE); a("s_cbranch_scc1 %s" % L)
        self.poll2(3, 4)
        a.label(L)
        a.vmwait("WO"); a("s_barrier")
        a("s_and_b32 s6, s%d, 3" % WAVE); a("s_lshl_b32 s7, s%d, 2" % S_R0); a("s_add_u32 s6, s6, s7"); a("s_mul_i32 s6, s6, 14336")
        a("s_lshr_b32 s7, s%d, 2" % WAVE); a("s_mul_i32 s7, s7, 7168"); a("s_add_u32 s6, s6, s7"); a("s_add_u32 s7, s6, 3584")
        g0 = [0, 3, 7, 10]
        for hl in range(8):
            a.vmop("buffer_load_dwordx4 %s, v15, s[%d:%d], s%d offen offset:%d %s" % (vr(PQ + hl * 4, 4), SPQ, SPQ + 3, 6 + (hl >> 2), 256 * g0[hl & 3], self.HL), "PQ")
        def wo_read(dst, tile, ph):
            a("ds_read_b64_tr_b16 %s, v%d offset:%d" % (vr(dst, 2), TA + tile, 2048 * ph))
        for ks in range(2):
            for tile in range(4):
                for h2 in range(2): wo_read(WR + (ks * 4 + tile) * 4 + 2 * h2, tile, 2 * ks + h2)
        a("s_lshl_b32 s12, s%d, 13" % WAVE)
        a("s_lshl_b32 s6, s%d, 12" % WAVE); a("s_add_u32 s6, s6, %d" % KVL)
        a("s_cmp_eq_u32 s%d, 6" % WAVE); a("s_cselect_b32 s6, 0, s6"); a("s_cmp_eq_u32 s%d, 7" % WAVE); a("s_cselect_b32 s6, 28672, s6")
        a("v_add_u32 v5, s6, v15")
        a("s_lshr_b32 s7, s%d, 2" % WAVE); a("s_cmp_eq_u32 s7, 1")
        a("s_mov_b32 s6, %d" % KVL); a("s_cselect_b32 s6, %d, s6" % (KVL + 16384)); a("v_add_u32 v3, s6, v15")
        a("s_cselect_b32 s6, 0, %d" % (KVL + 8192)); a("v_add_u32 v4, s6, v15")
        a("s_mov_b32 s6, 28672"); a("s_cselect_b32 s6, s6, %d" % (KVL + 12288)); a("v_add_u32 v6, s6, v15")
        a("s_mov_b32 s10, 0"); a("s_mov_b32 s11, 0xffff0000"); a("s_mov_b32 s13, 0x%x" % EPS)
        a.vmwait("PQ")
        a("s_mov_b64 exec, s[10:11]")
        for hl in range(0, 8, 2): a("v_mov_b32 v%d, 0" % (PQ + hl * 4 + 2)); a("v_mov_b32 v%d, 0" % (PQ + hl * 4 + 3))
        a("s_mov_b64 exec, 0xffff")
        for hl in range(1, 8, 2): a("v_mov_b32 v%d, 0" % (PQ + hl * 4)); a("v_mov_b32 v%d, 0" % (PQ + hl * 4 + 1))
        a("s_mov_b64 exec, -1")
        a("s_waitcnt lgkmcnt(0)")
        self.stamp(5)
        L = a.newlabel("aw")
        a("s_cmp_lg_u32 s%d, 0" % WAVE); a("s_cbranch_scc1 %s" % L)
        self.poll_flag(1, 2, S_F0, 0)
        a.label(L)
        a("s_barrier")
        self.stamp(6)
        a("s_add_u32 s6, s12, 4096")
        for k in range(8):
            a.vmop("buffer_load_dwordx4 %s, v15, s[%d:%d], s%d offen offset:%d %s" % (vr(KVF + 4 * k, 4), SKV, SKV + 3, 12 if k < 4 else 6, 1024 * (k & 3), self.HL), ("KV", k >> 1))
        for fr in range(4):
            a.vmwait(("KV", fr))
            for k in range(4): a("v_cvt_pk_bf16_f32 v%d, v%d, v%d" % (KVF + 8 * fr + k, KVF + 8 * fr + 2 * k, KVF + 8 * fr + 2 * k + 1))
            a("ds_write_b128 v5, %s offset:%d" % (vr(KVF + 8 * fr, 4), fr * 1024))
        if "a2prof" in self.opts: self.stamp(1)
        a("s_waitcnt lgkmcnt(0)"); a("s_barrier")
        if "a2prof" in self.opts: self.stamp(2)
        KB = lambda h: KVF + 8 * (h & 1)
        NN = lambda h: KVF + 16 + 8 * (h & 1)
        Oreg = lambda k: PQ + k
        LEFT = 2
        def kv_read(h):
            ad, off = [(3, 0), (3, 0), (3, 0), (3, 0), (4, 0), (4, 0), (6, 0), (6, 0)][h]
            off = (h * 2048) if h < 4 else (h & 1) * 2048
            return ["ds_read_b128 %s, v%d offset:%d" % (vr(KB(h) + 4 * j, 4), ad, off + 1024 * j) for j in range(2)]
        def m2(h):
            return ["v_mfma_f32_16x16x32_bf16 %s, %s, %s, 0" % (vr(NN(h) + 4 * j, 4), vr(KB(h) + 4 * j, 4), vr(PQ + h * 4, 4)) for j in (1, 0)]
        def valu2(h):
            n = NN(h); out = []
            out.append("v_add_f32 v0, s13, v%d" % (n + 7)); out.append("v_rcp_f32 v0, v0")
            for t in range(0, 8, 2): out.append("v_pk_mul_f32 %s, v[0:1], %s op_sel:[0,0] op_sel_hi:[0,1]" % (vr(n + t, 2), vr(n + t, 2)))
            f0 = 7 * h
            if h & 1 == 0:
                for k in range(3): out.append("v_cvt_pk_bf16_f32 v%d, v%d, v%d" % (Oreg(f0 // 2 + k), n + 2 * k, n + 2 * k + 1))
                out.append("v_mov_b32 v%d, v%d" % (LEFT, n + 6))
            else:
                out.append("v_cvt_pk_bf16_f32 v%d, v%d, v%d" % (Oreg(f0 // 2), LEFT, n))
                for k in range(3): out.append("v_cvt_pk_bf16_f32 v%d, v%d, v%d" % (Oreg(f0 // 2 + 1 + k), n + 1 + 2 * k, n + 2 + 2 * k))
            return out
        def w_read_l(ks):
            out = []
            for tile in range(4):
                for h2 in range(2):
                    ph = 2 * ks + h2; dst = WR + ((ks & 1) * 4 + tile) * 4 + 2 * h2
                    out.append("ds_read_b64_tr_b16 %s, v%d offset:%d" % (vr(dst, 2), TA + tile, 2048 * ph))
            return out
        def m3(ks):
            return ["v_mfma_f32_16x16x32_bf16 %s, %s, %s, %s" % (vr(ACC + 4 * tile, 4), vr(WR + ((ks & 1) * 4 + tile) * 4, 4), vr(Oreg(4 * ks), 4), "0" if ks == 0 else vr(ACC + 4 * tile, 4)) for tile in range(4)]
        for x in kv_read(0) + kv_read(1): a(x)
        a("s_waitcnt lgkmcnt(2)")
        for x in m2(0): a(x)
        for h in range(8):
            a("s_waitcnt lgkmcnt(%d)" % (8 if (h - 3 >= 0 and h - 1 < 7) else 0))
            if h + 1 < 8:
                for x in m2(h + 1): a(x)
            if h + 2 < 8:
                for x in kv_read(h + 2): a(x)
            ks = h - 2
            V = valu2(h)
            if ks >= 0:
                M = m3(ks)
                for i, x in enumerate(M):
                    a(x)
                    for y in V[3 * i:3 * i + 3] if i < 3 else V[9:]: a(y)
                if ks + 2 < 7:
                    for x in w_read_l(ks + 2): a(x)
            else:
                for y in V: a(y)
        a("s_waitcnt lgkmcnt(0)")
        for x in m3(6): a(x)
        if "a2prof" in self.opts: self.stamp(4)
        a("s_lshl_b32 s6, s%d, 11" % WAVE); a("v_add_u32 v5, s6, v15")
        a("s_xor_b32 s6, s%d, 4" % WAVE); a("s_lshl_b32 s6, s6, 11"); a("v_add_u32 v6, s6, v15")
        a("v_lshrrev_b32 v1, 4, v%d" % LANE); a("v_and_b32 v2, 1, v1"); a("v_lshrrev_b32 v1, 1, v1"); a("v_lshl_or_b32 v1, v2, 1, v1")
        a("v_and_b32 v2, 15, v%d" % LANE); a("v_mul_u32_u24 v2, 1792, v2"); a("v_lshl_add_u32 v3, v1, 4, v2")
        a("s_and_b32 s6, s%d, 3" % WAVE); a("s_lshl_b32 s7, s%d, 2" % S_R0); a("s_add_u32 s6, s6, s7"); a("s_mul_i32 s6, s6, %d" % (16 * 1792))
        a("s_lshl_b32 s7, s%d, 7" % S_WN); a("s_add_u32 s6, s6, s7"); a("s_lshr_b32 s10, s%d, 2" % WAVE); a("s_lshl_b32 s7, s10, 6"); a("s_add_u32 s6, s6, s7")
        a("s_barrier")
        Lx1 = a.newlabel("ax1"); Lx2 = a.newlabel("ax2")
        a("s_cmp_eq_u32 s10, 0"); a("s_cbranch_scc1 %s" % Lx1)
        for k in range(2): a("ds_write_b128 v5, %s offset:%d" % (vr(ACC + 4 * k, 4), 1024 * k))
        a("s_nop 3")
        for k in range(8): a("v_mov_b32 v%d, v%d" % (ACC + k, ACC + 8 + k))
        a("s_branch %s" % Lx2)
        a.label(Lx1)
        for k in range(2): a("ds_write_b128 v5, %s offset:%d" % (vr(ACC + 8 + 4 * k, 4), 1024 * k))
        a.label(Lx2)
        a("s_waitcnt lgkmcnt(0)"); a("s_barrier")
        self.stamp(7)
        R = KVF
        for k in range(2): a("ds_read_b128 %s, v6 offset:%d" % (vr(R + 4 * k, 4), 1024 * k))
        a("s_waitcnt lgkmcnt(0)")
        for k in range(0, 8, 2): a("v_pk_add_f32 %s, %s, %s" % (vr(R + k, 2), vr(R + k, 2), vr(ACC + k, 2)))
        for k in range(4): a("v_cvt_pk_bf16_f32 v%d, v%d, v%d" % (R + 8 + k, R + 2 * k, R + 2 * k + 1))
        a("v_permlane16_swap_b32 v%d, v%d" % (R + 8, R + 10)); a("v_permlane16_swap_b32 v%d, v%d" % (R + 9, R + 11))
        thr = [x for x in self.opts if x.startswith("thr")]
        if thr:
            k, T = thr[0][3:].split("_")
            a("s_sub_u32 s7, s%d, s%d" % (TS0 + 2 * int(k), TS0)); a("s_cmp_gt_u32 s7, %d" % int(T)); a("s_cbranch_scc1 %s" % Lend)
        a.vmop("buffer_store_dwordx4 %s, v3, s[%d:%d], s6 offen" % (vr(R + 8, 4), SOUT, SOUT + 3), "S")
        self.stamp(8)
        a.label(Lend)
        self.dump_stamps()
        a("s_endpgm")

    def build(self):
        a = self.a
        a.raw(open("concat_heads__linear_attn_block__ssm_conv_s4d__prompt.s.ref").read().split("; Override launch")[0].rstrip())
        a.raw("; @launch grid=(%d,1,1) block=(512,1,1) lds=%d" % (NWG, LDS))
        a.raw('.amdgcn_target "amdgcn-amd-amdhsa--gfx950"\n.text\n.globl %s\n.p2align 8\n.type %s,@function\n%s:' % (KNAME, KNAME, KNAME))
        a("s_cmp_ge_u32 s2, %d" % NWG); a("s_cbranch_scc1 K_exit")
        a("s_load_dwordx16 s[16:31], s[0:1], 0"); a("s_load_dwordx8 s[32:39], s[0:1], 64"); a("s_load_dwordx2 s[40:41], s[0:1], 96")
        a("s_and_b32 s%d, s2, 7" % XCD); a("s_lshr_b32 s%d, s2, 3" % SLOT)
        a("v_lshrrev_b32 v1, 6, v0"); a("v_and_b32 v7, 63, v0")
        a("v_readfirstlane_b32 s%d, v1" % WAVE)
        a("s_nop 3")
        if "nocpf" not in self.opts:
            Lc = a.newlabel("cpf")
            a("s_cmp_ge_u32 s%d, 2" % SLOT); a("s_cbranch_scc1 %s" % Lc)
            a("s_getpc_b64 s[6:7]")
            a("s_and_b32 s6, s6, 0xffffff00")
            a("s_lshl_b32 s8, s%d, 12" % WAVE)
            a("v_and_b32 v1, 31, v7"); a("v_lshlrev_b32 v1, 7, v1"); a("v_add_u32 v1, s8, v1")
            a("v_min_u32 v1, CODE_END - %s - 4, v1" % KNAME)
            a("global_load_dword v126, v1, s[6:7]")
            a.label(Lc)
        Bl = "K_exit" if "onlya" in self.opts else "B_entry"
        a("s_cmp_lt_u32 s%d, 28" % SLOT); a("s_cbranch_scc1 %s" % Bl)
        if "onlyb" in self.opts: a("s_branch K_exit")
        a("s_setprio 2")
        a("s_cmp_ge_u32 s%d, 44" % SLOT); a("s_cbranch_scc1 Q_entry")
        self.gemm(False)
        a("s_branch A2_entry")
        a.label("Q_entry"); a.vm = []
        self.gemm(True)
        a.label("A2_entry"); a.fence(8); a.vm = []
        self.a2()
        a.label("B_entry"); a.vm = []
        if "onlya" not in self.opts:
            from gen_b import gen_b
            gen_b(self)
        a.label("K_exit")
        a("s_endpgm")
        a.label("CODE_END")
        a.raw('''.section .rodata,"a"
.p2align 6
.amdhsa_kernel %s
  .amdhsa_next_free_vgpr 128
  .amdhsa_next_free_sgpr 102
  .amdhsa_accum_offset 128
  .amdhsa_group_segment_fixed_size 0
  .amdhsa_kernarg_size 104
  .amdhsa_user_sgpr_count 2
  .amdhsa_user_sgpr_kernarg_segment_ptr 1
  .amdhsa_system_sgpr_workgroup_id_x 1
.end_amdhsa_kernel''' % KNAME)
        return a.text()

if __name__ == "__main__":
    stamps = "--stamps" in sys.argv
    out = [x for x in sys.argv[1:] if not x.startswith("--")][0]
    open(out, "w").write(Gen(stamps, [x[2:] for x in sys.argv[1:] if x.startswith("--")]).build())
```

```python
from asmlib import *
from gen import *

def gen_b(G):
    a = G.a
    S_J, S_GAM, S_RBK, S_CQ, S_D, S_S, S_KB, S_UB = 8, 9, 10, 11, 12, 13, 14, 15
    S_CH, S_HF = 48, 49
    LA, AI, CR, CI, DT, DS, KA, KT, FY, FX2 = 10, 11, 12, 13, 14, 15, 16, 17, 18, 19
    ACC = 20
    w0, w1, w2, w3, w4, w5, w6, t3, t5, w7, w8, w9, w10, t7 = [32 + 2 * k for k in range(14)]
    s_ = [60 + 2 * k for k in range(9)]
    S3a, S3b, S4a, S4b = 78, 80, 82, 84
    TP = [86 + 2 * k for k in range(6)]
    hw3, hw4, ht3, hw5, hw6, ht5, hw7, hw8, ht7 = range(98, 107)
    hs = list(range(107, 116)); hS3a, hS3b, hS4a, hS4b = range(116, 120)
    PT = list(range(32, 40)); PR = list(range(40, 48))
    YF, XF, XF2 = 60, 76, 32
    RS = 288
    USTG = 73728
    a("s_setprio %d" % (0 if "bp0" in G.opts else 3))
    a("s_cmp_ge_u32 s%d, 14" % SLOT); a("s_cselect_b32 s6, 27, 0")
    a("s_lshl_b32 s7, s%d, 1" % SLOT); a("s_sub_u32 s7, s7, s6")
    a("s_mul_i32 s%d, s%d, 28" % (S_J, XCD)); a("s_add_u32 s%d, s%d, s7" % (S_J, S_J))
    a("s_lshr_b32 s%d, s%d, 5" % (S_GAM, S_J)); a("s_and_b32 s%d, s%d, 31" % (S_RBK, S_J)); a("s_lshr_b32 s%d, s%d, 1" % (S_CQ, S_J))
    a("s_and_b32 s%d, s%d, 3" % (S_CH, WAVE)); a("s_lshr_b32 s%d, s%d, 2" % (S_HF, WAVE))
    a("s_lshl_b32 s%d, s%d, 2" % (S_D, S_CQ)); a("s_add_u32 s%d, s%d, s%d" % (S_D, S_D, S_CH))
    a("v_and_b32 v1, 15, v%d" % LANE); a("v_lshrrev_b32 v2, 4, v%d" % LANE)
    a("v_lshrrev_b32 v3, 3, v%d" % LANE); a("v_mul_u32_u24 v3, 896, v3")
    a("v_and_b32 v4, 7, v%d" % LANE); a("v_lshl_add_u32 v3, v4, 4, v3")
    a("s_lshl_b32 s6, s%d, 3" % S_RBK); a("s_add_u32 s6, s6, s%d" % WAVE); a("s_mul_i32 s6, s6, 7168"); a("s_lshl_b32 s7, s%d, 7" % S_GAM); a("s_add_u32 s6, s6, s7")
    a("s_lshl_b32 s7, s%d, 10" % WAVE); a("s_add_u32 m0, s7, %d" % USTG)
    a("v_lshlrev_b32 v4, 2, v%d" % LANE); a("s_lshl_b32 s7, s%d, 1" % S_D); a("s_add_u32 s7, s7, s%d" % S_HF); a("s_lshl_b32 s7, s7, 8"); a("v_add_u32 v4, s7, v4")
    a("s_lshl_b32 s7, s%d, 1" % S_D); a("v_mov_b32 v5, s7")
    a("s_add_u32 s%d, s%d, 512" % (S_FA, S_J)); a("s_lshl_b32 s%d, s%d, 7" % (S_FA, S_FA)); a("v_mov_b32 v9, s%d" % S_FA)
    a("s_waitcnt lgkmcnt(0)")
    G.srd(SU, P_U, 1835008)
    G.stamp(0)
    a.vmop("buffer_load_dwordx4 v3, s[%d:%d], s6 offen lds" % (SU, SU + 3), "UT")
    G.srd(SFL, P_WS, 131072, WS_FL)
    if "bnofl" not in G.opts: a.vmop("buffer_load_dwordx2 v[124:125], v9, s[%d:%d], 0 offen sc1" % (SFL, SFL + 3), "UT")
    Lnp0 = a.newlabel("nopar")
    a("s_cmp_lt_u32 s%d, 14" % SLOT); a("s_cbranch_scc1 %s" % Lnp0)
    for r, p in ((LA, P_LA), (AI, P_AI), (CR, P_CR), (CI, P_CI)) if "bnopar" not in G.opts else ():
        a.vmop("global_load_dword v%d, v4, s[%d:%d]" % (r, p, p + 1), "PAR")
    a.vmop("global_load_ushort v%d, v5, s[%d:%d]" % (DT, P_DT, P_DT + 1), "PAR")
    a.vmop("global_load_ushort v%d, v5, s[%d:%d]" % (DS, P_DS, P_DS + 1), "PAR")
    a.label(Lnp0)
    if "pfb" in G.opts:
        a("s_lshl_b32 s6, s%d, 3" % SLOT); a("s_add_u32 s6, s6, s%d" % WAVE)
        a("s_mul_i32 s7, s%d, 28" % XCD); a("s_add_u32 s7, s7, s6"); a("s_sub_u32 s7, s7, 147")
        a("s_cmp_ge_u32 s6, 147")
        a("s_cselect_b32 s56, s%d, s%d" % (P_X, P_W)); a("s_cselect_b32 s57, s%d, s%d" % (P_X + 1, P_W + 1)); a("s_cselect_b32 s7, s7, s6")
        a("s_sub_u32 s58, s6, 175"); a("s_cmp_ge_u32 s6, 175")
        a("s_cselect_b32 s56, s%d, s56" % P_WO); a("s_cselect_b32 s57, s%d, s57" % (P_WO + 1)); a("s_cselect_b32 s7, s58, s7")
        a("s_lshl_b32 s7, s7, 13"); a("v_lshlrev_b32 v6, 7, v%d" % LANE); a("v_add_u32 v6, s7, v6")
        a.vmop("global_load_dword v127, v6, s[56:57]", "PF")
    G.srd(SUT, P_WS, 1835008, WS_UT); G.srd(SDBG, P_DBG, 256); G.srd(SOUT, P_OUT, 3670016)
    Lnz = a.newlabel("nz")
    a("s_cmp_ge_u32 s%d, 2" % SLOT); a("s_cbranch_scc1 %s" % Lnz)
    G.srd(SKV, P_WS, 65536 + 8192, WS_KV)
    a("v_mov_b32 v32, 0"); a("v_mov_b32 v33, 0"); a("v_lshlrev_b32 v3, 3, v%d" % LANE)
    a("s_lshl_b32 s6, s2, 12"); a("s_lshl_b32 s7, s%d, 9" % WAVE); a("s_add_u32 s6, s6, s7")
    a("buffer_store_dwordx2 v[32:33], v3, s[%d:%d], s6 offen sc1" % (SKV, SKV + 3))
    a("s_cmp_lg_u32 s%d, 0" % WAVE); a("s_cbranch_scc1 %s" % Lnz)
    a("s_lshl_b32 s6, s2, 9"); a("s_add_u32 s6, s6, 65536")
    a("buffer_store_dwordx2 v[32:33], v3, s[%d:%d], s6 offen sc1" % (SKV, SKV + 3))
    a.label(Lnz)
    a("v_bfe_u32 v3, v%d, 2, 2" % LANE); a("v_lshl_add_u32 v3, v2, 3, v3"); a("v_lshlrev_b32 v3, 7, v3")
    a("v_and_b32 v4, 3, v%d" % LANE); a("v_lshl_add_u32 v3, v4, 3, v3")
    a("s_lshl_b32 s6, s%d, 5" % S_CH); a("s_lshl_b32 s7, s%d, 12" % S_HF); a("s_add_u32 s6, s6, s7"); a("s_add_u32 s6, s6, %d" % USTG); a("v_add_u32 v3, s6, v3")
    a("s_lshl_b32 s6, s%d, 6" % S_GAM); a("s_lshl_b32 s7, s%d, 4" % S_CH); a("s_add_u32 s6, s6, s7"); a("s_lshl_b32 s6, s6, 12")
    a("s_lshl_b32 s7, s%d, 7" % S_RBK); a("s_add_u32 s6, s6, s7"); a("s_lshl_b32 s7, s%d, 6" % S_HF); a("s_add_u32 s6, s6, s7")
    a("v_lshlrev_b32 v4, 12, v1"); a("v_lshl_add_u32 v4, v2, 4, v4")
    a("s_mul_i32 s%d, s%d, 9216" % (S_KB, WAVE))
    a("v_mul_u32_u24 v5, %d, v1" % RS); a("v_lshl_add_u32 v5, v2, 4, v5"); a("v_add_u32 v%d, s%d, v5" % (FY, S_KB))
    a("v_min_u32 v6, 8, v1"); a("v_mul_u32_u24 v6, %d, v6" % RS); a("v_lshl_add_u32 v6, v2, 4, v6"); a("v_add_u32 v%d, s%d, v6" % (FX2, S_KB))
    Lw1 = a.newlabel("w1")
    a("s_cmp_ge_u32 s%d, 14" % SLOT); a("s_cbranch_scc1 %s" % Lw1)
    a("s_waitcnt vmcnt(0)")
    a.label(Lw1)
    a.vmwait("UT"); a("s_barrier")
    for hh in range(2): a("ds_read_b64_tr_b16 %s, v3 offset:%d" % (vr(YF + 2 * hh, 2), hh * 512))
    a("v_readfirstlane_b32 s%d, v124" % S_F0); a("v_readfirstlane_b32 s%d, v125" % S_F1)
    a("s_waitcnt lgkmcnt(0)")
    if "bnost" not in G.opts: a.vmop("buffer_store_dwordx4 %s, v4, s[%d:%d], s6 offen %s" % (vr(YF, 4), SUT, SUT + 3, "" if "bplainst" in G.opts else "sc1"), "UTS")
    G.stamp(1)
    a("s_and_b32 s6, s%d, 3" % S_GAM); a("s_lshl_b32 s6, s6, 6"); a("s_lshr_b32 s7, s%d, 2" % S_GAM); a("s_lshl_b32 s7, s7, 2")
    a("s_add_u32 s6, s6, s7"); a("s_add_u32 s51, s6, 4")
    SKX = 68
    G.srd(SKX, P_WS, 448 * 4096, WS_KX)
    def bcast_group(Lskip):
        a("s_cmp_lg_u32 s7, 31"); a("s_cbranch_scc1 %s" % Lskip)
        a("v_lshlrev_b32 v3, 7, v%d" % LANE); a("v_mov_b32 v4, 1"); a("s_lshl_b32 s6, s%d, 12" % S_GAM); a("s_add_u32 s6, s6, 65536")
        a("s_mov_b64 exec, 0xffffffff")
        a("buffer_atomic_add v4, v3, s[%d:%d], s6 offen sc1" % (SFL, SFL + 3))
        a("s_mov_b64 exec, -1")
    if "bexit1" in G.opts: a("s_branch K_exit")
    if "blexit" in G.opts:
        a("s_cmp_lt_u32 s%d, 14" % SLOT); a("s_cbranch_scc1 K_exit")
    a("s_cmp_ge_u32 s%d, 14" % SLOT); a("s_cbranch_scc1 B_heavy")
    a("s_waitcnt vmcnt(0)"); a("s_barrier")
    Lzs = a.newlabel("zs")
    a("s_cmp_ge_u32 s%d, 2" % SLOT); a("s_cbranch_scc1 %s" % Lzs); a("s_cmp_lg_u32 s%d, 6" % WAVE); a("s_cbranch_scc1 %s" % Lzs)
    a("v_mov_b32 v3, 32"); a("v_mov_b32 v4, 1"); a("s_mov_b64 exec, 1")
    a("buffer_atomic_add v4, v3, s[%d:%d], 0 offen sc1" % (SDBG, SDBG + 3)); a("s_mov_b64 exec, -1")
    a.label(Lzs)
    a("s_cmp_lg_u32 s%d, 7" % WAVE); a("s_cbranch_scc1 B_join")
    G.atomic_ret(51, 3, 4, 7)
    bcast_group("B_join")
    a("s_branch B_join")
    a.label("B_heavy")
    a.vmwait("PAR")
    a("v_lshlrev_b32 v%d, 16, v%d" % (DT, DT)); a("v_lshlrev_b32 v%d, 16, v%d" % (DS, DS))
    a("s_mov_b32 s50, 0x%x" % LOG2E)
    a("v_mul_f32 v%d, s50, v%d" % (DT, DT)); a("v_exp_f32 v%d, v%d" % (DT, DT))
    a("s_mov_b32 s6, 0x7fff7fff")
    a("v_and_b32 v3, s6, v%d" % CR); a("v_and_b32 v5, s6, v%d" % CI)
    a("v_pk_max_u16 v3, v3, v5")
    a("v_lshrrev_b32 v4, 16, v3"); a("v_and_b32 v3, 0xffff, v3"); a("v_max_u32 v3, v3, v4")
    a("v_cvt_pk_bf16_f32 v%d, v%d, v%d" % (DT, DT, DT)); a("v_lshlrev_b32 v%d, 16, v%d" % (DT, DT))
    for sh in (1, 2, 4, 8): a("v_max_u32_dpp v3, v3, v3 row_shr:%d row_mask:0xf bank_mask:0xf" % sh)
    a("v_max_u32_dpp v3, v3, v3 row_bcast:15 row_mask:0xa bank_mask:0xf")
    a("v_max_u32_dpp v3, v3, v3 row_bcast:31 row_mask:0xc bank_mask:0xf")
    a("v_mul_f32 v%d, 0x%x, v%d" % (KA, LOG2E | 0x80000000, DT)); a("v_mul_f32 v%d, 0.15915494, v%d" % (KT, DT))
    a("v_readlane_b32 s6, v3, 63")
    a("s_lshr_b32 s6, s6, 7"); a("s_sub_u32 s%d, 136, s6" % S_S)
    a("s_mov_b32 m0, s%d" % S_KB); a("v_mov_b32 v3, 0x3c00")
    a("ds_write_addtid_b32 v3 offset:0")
    for k in range(12): a("v_mov_b32 v%d, 0" % (ACC + k))
    a("s_mov_b32 s77, 0"); a("s_mov_b32 s78, 0x41000000"); a("s_mov_b32 s79, 0x43000000")

    def wait_flag0_load_u(pre):
        Lp = a.newlabel("bw")
        if pre:
            a("s_waitcnt vmcnt(0)"); a("v_readfirstlane_b32 s6, v8"); a("s_cmp_lg_u32 s6, s%d" % S_F0); a("s_cbranch_scc1 %s" % Lp)
        G.poll_flag(3, 4, S_F0, 0)
        a.label(Lp)
        a("v_lshlrev_b32 v8, 4, v%d" % LANE)
        a("s_lshl_b32 s6, s%d, 12" % S_D); a("s_lshl_b32 s7, s%d, 11" % S_HF); a("s_add_u32 s6, s6, s7")
        for k in range(2):
            a("buffer_load_dwordx4 %s, v8, s[%d:%d], s6 offen offset:%d %s" % (vr(120 + 4 * k, 4), SUT, SUT + 3, 1024 * k, G.HL))
    def cmul_batch(lst):
        assert len(lst) <= len(TP)
        if "kgnc" in G.opts: return
        for (d, x, y), t in zip(lst, TP): a("v_pk_mul_f32 %s, %s, %s op_sel:[0,0] op_sel_hi:[0,1]" % (vr(t, 2), vr(x, 2), vr(y, 2)))
        for (d, x, y), t in zip(lst, TP): a("v_pk_fma_f32 %s, %s, %s, %s op_sel:[1,1,0] op_sel_hi:[1,0,1] neg_lo:[1,0,0]" % (vr(d, 2), vr(x, 2), vr(y, 2), vr(t, 2)))
    def cvt(h, x, conj=False): a("v_cvt_pk_f16_f32 v%d, v%d, %sv%d" % (h, x, "-" if conj else "", x + 1))
    def wr(reg, row):
        if "kgnw" not in G.opts: a("ds_write_addtid_b32 v%d offset:%d" % (reg, row * RS))
    def prods(lst, extra=()):
        extra = list(extra)
        n = len(lst)
        for k in range(n + 4):
            if k < n and "kgnp" not in G.opts: a("v_pk_mul_f16 v%d, v%d, v%d op_sel:[0,0] op_sel_hi:[0,1]" % (PT[k % 8], lst[k][1], lst[k][2]))
            if 0 <= k - 2 < n and "kgnp" not in G.opts:
                j = k - 2
                a("v_pk_fma_f16 v%d, v%d, v%d, v%d op_sel:[1,1,0] op_sel_hi:[1,0,1] neg_lo:[1,0,0]" % (PR[j % 8], lst[j][1], lst[j][2], PT[j % 8]))
            if 0 <= k - 4 < n: wr(PR[(k - 4) % 8], lst[k - 4][0])
            if extra: a(extra.pop(0))
        for x in extra: a(x)
    X0, X1, X2 = 16, 1, 17
    a.label("KG_loop")
    for r, d in ((LA, 3), (AI, 4), (CR, 5), (CI, 6)):
        a("v_lshlrev_b32 v%d, 16, v%d" % (d, r)); a("v_lshrrev_b32 v%d, 16, v%d" % (r, r))
    a("v_mul_f32 v3, s50, v3"); a("v_exp_f32 v3, v3")
    a("v_mul_f32 v4, v4, v%d" % KT)
    a("v_ldexp_f32 v%d, v5, s%d" % (s_[0], S_S)); a("v_ldexp_f32 v%d, v6, s%d" % (s_[0] + 1, S_S))
    a("v_cvt_pk_bf16_f32 v3, v3, v3"); a("v_lshlrev_b32 v3, 16, v3"); a("v_mul_f32 v3, v3, v%d" % KA)
    m = [TP[0], TP[0] + 1, TP[1]]; ph = [TP[1] + 1, TP[2], TP[2] + 1]
    a("v_mul_f32 v%d, s78, v4" % ph[1]); a("v_mul_f32 v%d, s79, v4" % ph[2])
    a("v_fract_f32 v%d, v4" % ph[0]); a("v_fract_f32 v%d, v%d" % (ph[1], ph[1])); a("v_fract_f32 v%d, v%d" % (ph[2], ph[2]))
    a("v_mul_f32 v%d, s78, v3" % m[1]); a("v_mul_f32 v%d, s79, v3" % m[2])
    W = [w0, w3, w7]
    for k in range(3): a("v_cos_f32 v%d, v%d" % (W[k], ph[k])); a("v_sin_f32 v%d, v%d" % (W[k] + 1, ph[k]))
    a("v_exp_f32 v%d, v3" % m[0]); a("v_exp_f32 v%d, v%d" % (m[1], m[1])); a("v_exp_f32 v%d, v%d" % (m[2], m[2]))
    cvt(hs[0], s_[0])
    for k in range(3): a("v_mul_f32 v%d, v%d, v%d" % (W[k], W[k], m[k])); a("v_mul_f32 v%d, v%d, v%d" % (W[k] + 1, W[k] + 1, m[k]))
    cmul_batch([(w4, w3, w3), (w8, w7, w7), (s_[1], s_[0], w0), (w1, w0, w0)])
    Lit1 = a.newlabel("it1"); Lnp = a.newlabel("nopub")
    a("s_cmp_lg_u32 s77, 0"); a("s_cbranch_scc1 %s" % Lnp)
    a.vmwait("UTS"); a("s_barrier")
    a("s_cmp_lg_u32 s%d, 7" % WAVE); a("s_cbranch_scc1 %s" % Lnp)
    a("v_mov_b32 v3, s51"); a("v_mov_b32 v8, 1"); a("s_mov_b64 exec, 1")
    a("buffer_atomic_add v8, v3, s[%d:%d], 0 offen sc0 sc1" % (SDBG, SDBG + 3))
    a("s_mov_b64 exec, -1")
    a.label(Lnp)
    kp = [int(o[2:]) for o in G.opts if o.startswith("kp")]
    if kp: a("s_setprio %d" % kp[0])
    cvt(hw3, w3, True); cvt(hw7, w7); wr(hw3, 1)
    cmul_batch([(w5, w4, w4), (w9, w8, w8), (s_[2], s_[1], w0), (s_[3], s_[1], w1), (w2, w1, w1), (t3, w3, w4)])
    cvt(hw4, w4, True); cvt(hw8, w8); cvt(hs[1], s_[1]); wr(hw4, 2); wr(hs[1], X0 + 0)
    cmul_batch([(w6, w5, w5), (w10, w9, w9), (s_[4], s_[2], w1), (t7, w7, w8), (s_[5], s_[1], w2), (s_[6], s_[2], w2)])
    cvt(hw5, w5, True); cvt(ht3, t3, True); cvt(hs[2], s_[2]); cvt(hs[3], s_[3])
    wr(hw5, 4); wr(ht3, 3); wr(hs[2], X0 + 1); wr(hs[3], X0 + 2)
    cmul_batch([(t5, w5, w6), (s_[7], s_[3], w2), (s_[8], s_[4], w2), (S3a, s_[4], w9)])
    cvt(hw6, w6, True); cvt(ht7, t7); cvt(hs[4], s_[4]); cvt(hs[5], s_[5]); cvt(hs[6], s_[6])
    wr(hw6, 8); wr(hs[4], X0 + 3); wr(hs[5], X0 + 4); wr(hs[6], X0 + 5)
    cmul_batch([(S3b, s_[8], w9), (S4a, s_[8], w10)])
    cvt(ht5, t5, True); cvt(hs[7], s_[7]); cvt(hs[8], s_[8]); cvt(hS3a, S3a)
    wr(ht5, 12); wr(hs[7], X0 + 6); wr(hs[8], X0 + 7)
    cmul_batch([(S4b, S3b, w10)])
    cvt(hS3b, S3b); cvt(hS4a, S4a)
    lo = [None, hw3, hw4, ht3]; hi = [None, hw5, hw6, ht5]; M = [None, hw7, hw8, ht7]
    prods([(m0 + 4 * m1, lo[m0], hi[m1]) for m1 in (1, 2, 3) for m0 in (1, 2, 3)] + [(X0 + 8 + k, hs[k + 1], hw7) for k in range(8)],
          ["v_cvt_pk_f16_f32 v%d, v%d, v%d" % (hS4b, S4b, S4b + 1)])
    rd1 = []
    for ks in range(4):
        rd1.append("ds_read_b128 %s, v%d offset:%d" % (vr(YF + 4 * ks, 4), FY, ks * 64))
        rd1.append("ds_read_b128 %s, v%d offset:%d" % (vr(XF + 4 * ks, 4), FY, X0 * RS + ks * 64))
    for x in rd1: a(x)
    wr(hS3a, X1 + 8); wr(hS3b, X1 + 9); wr(hS4a, X2 + 0); wr(hS4b, X2 + 4); wr(hs[0], X2 + 8)
    p2 = ([(X1 + k, hs[2 * k + 2], hw8) for k in range(4)] + [(X1 + 4 + k, hs[2 * k + 2], ht7) for k in range(4)]
          + [(X1 + 8 + 2 * i, hS3a, M[i]) for i in (1, 2, 3)] + [(X1 + 9 + 2 * i, hS3b, M[i]) for i in (1, 2, 3)]
          + [(X2 + i, hS4a, M[i]) for i in (1, 2, 3)] + [(X2 + 4 + i, hS4b, M[i]) for i in (1, 2, 3)])
    prods(p2[:8])
    Lc1 = a.newlabel("chk1"); Lc2 = a.newlabel("chk2")
    a("s_cmp_lg_u32 s77, 0"); a("s_cbranch_scc1 %s" % Lc1)
    a("s_cmp_lg_u32 s%d, 7" % WAVE); a("s_cbranch_scc1 %s" % Lc2)
    a("s_waitcnt vmcnt(0)"); a("v_readfirstlane_b32 s7, v8")
    bcast_group(Lc2)
    a("s_branch %s" % Lc2)
    a.label(Lc1)
    a("buffer_load_dword v8, v9, s[%d:%d], 0 offen sc1" % (SFL, SFL + 3))
    a.label(Lc2)
    a("s_waitcnt lgkmcnt(8)")
    mf0 = ["v_mfma_f32_16x16x32_f16 %s, %s, %s, %s" % (vr(ACC, 4), vr(XF + 4 * ks, 4), vr(YF + 4 * ks, 4), vr(ACC, 4)) for ks in range(4)]
    prods(p2[8:], [mf0[0], "s_nop 0", mf0[1], "s_nop 0", mf0[2], "s_nop 0", mf0[3]])
    for ks in range(4):
        a("ds_read_b128 %s, v%d offset:%d" % (vr(XF + 4 * ks, 4), FY, X1 * RS + ks * 64))
        a("ds_read_b128 %s, v%d offset:%d" % (vr(XF2 + 4 * ks, 4), FX2, X2 * RS + ks * 64))
    for ks in range(4):
        a("s_waitcnt lgkmcnt(%d)" % (6 - 2 * ks))
        a("v_mfma_f32_16x16x32_f16 %s, %s, %s, %s" % (vr(ACC + 4, 4), vr(XF + 4 * ks, 4), vr(YF + 4 * ks, 4), vr(ACC + 4, 4)))
        a("v_mfma_f32_16x16x32_f16 %s, %s, %s, %s" % (vr(ACC + 8, 4), vr(XF2 + 4 * ks, 4), vr(YF + 4 * ks, 4), vr(ACC + 8, 4)))
    kq = [int(o[2:]) for o in G.opts if o.startswith("kq")]
    if kq: a("s_setprio %d" % kq[0])
    a("s_add_u32 s77, s77, 1"); a("s_cmp_lt_u32 s77, %d" % (22 if "kgl" in G.opts else 2)); a("s_cbranch_scc1 KG_loop")
    G.stamp(2)
    wait_flag0_load_u(True)
    a("v_add_f32 v%d, v%d, v%d" % (DT, DT, DT)); a("s_sub_u32 s7, 0, s%d" % S_S)
    for k in range(12): a("v_mul_f32 v%d, v%d, v%d" % (ACC + k, ACC + k, DT))
    for k in range(12): a("v_ldexp_f32 v%d, v%d, s7" % (ACC + k, ACC + k))
    a("v_add_u32 v3, s%d, v8" % S_KB)
    for k in range(3): a("ds_write_b128 v3, %s offset:%d" % (vr(ACC + 4 * k, 4), 1024 * k))
    a("s_xor_b32 s6, s%d, 4" % WAVE); a("s_mul_i32 s6, s6, 9216"); a("v_add_u32 v3, s6, v8")
    a("s_lshl_b32 s6, s%d, 11" % S_CH); a("s_add_u32 s59, s6, %d" % USTG)
    a("v_cmp_le_u32 vcc, 2, v2")
    a("s_waitcnt lgkmcnt(0)"); a("s_barrier")
    G.stamp(3)
    LT2 = a.newlabel("own2"); Lj = a.newlabel("ownj")
    a("s_cmp_lg_u32 s%d, 0" % S_HF); a("s_cbranch_scc1 %s" % LT2)
    for q in range(2): a("ds_read_b128 %s, v3 offset:%d" % (vr(32 + 4 * q, 4), q * 1024))
    a("v_lshrrev_b32 v3, 1, v2"); a("v_lshlrev_b32 v3, 8, v3"); a("v_lshl_add_u32 v3, v1, 4, v3"); a("v_and_b32 v4, 1, v2"); a("v_lshl_add_u32 v3, v4, 3, v3")
    a("v_add_u32 v44, s59, v3")
    a("v_lshlrev_b32 v3, 7, v2"); a("v_lshl_add_u32 v3, v1, 3, v3"); a("v_add_u32 v3, 528, v3"); a("v_add_u32 v4, 4, v3")
    a("v_lshlrev_b32 v5, 7, v2"); a("v_lshl_add_u32 v5, v1, 2, v5"); a("v_add_u32 v5, %d, v5" % (784 - 256)); a("v_add_u32 v6, 64, v5")
    a("v_cndmask_b32 v3, v3, v5, vcc"); a("v_cndmask_b32 v4, v4, v6, vcc")
    a("v_add_u32 v3, s59, v3"); a("v_add_u32 v4, s59, v4")
    a("s_waitcnt lgkmcnt(0)")
    for k in range(0, 8, 2): a("v_pk_add_f32 %s, %s, %s" % (vr(32 + k, 2), vr(32 + k, 2), vr(ACC + k, 2)))
    for k in range(4): a("v_cvt_pk_bf16_f32 v%d, v%d, v%d" % (40 + k, 32 + 2 * k, 33 + 2 * k))
    a("ds_write_b64 v44, v[40:41] offset:16")
    a("ds_write_b32 v3, v42"); a("ds_write_b32 v4, v43")
    a("s_branch %s" % Lj)
    a.label(LT2)
    a("ds_read_b128 v[32:35], v3 offset:2048")
    a("v_mov_b32 v3, 0"); a("v_cndmask_b32 v3, v3, v%d, vcc" % DS); a("v_add_f32 v%d, v%d, v3" % (ACC + 8, ACC + 8))
    a("v_lshlrev_b32 v3, 7, v2"); a("v_lshl_add_u32 v3, v1, 1, v3"); a("v_add_u32 v3, 1040, v3")
    a("v_cmp_eq_u32 vcc, 32, v%d" % LANE); a("v_mov_b32 v5, 14"); a("v_cndmask_b32 v4, v3, v5, vcc")
    a("v_add_u32 v3, s59, v3"); a("v_add_u32 v4, s59, v4")
    a("s_waitcnt lgkmcnt(0)")
    for k in (0, 2): a("v_pk_add_f32 %s, %s, %s" % (vr(32 + k, 2), vr(32 + k, 2), vr(ACC + 8 + k, 2)))
    a("v_cvt_pk_bf16_f32 v36, v32, v33"); a("v_cvt_pk_bf16_f32 v37, v34, v35")
    a("s_mov_b32 s6, -1"); a("s_mov_b32 s7, 1"); a("s_mov_b64 exec, s[6:7]")
    a("ds_write_b16 v4, v36")
    a("s_mov_b64 exec, 0xffffffff")
    a("ds_write_b16_d16_hi v3, v36 offset:32")
    a("ds_write_b16 v3, v37 offset:64"); a("ds_write_b16_d16_hi v3, v37 offset:96")
    a("s_mov_b64 exec, -1")
    a.label(Lj)
    a("s_waitcnt lgkmcnt(0)"); a("s_barrier")
    Lnpub = a.newlabel("npub")
    a("s_cmp_eq_u32 s%d, 0" % S_HF); a("s_cbranch_scc1 %s" % Lnpub)
    a("v_add_u32 v3, s59, v8")
    a("ds_read_b128 v[32:35], v3"); a("ds_read_b128 v[36:39], v3 offset:1024")
    a("s_lshl_b32 s6, s%d, 12" % S_D)
    a("s_waitcnt lgkmcnt(0)")
    a("buffer_store_dwordx4 v[32:35], v8, s[%d:%d], s6 offen sc1" % (SKX, SKX + 3))
    a("s_mov_b64 exec, 1")
    a("buffer_store_dwordx4 v[36:39], v8, s[%d:%d], s6 offen offset:1024 sc1" % (SKX, SKX + 3))
    a("s_mov_b64 exec, -1")
    a("s_waitcnt vmcnt(0)")
    a("s_xor_b32 s6, s%d, 128" % S_FA); a("v_mov_b32 v3, s6"); a("v_mov_b32 v4, 1"); a("s_mov_b64 exec, 1")
    a("buffer_atomic_add v4, v3, s[%d:%d], 0 offen offset:4 sc1" % (SFL, SFL + 3))
    a("s_mov_b64 exec, -1")
    a.label(Lnpub)
    a("s_branch B_join2")
    a.label("B_join"); a.fence(4)
    a("s_setprio 0")
    wait_flag0_load_u(False)
    a.label("B_join2"); a.fence(4)
    UR = 120
    cp = [int(o[2:]) for o in G.opts if o.startswith("cp")]
    a("s_setprio %d" % (cp[0] if cp else 3))
    a("s_lshl_b32 s%d, s%d, 14" % (S_KB, S_CH)); a("s_lshl_b32 s%d, s%d, 12" % (S_UB, S_CH)); a("s_add_u32 s%d, s%d, 65536" % (S_UB, S_UB))
    D = lambda k: 48 + 8 * k
    Rr = 32
    a("v_lshrrev_b32 v4, 1, v8"); a("v_lshrrev_b32 v5, 2, v8"); a("v_lshrrev_b32 v6, 3, v8")
    Lown = a.newlabel("eown"); Lrd = a.newlabel("erd"); Lo1 = a.newlabel("eo1"); Lp1 = a.newlabel("ep1")
    a("s_cmp_ge_u32 s%d, 14" % SLOT); a("s_cbranch_scc1 %s" % Lown)
    a("s_cmp_lg_u32 s%d, 0" % S_HF); a("s_cbranch_scc1 B_noexp")
    Lq = a.newlabel("pq"); Lqd = a.newlabel("pqd")
    a("s_mov_b32 s6, 0"); a("s_add_u32 s7, s%d, 4" % S_F1); a("s_mov_b64 exec, 1")
    a.label(Lq)
    a("buffer_load_dword v3, v9, s[%d:%d], 0 offen offset:4 sc1" % (SFL, SFL + 3))
    a("s_add_u32 s6, s6, 1"); a("s_waitcnt vmcnt(0)")
    a("v_cmp_eq_u32 vcc, s7, v3"); a("s_cbranch_vccnz %s" % Lqd)
    a("s_sleep %d" % G.SLEEP); a("s_cmp_lt_u32 s6, 0x%x" % POLL_CAP); a("s_cbranch_scc1 %s" % Lq)
    a.label(Lqd)
    a("s_mov_b64 exec, -1")
    a("s_lshl_b32 s6, s%d, 12" % S_D)
    gl = lambda kind, dst, va, off: a("buffer_load_%s %s, v%d, s[%d:%d], s6 offen offset:%d %s" % (kind, dst, va, SKX, SKX + 3, off, G.HL))
    gl("dwordx4", vr(Rr, 4), 8, 16); gl("dword", "v%d" % (Rr + 4), 8, 12); gl("dwordx2", vr(Rr + 6, 2), 4, 272); gl("dword", "v%d" % (Rr + 5), 4, 268)
    gl("dword", "v%d" % (Rr + 8), 5, 784); gl("dword", "v%d" % (Rr + 9), 5, 780)
    a("s_branch %s" % Lrd)
    a.label(Lown)
    a("v_add_u32 v3, s59, v8"); a("v_add_u32 v4, s59, v4"); a("v_add_u32 v5, s59, v5"); a("v_add_u32 v6, s59, v6")
    a("s_cmp_lg_u32 s%d, 0" % S_HF); a("s_cbranch_scc1 %s" % Lo1)
    a("ds_read_b128 %s, v3 offset:16" % vr(Rr, 4)); a("ds_read_b32 v%d, v3 offset:12" % (Rr + 4))
    a("ds_read_b64 %s, v4 offset:272" % vr(Rr + 6, 2)); a("ds_read_b32 v%d, v4 offset:268" % (Rr + 5))
    a("ds_read_b32 v%d, v5 offset:784" % (Rr + 8)); a("ds_read_b32 v%d, v5 offset:780" % (Rr + 9))
    a("s_branch %s" % Lrd)
    a.label(Lo1)
    for p in range(2):
        a("ds_read_u16 v%d, v6 offset:%d" % (Rr + 10 + 2 * p, 1038 + 128 * p)); a("ds_read_u16 v%d, v6 offset:%d" % (Rr + 11 + 2 * p, 1040 + 128 * p))
    a("ds_read_u16 v%d, v6 offset:1036" % (Rr + 14))
    a.label(Lrd)
    a("s_mov_b32 s6, 0xffff"); a("s_mov_b32 s7, 0x01000302"); a("s_mov_b32 s76, 0x03020302"); a("s_mov_b32 s77, 0x01000100")
    a("v_and_b32 v3, 1, v%d" % LANE); a("v_cmp_eq_u32 vcc, 1, v3")
    a("s_waitcnt vmcnt(0) lgkmcnt(0)"); a.vm = []
    L3 = a.newlabel("e1"); L4 = a.newlabel("e2")
    a("s_cmp_lg_u32 s%d, 0" % S_HF); a("s_cbranch_scc1 %s" % L3)
    d = D(0)
    a("v_perm_b32 v%d, v%d, v%d, s7" % (d, Rr + 7, Rr + 7)); a("v_perm_b32 v%d, v%d, v%d, s76" % (d + 1, Rr + 6, Rr + 6))
    a("v_perm_b32 v%d, v%d, v%d, s7" % (d + 2, Rr + 6, Rr + 6)); a("v_perm_b32 v%d, v%d, v%d, s76" % (d + 3, Rr + 5, Rr + 5))
    a("s_mov_b64 exec, 0xffffffff")
    a("v_bfi_b32 v%d, s6, v%d, v%d" % (d, Rr + 3, Rr + 2)); a("v_bfi_b32 v%d, s6, v%d, v%d" % (d + 1, Rr + 2, Rr + 1))
    a("v_bfi_b32 v%d, s6, v%d, v%d" % (d + 2, Rr + 1, Rr)); a("v_bfi_b32 v%d, s6, v%d, v%d" % (d + 3, Rr, Rr + 4))
    a("s_mov_b64 exec, -1")
    d = D(1)
    a("v_perm_b32 v%d, v%d, v%d, s76" % (d, Rr + 8, Rr + 8)); a("v_perm_b32 v%d, v%d, v%d, s77" % (d + 1, Rr + 8, Rr + 8))
    a("v_bfi_b32 v%d, s6, v%d, v%d" % (d + 2, Rr + 8, Rr + 9)); a("v_perm_b32 v%d, v%d, v%d, s76" % (d + 3, Rr + 9, Rr + 9))
    a("v_mov_b32 v10, 0"); a("v_mov_b32 v11, 0")
    a("s_branch %s" % L4)
    a.label(L3)
    for p in range(2):
        d = D(p); V0, V1 = Rr + 10 + 2 * p, Rr + 11 + 2 * p
        a("v_lshl_or_b32 v%d, v%d, 16, v%d" % (d, V1, V1)); a("v_lshl_or_b32 v%d, v%d, 16, v%d" % (d + 2, V0, V0)); a("v_mov_b32 v%d, v%d" % (d + 3, d + 2))
        a("v_cndmask_b32 v%d, v%d, v%d, vcc" % (V0, V0, V1)); a("v_lshl_or_b32 v%d, v%d, 16, v%d" % (d + 1, V0, V1))
    a("v_mov_b32 v10, v%d" % (D(0) + 2)); a("v_lshl_or_b32 v11, v%d, 16, v%d" % (Rr + 14, Rr + 14))
    a.label(L4)
    a("v_sub_u32 v3, 1008, v8")
    a("s_sub_u32 s6, 1, s%d" % S_HF); a("s_lshl_b32 s6, s6, 11"); a("s_add_u32 s6, s6, s%d" % S_KB)
    for sg in range(4):
        a("v_xor_b32 v4, %d, v3" % (sg << 6)); a("v_add_u32 v%d, s6, v4" % (Rr + sg))
    for k in range(2): a("ds_write_b128 v%d, %s offset:%d" % (Rr, vr(D(k), 4), 1024 * (1 - k)))
    for k in range(2): a("ds_read_b64 %s, v%d offset:%d" % (vr(D(k) + 4, 2), Rr, 1024 * (1 - k) + 16))
    a("s_waitcnt lgkmcnt(0)")
    a("s_mov_b64 exec, 1"); a("v_mov_b32 v%d, v10" % (D(0) + 4)); a("v_mov_b32 v%d, v11" % (D(0) + 5)); a("s_mov_b64 exec, -1")
    E = 64
    for k in range(2):
        d = D(k); e = E + 12 * k
        for q in range(4): a("v_alignbit_b32 v%d, v%d, v%d, 16" % (e + q, d + q + 1, d + q))
        a("ds_write_b128 v%d, %s offset:%d" % (Rr + 1, vr(e, 4), 4096 + 1024 * (1 - k)))
        for q in range(4): a("v_mov_b32 v%d, v%d" % (e + 4 + q, d + 1 + q))
        a("ds_write_b128 v%d, %s offset:%d" % (Rr + 2, vr(e + 4, 4), 8192 + 1024 * (1 - k)))
        for q in range(4): a("v_alignbit_b32 v%d, v%d, v%d, 16" % (e + 8 + q, d + q + 2, d + q + 1))
        a("ds_write_b128 v%d, %s offset:%d" % (Rr + 3, vr(e + 8, 4), 12288 + 1024 * (1 - k)))
    a.label("B_noexp"); a.fence(2)
    a("s_waitcnt vmcnt(0)")
    a("s_barrier")
    a("s_lshl_b32 s6, s%d, 11" % S_HF); a("s_add_u32 s6, s6, s%d" % S_UB); a("v_add_u32 v9, s6, v8")
    for k in range(2): a("ds_write_b128 v9, %s offset:%d" % (vr(UR + 4 * k, 4), 1024 * k))
    AA, BA, CA, AB, BB = 112, 120, 96, 32, 64
    a("v_lshrrev_b32 v3, 2, v1"); a("v_and_b32 v4, 3, v1"); a("v_sub_u32 v4, 3, v4")
    a("v_lshlrev_b32 v3, 3, v3"); a("v_lshlrev_b32 v5, 4, v2"); a("v_sub_u32 v3, v5, v3")
    a("s_sub_u32 s6, 1, s%d" % S_HF); a("s_lshl_b32 s6, s6, 8"); a("s_add_u32 s6, s6, s%d" % S_KB)
    a("v_lshlrev_b32 v5, 6, v4"); a("v_lshlrev_b32 v4, 12, v4"); a("v_add_u32 v4, s6, v4")
    for mm in range(4):
        for wh in range(2):
            a("v_add_u32 v6, %d, v3" % (216 - 64 * mm + 8 * wh)); a("v_xor_b32 v6, v6, v5"); a("v_add_u32 v%d, v6, v4" % (AA + 2 * mm + wh))
    a("s_lshl_b32 s7, s%d, 8" % S_HF)
    a("v_lshlrev_b32 v3, 5, v1"); a("v_lshl_add_u32 v3, v2, 4, v3"); a("v_subrev_u32 v10, s7, v3")
    a("s_sub_u32 s6, s%d, 288" % S_UB); a("v_add_u32 v11, s6, v10"); a("v_mov_b32 v12, 0")
    a("s_cmp_eq_u32 s%d, 0" % S_HF); a("s_cselect_b32 s77, 0x00ff0000, 0"); a("s_cselect_b32 s79, 0x0fff000f, 0"); a("s_mov_b32 s76, 0"); a("s_mov_b32 s78, 0")
    a("s_waitcnt lgkmcnt(0)"); a("s_barrier")
    G.stamp(4)
    Llo = a.newlabel("conv_lo"); Lout = a.newlabel("conv_out")
    a("s_cmp_lt_u32 s%d, 14" % SLOT); a("s_cbranch_scc1 %s" % Llo)
    def conv(ts):
        n = max(ts) + 1
        def rdA(mm, s):
            off = 512 * (7 - s)
            return ["ds_read_b64 %s, v%d offset:%d" % (vr(AB + 4 * s, 2), AA + 2 * mm, off), "ds_read_b64 %s, v%d offset:%d" % (vr(AB + 4 * s + 2, 2), AA + 2 * mm + 1, off)]
        def rdB(mm, q): return ["ds_read_b128 %s, v11 offset:%d" % (vr(BB + 4 * q, 4), 512 * q - 64 * mm + 256)]
        lst = [(ti, s, t - s) for ti, t in enumerate(ts) for s in range(t + 1)]
        lst.sort(key=lambda z: (z[1], -z[2]))
        lastA = {}; lastB = {}
        for k, (ti, s, q) in enumerate(lst): lastA[s] = k; lastB[q] = k
        for s in range(n):
            for x in rdA(0, s) + rdB(0, s): a(x)
        for mm in range(4):
            a("v_cmp_gt_i32 vcc, %d, v10" % (32 + 64 * mm))
            a("s_waitcnt lgkmcnt(0)")
            for k in range(4): a("v_cndmask_b32 v%d, v%d, v12, vcc" % (BB + k, BB + k))
            if mm == 0:
                a("s_mov_b64 exec, s[76:77]"); a("v_mov_b32 v%d, 0" % AB); a("v_mov_b32 v%d, 0" % (AB + 1))
                a("s_mov_b64 exec, s[78:79]"); a("v_mov_b32 v%d, 0" % (AB + 2)); a("v_mov_b32 v%d, 0" % (AB + 3))
                a("s_mov_b64 exec, -1")
            seen = set(); pend = []
            for k, (ti, s, q) in enumerate(lst):
                c = vr(CA + 4 * ti, 4)
                first = mm == 0 and ti not in seen; seen.add(ti)
                a("v_mfma_f32_16x16x32_bf16 %s, %s, %s, %s" % (c, vr(AB + 4 * s, 4), vr(BB + 4 * q, 4), "0" if first else c))
                for x in pend: a(x)
                pend = []
                if mm + 1 < 4:
                    if lastA[s] == k: pend += rdA(mm + 1, s)
                    if lastB[q] == k: pend += rdB(mm + 1, q)
            if pend: a("s_nop 3")
            for x in pend: a(x)
    conv([7, 6, 5, 4])
    a("s_mov_b32 s76, 0x04050607")
    a("s_branch %s" % Lout)
    a.label(Llo)
    conv([3, 2, 1, 0])
    a("s_mov_b32 s76, 0x00010203")
    a.label(Lout); a.fence(8)
    if "noop3" not in G.opts: a("s_setprio 3")
    G.stamp(5)
    a("s_barrier")
    L5 = a.newlabel("x1"); L6 = a.newlabel("x2")
    a("s_lshl_b32 s6, s%d, 11" % WAVE); a("v_add_u32 v3, s6, v8")
    a("s_xor_b32 s6, s%d, 4" % WAVE); a("s_lshl_b32 s6, s6, 11"); a("v_add_u32 v4, s6, v8")
    a("s_cmp_eq_u32 s%d, 0" % S_HF); a("s_cbranch_scc1 %s" % L5)
    for k in range(2): a("ds_write_b128 v3, %s offset:%d" % (vr(CA + 4 * k, 4), 1024 * k))
    a("s_nop 3")
    for k in range(8): a("v_mov_b32 v%d, v%d" % (CA + k, CA + 8 + k))
    a("s_branch %s" % L6)
    a.label(L5)
    for k in range(2): a("ds_write_b128 v3, %s offset:%d" % (vr(CA + 8 + 4 * k, 4), 1024 * k))
    a.label(L6)
    a("s_waitcnt lgkmcnt(0)"); a("s_barrier")
    for k in range(2): a("ds_read_b128 %s, v4 offset:%d" % (vr(32 + 4 * k, 4), 1024 * k))
    a("v_lshlrev_b32 v3, 5, v1"); a("v_lshl_add_u32 v3, v2, 3, v3")
    a("s_mul_i32 s6, s%d, 2112" % S_CH); a("s_lshl_b32 s7, s%d, 10" % S_HF); a("s_add_u32 s6, s6, s7"); a("s_add_u32 s6, s6, 32768"); a("v_add_u32 v3, s6, v3")
    a("v_bfe_u32 v5, v%d, 2, 2" % LANE); a("v_mul_u32_u24 v5, 2112, v5"); a("v_lshl_add_u32 v5, v2, 5, v5")
    a("v_and_b32 v4, 3, v%d" % LANE); a("v_lshl_add_u32 v5, v4, 3, v5"); a("s_lshl_b32 s6, s%d, 8" % WAVE); a("s_add_u32 s6, s6, 32768"); a("v_add_u32 v5, s6, v5")
    a("s_lshr_b32 s6, s%d, 1" % WAVE); a("s_lshl_b32 s6, s6, 3"); a("s_lshr_b32 s6, s76, s6"); a("s_and_b32 s6, s6, 0xff"); a("s_lshl_b32 s6, s6, 1")
    a("s_and_b32 s7, s%d, 1" % WAVE); a("s_add_u32 s6, s6, s7"); a("s_mul_i32 s6, s6, %d" % (128 * 1792))
    a("s_lshl_b32 s7, s%d, 3" % S_CQ); a("s_add_u32 s6, s6, s7"); a("s_add_u32 s6, s6, 896"); a("s_add_u32 s7, s6, %d" % (64 * 1792))
    a("v_mul_u32_u24 v4, 1792, v%d" % LANE)
    a("s_waitcnt lgkmcnt(0)")
    for k in range(0, 8, 2): a("v_pk_add_f32 %s, %s, %s" % (vr(CA + k, 2), vr(CA + k, 2), vr(32 + k, 2)))
    for k in range(4): a("v_cvt_pk_bf16_f32 v%d, v%d, v%d" % (40 + k, CA + 2 * k, CA + 2 * k + 1))
    for k in range(2): a("ds_write_b64 v3, %s offset:%d" % (vr(40 + 2 * k, 2), 512 * k))
    a("s_waitcnt lgkmcnt(0)"); a("s_barrier")
    for k in range(2): a("ds_read_b64_tr_b16 %s, v5 offset:%d" % (vr(44 + 2 * k, 2), 128 * k))
    for k in range(2):
        a("s_waitcnt lgkmcnt(%d)" % (1 - k))
        a.vmop("buffer_store_dwordx2 %s, v4, s[%d:%d], s%d offen" % (vr(44 + 2 * k, 2), SOUT, SOUT + 3, 6 + k), "S")
    G.stamp(6)
    G.dump_stamps('B')
```

```python
import sys
from asmlib import *

KNAME = "concat_heads__linear_attn_block__ssm_conv_s4d__prompt_kernel"
NWG = 480
LDS = 81920
WS_PQ, WS_UT, WS_KV, WS_FL, WS_TS, WS_KX = 0, 0x200000, 0x400000, 0x480000, 0x500000, 0x600000
LOG2E = 0x3fb8aa3b
EPS = 0x358637bd
POLL_CAP = 1 << 15

XCD, SLOT, WAVE = 3, 4, 5
P_X, P_W, P_WO, P_U, P_LA, P_AI, P_CR, P_CI, P_DT, P_DS, P_OUT, P_DBG, P_WS = 16, 18, 20, 22, 24, 26, 28, 30, 32, 34, 36, 38, 40
S_F0, S_F1, S_FA = 42, 43, 100
SX, SW, SPQ, SKV, SOUT, SDBG, SWO, SUT, SU, SFL = 44, 48, 52, 56, 60, 64, 68, 52, 44, 72
TS0 = 80
LANE = 7

class Gen:
    def __init__(self, stamps=False, opts=()):
        self.a = Asm()
        self.opts = set(opts)
        self.stamps = stamps
        self.SLEEP = 2
        for o in self.opts:
            if o.startswith('sleep'): self.SLEEP = int(o[5:])
        self.HL = "nt" if "nt" in self.opts else ("" if "plain" in self.opts else "sc1")

    def srd(self, d, p, nbytes, off=0):
        a = self.a
        if off:
            a("s_add_u32 s%d, s%d, 0x%x" % (d, p, off)); a("s_addc_u32 s%d, s%d, 0" % (d + 1, p + 1))
        else:
            a("s_mov_b32 s%d, s%d" % (d, p)); a("s_mov_b32 s%d, s%d" % (d + 1, p + 1))
        a("s_mov_b32 s%d, 0x%x" % (d + 2, nbytes)); a("s_mov_b32 s%d, 0x00020000" % (d + 3))

    def stamp(self, k):
        if not self.stamps: return
        self.a("s_memrealtime s[%d:%d]" % (TS0 + 2 * k, TS0 + 2 * k + 1))
        self.a("s_waitcnt lgkmcnt(0)")

    def dump_stamps(self, role='A'):
        if not self.stamps: return
        a = self.a
        a.vmwait_all()
        self.stamp(9)
        if "hstamps" in self.opts:
            L = a.newlabel("hs")
            a("s_cmp_lg_u32 s%d, 0" % WAVE); a("s_cbranch_scc1 %s" % L)
            wg, pairs, base = (288, [(1, 2), (3, 4), (5, 6), (7, 8), (9, 9)], [36, 40, 44, 48, 52]) if role == "A" else (32, [(1, 2), (3, 4), (5, 9)], [56, 60, 12])
            a("s_cmp_lg_u32 s2, %d" % wg); a("s_cbranch_scc1 %s" % L)
            a("s_mov_b64 exec, 1")
            for (k1, k2), off in zip(pairs, base):
                a("s_sub_u32 s6, s%d, s%d" % (TS0 + 2 * k1, TS0)); a("s_sub_u32 s7, s%d, s%d" % (TS0 + 2 * k2, TS0))
                a("s_mul_i32 s7, s7, 10000"); a("s_add_u32 s6, s6, s7"); a("v_mov_b32 v1, s6"); a("v_mov_b32 v0, %d" % off)
                a("buffer_store_dword v1, v0, s[%d:%d], 0 offen" % (SDBG, SDBG + 3))
            a("s_mov_b64 exec, -1")
            a.label(L)
            return
        self.srd(76, P_WS, 0x100000, WS_TS)
        a("s_lshl_b32 s6, s2, 3"); a("s_add_u32 s6, s6, s%d" % WAVE); a("s_lshl_b32 s6, s6, 6")
        a("v_mov_b32 v0, s6")
        a("s_mov_b64 exec, 1")
        for k in range(10):
            a("v_mov_b32 v1, s%d" % (TS0 + 2 * k))
            a("buffer_store_dword v1, v0, s[76:79], 0 offen offset:%d" % (4 * k))
        a("s_mov_b64 exec, -1")

    def atomic_ret(self, s_off, va, vb, s_dst, srd=None):
        a = self.a
        SDBG = srd if srd is not None else globals()["SDBG"]
        a("v_mov_b32 v%d, s%d" % (va, s_off)); a("v_mov_b32 v%d, 1" % vb)
        a("s_mov_b64 exec, 1")
        a("buffer_atomic_add v%d, v%d, s[%d:%d], 0 offen sc0 sc1" % (vb, va, SDBG, SDBG + 3))
        a("s_mov_b64 exec, -1")
        a("s_waitcnt vmcnt(0)")
        a("v_readfirstlane_b32 s%d, v%d" % (s_dst, vb))

    def poll_flag(self, va, vv, s_old, off=0):
        a = self.a
        L = a.newlabel("poll"); D = a.newlabel("polld")
        a("s_mov_b32 s6, 0"); a("v_mov_b32 v%d, s%d" % (va, S_FA))
        a("s_mov_b64 exec, 1")
        a.label(L)
        a("buffer_load_dword v%d, v%d, s[%d:%d], 0 offen offset:%d sc1" % (vv, va, SFL, SFL + 3, off))
        a("s_add_u32 s6, s6, 1")
        a("s_waitcnt vmcnt(0)")
        a("v_cmp_ne_u32 vcc, s%d, v%d" % (s_old, vv))
        a("s_cbranch_vccnz %s" % D)
        a("s_sleep %d" % self.SLEEP)
        a("s_cmp_lt_u32 s6, 0x%x" % POLL_CAP)
        a("s_cbranch_scc1 %s" % L)
        a.label(D)
        a("s_mov_b64 exec, -1")

    def poll2(self, va, vv):
        a = self.a
        L = a.newlabel("poll"); D = a.newlabel("polld")
        a("s_mov_b32 s6, 0"); a("v_mov_b32 v%d, s%d" % (va, S_FA))
        a("s_mov_b64 exec, 1")
        a.label(L)
        a("buffer_load_dwordx2 %s, v%d, s[%d:%d], 0 offen sc1" % (vr(vv, 2), va, SFL, SFL + 3))
        a("s_add_u32 s6, s6, 1")
        a("s_waitcnt vmcnt(0)")
        a("v_cmp_ne_u64 vcc, s[%d:%d], %s" % (S_F0, S_F1, vr(vv, 2)))
        a("s_cbranch_vccnz %s" % D)
        a("s_sleep %d" % self.SLEEP)
        a("s_cmp_lt_u32 s6, 0x%x" % POLL_CAP)
        a("s_cbranch_scc1 %s" % L)
        a.label(D)
        a("s_mov_b64 exec, -1")

    def phi(self, base, n, tmp):
        a = self.a
        for k in range(0, n, 2): a("v_pk_mul_f32 %s, %s, s[14:15]" % (vr(tmp + k, 2), vr(base + k, 2)))
        for k in range(n):
            a("v_exp_f32_e64 v%d, v%d clamp" % (tmp + k, tmp + k))
            a("v_max_f32 v%d, s13, v%d" % (base + k, base + k))
        for k in range(0, n, 2): a("v_pk_add_f32 %s, %s, %s" % (vr(base + k, 2), vr(base + k, 2), vr(tmp + k, 2)))

    def gemm(self):
        a = self.a
        XA, GA, XR0, XR1, ZV, DA, FA, FLV, DQ = 1, 2, 3, 4, 5, 6, 8, 12, 14
        F0, F1, ACC, FQ = 16, 40, 64, 96
        T, PK = 80, 88
        RING, XRING, XBASE, SCR = 5, 3, 40960, 65536
        S_WB, S_T, S_RT, S_C, S_M, S_X = 9, 10, 11, 12, 8, 76
        a("s_sub_u32 s7, s%d, 28" % SLOT); a("s_lshr_b32 s6, s7, 3"); a("s_and_b32 s%d, s7, 7" % S_C)
        a("s_mul_i32 s%d, s%d, 112" % (S_WB, S_C)); a("s_add_u32 s%d, s%d, 896" % (S_WB, S_WB))
        a("s_lshl_b32 s%d, s%d, 2" % (S_RT, XCD)); a("s_add_u32 s%d, s%d, s6" % (S_RT, S_RT))
        a("s_lshl_b32 s7, s%d, 3" % S_RT); a("s_add_u32 s7, s7, s%d" % WAVE); a("s_mul_i32 s%d, s7, 7168" % S_X)
        a("s_lshl_b32 s%d, s2, 7" % S_FA)
        a("s_lshl_b32 s6, s6, 1"); a("s_add_u32 s6, s6, s%d" % S_C)
        a("s_cmp_ge_u32 s6, 7"); a("s_cselect_b32 s7, 7, 0"); a("s_sub_u32 s6, s6, s7")
        if "norot" in self.opts: a("s_mov_b32 s6, 0")
        a("s_lshl_b32 s69, s6, 7"); a("s_mul_i32 s68, s6, %d" % (64 * 2688))
        t = F0; I, Gq = F0 + 8, F0 + 9
        a("v_and_b32 v%d, 15, v%d" % (I, LANE)); a("v_lshrrev_b32 v%d, 4, v%d" % (Gq, LANE))
        a("v_lshrrev_b32 v%d, 3, v%d" % (t, LANE)); a("v_and_b32 v%d, 7, v%d" % (t + 1, LANE))
        a("v_xor_b32 v%d, v%d, v%d" % (t + 1, t + 1, t))
        a("v_mul_u32_u24 v%d, 896, v%d" % (t + 2, t)); a("v_lshl_add_u32 v%d, v%d, 4, v%d" % (XA, t + 1, t + 2))
        a("s_and_b32 s6, s%d, 2" % WAVE); a("s_lshl_b32 s6, s6, 1")
        a("v_or_b32 v%d, s6, v%d" % (t + 4, Gq))
        a("v_lshrrev_b32 v%d, 1, v%d" % (t + 5, I)); a("v_xor_b32 v%d, v%d, v%d" % (t + 5, t + 5, t + 4))
        a("v_and_b32 v%d, 1, v%d" % (t + 6, I)); a("v_lshl_or_b32 v%d, v%d, 1, v%d" % (t + 5, t + 5, t + 6))
        a("v_lshrrev_b32 v%d, 3, v%d" % (t + 6, t + 5))
        a("v_and_b32 v%d, 7, v%d" % (t + 5, t + 5)); a("v_min_u32 v%d, 6, v%d" % (t + 3, t + 5))
        a("s_lshl_b32 s6, s%d, 2" % WAVE); a("v_add_u32 v%d, s6, v%d" % (t + 7, Gq)); a("v_mul_u32_u24 v%d, 2688, v%d" % (t + 7, t + 7))
        a("v_mul_u32_u24 v%d, 896, v%d" % (t + 4, t + 6))
        a("v_lshl_add_u32 v%d, v%d, 4, v%d" % (t + 3, t + 3, t + 7)); a("v_add_u32 v%d, v%d, v%d" % (DA, t + 3, t + 4))
        a("s_lshl_b32 s%d, s%d, 10" % (S_M, WAVE))
        a("v_mov_b32 v0, s%d" % S_FA)
        a("s_waitcnt lgkmcnt(0)")
        self.srd(SX, P_X, 1835008); self.srd(SW, P_W, 1204224)
        self.stamp(0)
        NU = 21
        isq = lambda u: u >= 14
        chunk = lambda u: (u >> 1) if u < 14 else u - 7
        newchunk = lambda u: u >= 14 or (u & 1) == 0
        def dma(u):
            if u == 14:
                a("s_min_u32 s%d, s%d, 6" % (S_WB, S_C)); a("s_lshl_b32 s%d, s%d, 7" % (S_WB, S_WB))
            a("s_add_u32 m0, s%d, %d" % (S_M, (u % RING) * 8192))
            a("s_add_u32 s%d, s%d, s68" % (S_T, S_WB))
            a.vmop("buffer_load_dwordx4 v%d, s[%d:%d], s%d offen lds" % (DQ if isq(u) else DA, SW, SW + 3, S_T), ("W", u))
            a("s_add_u32 s68, s68, %d" % ((64 if isq(u) else 32) * 2688)); a("s_cmp_ge_u32 s68, %d" % (448 * 2688)); a("s_cselect_b32 s68, 0, s68")
        def xload(c):
            a("s_add_u32 m0, s%d, %d" % (S_M, XBASE + (c % XRING) * 8192))
            a("s_add_u32 s%d, s%d, s69" % (S_T, S_X))
            a.vmop("buffer_load_dwordx4 v%d, s[%d:%d], s%d offen lds" % (XA, SX, SX + 3, S_T), ("X", c))
            a("s_add_u32 s69, s69, 128"); a("s_cmp_ge_u32 s69, 896"); a("s_cselect_b32 s69, 0, s69")
        self.srd(SKV, P_WS, 65536 + 16384, WS_KV)
        L = a.newlabel("nz")
        a("s_cmp_lg_u32 s%d, 7" % S_C); a("s_cbranch_scc1 %s" % L)
        a("s_cmp_ge_u32 s%d, 5" % WAVE); a("s_cbranch_scc1 %s" % L)
        for k in range(2): a("v_mov_b32 v%d, 0" % (F1 + k))
        a("s_lshl_b32 s6, s%d, 11" % S_RT); a("s_lshl_b32 s7, s%d, 9" % WAVE); a("s_add_u32 s6, s6, s7")
        a("s_lshl_b32 s7, s%d, 9" % S_RT); a("s_add_u32 s7, s7, 65536"); a("s_cmp_eq_u32 s%d, 4" % WAVE); a("s_cselect_b32 s6, s7, s6")
        a("v_lshlrev_b32 v5, 3, v%d" % LANE)
        a("buffer_store_dwordx2 v[%d:%d], v5, s[%d:%d], s6 offen sc1" % (F1, F1 + 1, SKV, SKV + 3))
        a.label(L)
        xload(0); dma(0); a("s_barrier")
        dma(1); xload(1); dma(2); a("s_barrier"); dma(3); xload(2); dma(4)
        self.srd(SFL, P_WS, 131072, WS_FL)
        a.vmop("buffer_load_dwordx2 %s, v0, s[%d:%d], 0 offen sc1" % (vr(FLV, 2), SFL, SFL + 3), "FL")
        self.srd(SDBG, P_DBG, 256); self.srd(SPQ, P_WS, 1835008, WS_PQ)
        a("v_mul_u32_u24 v%d, %d, v%d" % (t + 4, 32 * 2688, t + 6))
        a("v_lshl_add_u32 v%d, v%d, 4, v%d" % (t + 3, t + 5, t + 7)); a("v_add_u32 v%d, v%d, v%d" % (DQ, t + 3, t + 4))
        a("s_lshr_b32 s6, s%d, 1" % WAVE); a("s_lshl_b32 s6, s6, 11"); a("s_add_u32 s6, s6, %d" % XBASE)
        a("v_and_b32 v%d, 7, v%d" % (t, I)); a("v_xor_b32 v%d, v%d, v%d" % (t, t, Gq)); a("v_lshlrev_b32 v%d, 4, v%d" % (t, t)); a("v_lshl_add_u32 v%d, v%d, 7, v%d" % (t, I, t))
        a("v_xor_b32 v%d, 64, v%d" % (t + 1, t)); a("v_add_u32 v%d, s6, v%d" % (XR0, t)); a("v_add_u32 v%d, s6, v%d" % (XR1, t + 1))
        a("v_bfe_u32 v%d, v%d, 2, 2" % (t, LANE)); a("v_and_b32 v%d, 3, v%d" % (t + 1, LANE))
        a("v_and_b32 v%d, 1, v%d" % (t + 2, Gq)); a("v_lshl_or_b32 v%d, v%d, 2, v%d" % (t + 2, t + 2, t))
        a("v_lshl_add_u32 v%d, v%d, 3, v%d" % (t + 3, Gq, t)); a("v_lshlrev_b32 v%d, 8, v%d" % (t + 3, t + 3))
        a("s_and_b32 s7, s%d, 1" % WAVE)
        for q in range(2):
            for tt in range(4):
                if q: a("s_lshl_b32 s6, s7, 6"); a("s_add_u32 s6, s6, %d" % (128 * (tt >> 1) + 32 * (tt & 1)))
                else: a("s_mul_i32 s6, s7, %d" % (48 if tt < 2 else 56)); a("s_add_u32 s6, s6, %d" % (32 * tt if tt < 2 else 128 + 32 * (tt - 2)))
                a("v_lshlrev_b32 v%d, 3, v%d" % (t + 4, t + 1)); a("v_add_u32 v%d, s6, v%d" % (t + 4, t + 4))
                a("v_lshrrev_b32 v%d, 5, v%d" % (t + 5, t + 4)); a("v_xor_b32 v%d, v%d, v%d" % (t + 5, t + 5, t + 2))
                a("v_and_b32 v%d, 31, v%d" % (t + 4, t + 4)); a("v_lshl_or_b32 v%d, v%d, 5, v%d" % (t + 4, t + 5, t + 4))
                a("v_add_u32 v%d, v%d, v%d" % ((FQ if q else FA) + tt, t + 4, t + 3))
        a("s_mov_b32 s14, 0x%x" % LOG2E); a("s_mov_b32 s15, 0x%x" % LOG2E); a("s_mov_b32 s13, 0x%x" % EPS)
        a("v_lshlrev_b32 v15, 4, v%d" % LANE)
        a("s_and_b32 s6, s%d, 2" % WAVE); a("s_lshl_b32 s6, s6, 1"); a("v_add_u32 v%d, s6, v%d" % (t + 4, t)); a("v_lshl_add_u32 v%d, v%d, 2, v%d" % (t + 5, t + 4, Gq))
        a("v_cmp_eq_u32 vcc, 7, v%d" % (t + 4)); a("v_mov_b32 v%d, 28" % (t + 6)); a("v_cndmask_b32 v%d, v%d, v%d, vcc" % (t + 5, t + 5, t + 6))
        a("v_lshrrev_b32 v%d, 4, v%d" % (t + 4, t + 5)); a("v_lshlrev_b32 v%d, 11, v%d" % (t + 4, t + 4)); a("v_bfe_u32 v%d, v%d, 2, 2" % (t + 6, t + 5)); a("v_lshl_add_u32 v%d, v%d, 8, v%d" % (t + 4, t + 6, t + 4))
        a("v_and_b32 v%d, 3, v%d" % (t + 6, t + 5)); a("v_lshl_add_u32 v%d, v%d, 2, v%d" % (t + 4, t + 6, t + 4)); a("v_lshl_add_u32 v%d, v%d, 4, v%d" % (t + 4, t + 1, t + 4))
        a("s_lshr_b32 s6, s%d, 2" % WAVE); a("s_lshl_b32 s6, s6, 12"); a("s_lshl_b32 s7, s7, 6")
        a("s_add_u32 s6, s6, s7"); a("s_add_u32 s6, s6, %d" % SCR); a("v_add_u32 v%d, s6, v%d" % (GA, t + 4))
        def freads_l(u):
            out = []
            Fb = F1 if u & 1 else F0
            c = chunk(u)
            for kk in ((0, 1) if isq(u) else (u & 1,)):
                out.append("ds_read_b128 %s, v%d offset:%d" % (vr(Fb + 16 + (4 * kk if isq(u) else 0), 4), XR1 if kk else XR0, (c % XRING) * 8192))
            for tt in range(4):
                for hh in range(2):
                    out.append("ds_read_b64_tr_b16 %s, v%d offset:%d" % (vr(Fb + 4 * tt + 2 * hh, 2), (FQ if isq(u) else FA) + tt, (u % RING) * 8192 + hh * 1024))
            return out
        def mfmas_l(u):
            out = []
            Fb = F1 if u & 1 else F0
            for tt in range(4):
                if isq(u):
                    acc = ACC + (tt & 1) * 4; x = Fb + 16 + (tt >> 1) * 4; first = (u == 14 and tt < 2)
                    out.append("v_mfma_f32_16x16x32_bf16 %s, %s, %s, %s" % (vr(acc, 4), vr(Fb + 4 * tt, 4), vr(x, 4), "0" if first else vr(acc, 4)))
                else:
                    acc = ACC + tt * 4
                    out.append("v_mfma_f32_16x16x32_bf16 %s, %s, %s, %s" % (vr(acc, 4), vr(Fb + 16, 4), vr(Fb + 4 * tt, 4), "0" if u == 0 else vr(acc, 4)))
            return out
        def kv_epilogue():
            self.stamp(2)
            self.phi(ACC, 8, T)
            for k in range(8): a("v_cvt_pk_bf16_f32 v%d, v%d, v%d" % (PK + k, ACC + 2 * k, ACC + 2 * k + 1))
            a("s_mov_b32 s6, 0x10001000"); a("s_mov_b32 s7, s6"); a("s_mov_b64 exec, s[6:7]"); a("s_mov_b32 s6, 0x3f803f80")
            a("v_mov_b32 v%d, s6" % (PK + 6)); a("v_mov_b32 v%d, s6" % (PK + 7))
            a("s_mov_b64 exec, -1")
            a("s_and_b32 s6, s%d, 1" % WAVE); a("s_lshl_b32 s6, s6, 13"); a("s_lshr_b32 s7, s%d, 2" % WAVE); a("s_lshl_b32 s7, s7, 10"); a("s_add_u32 s6, s6, s7")
            a("s_and_b32 s7, s%d, 2" % WAVE); a("s_lshl_b32 s7, s7, 2"); a("s_add_u32 s6, s6, s7"); a("s_add_u32 s6, s6, %d" % SCR); a("v_add_u32 v0, s6, v15")
            for tt in range(4): a("ds_write_b64 v0, %s offset:%d" % (vr(PK + 2 * tt, 2), tt * 2048))
            a("s_lshr_b32 s6, s%d, 2" % WAVE); a("s_lshl_b32 s6, s6, 13"); a("s_add_u32 s6, s6, %d" % SCR)
            a("s_and_b32 s7, s%d, 1" % WAVE); a("s_lshl_b32 s7, s7, 11"); a("s_add_u32 s7, s7, s6"); a("v_add_u32 v%d, s7, v15" % T)
            a("s_and_b32 s7, s%d, 2" % WAVE); a("s_lshl_b32 s7, s7, 10"); a("s_add_u32 s7, s7, s6"); a("v_add_u32 v%d, s7, v15" % (T + 1))
            Lok = a.newlabel("zok"); Lz = a.newlabel("zp")
            a("s_cmp_lg_u32 s%d, 7" % WAVE); a("s_cbranch_scc1 %s" % Lok)
            a("s_mov_b32 s6, 0"); a("v_mov_b32 v0, 32")
            a.label(Lz)
            a("v_readfirstlane_b32 s7, v%d" % ZV); a("s_cmp_ge_u32 s7, 32"); a("s_cbranch_scc1 %s" % Lok)
            a("s_sleep 8")
            a("buffer_load_dword v%d, v0, s[%d:%d], 0 offen sc1" % (ZV, SDBG, SDBG + 3))
            a("s_add_u32 s6, s6, 1"); a("s_waitcnt vmcnt(0)"); a("s_cmp_lt_u32 s6, 0x%x" % POLL_CAP); a("s_cbranch_scc1 %s" % Lz)
            a.label(Lok)
            a("s_waitcnt lgkmcnt(0)"); a("s_barrier")
            R = 100
            for p in range(2):
                a("ds_read_b128 %s, v%d offset:%d" % (vr(R + 8 * p, 4), T, p * 1024))
                a("ds_read_b128 %s, v%d offset:%d" % (vr(R + 8 * p + 4, 4), T + 1, 4096 + p * 1024))
            a("s_lshl_b32 s6, s%d, 10" % WAVE); a("s_add_u32 s6, s6, %d" % SCR); a("v_add_u32 v0, s6, v15")
            a("s_waitcnt lgkmcnt(2)")
            a("v_mfma_f32_16x16x32_bf16 %s, %s, %s, 0" % (vr(R + 16, 4), vr(R + 4, 4), vr(R, 4)))
            a("s_waitcnt lgkmcnt(0)")
            a("v_mfma_f32_16x16x32_bf16 %s, %s, %s, %s" % (vr(R + 16, 4), vr(R + 12, 4), vr(R + 8, 4), vr(R + 16, 4)))
            a("s_barrier")
            a("ds_write_b128 v0, %s" % vr(R + 16, 4))
            a("s_lshl_b32 s6, s%d, 3" % S_C); a("s_add_u32 s6, s6, s%d" % WAVE); a("s_lshl_b32 s6, s6, 10")
            a("v_lshrrev_b32 v0, 2, v15")
            a("s_waitcnt lgkmcnt(0)"); a("s_barrier")
            for gp in range(4): a("ds_read_b32 v%d, v%d offset:%d" % (R + gp, GA, (gp >> 1) * 1024 + (gp & 1) * 128))
            for gp in range(4):
                a("s_waitcnt lgkmcnt(%d)" % (3 - gp))
                a.vmop("buffer_atomic_add_f32 v%d, v0, s[%d:%d], s6 offen offset:%d" % (R + gp, SKV, SKV + 3, gp * 256), "AT")
            self.stamp(3)
        def kv_arrive_issue():
            L = a.newlabel("kva")
            a("s_cmp_lg_u32 s%d, 7" % WAVE); a("s_cbranch_scc1 %s" % L)
            a("s_lshl_b32 s6, s%d, 8" % S_C); a("s_add_u32 s6, s6, 65536"); a("v_mov_b32 v0, s6"); a("v_mov_b32 v%d, 1" % ZV)
            a("s_mov_b64 exec, 1"); a("buffer_atomic_add v%d, v0, s[%d:%d], 0 offen sc0 sc1" % (ZV, SKV, SKV + 3)); a("s_mov_b64 exec, -1")
            a.label(L)
        def kv_arrive_check():
            L = a.newlabel("kvc")
            a("s_cmp_lg_u32 s%d, 7" % WAVE); a("s_cbranch_scc1 %s" % L)
            a("s_waitcnt vmcnt(0)"); a("v_readfirstlane_b32 s7, v%d" % ZV)
            a("s_cmp_lg_u32 s7, 31"); a("s_cbranch_scc1 %s" % L)
            a("s_mov_b32 s6, %d" % (65536 + 8 * 256))
            self.atomic_ret(6, 0, ZV, 7, SKV)
            a("s_cmp_lg_u32 s7, 7"); a("s_cbranch_scc1 %s" % L)
            a("v_lshlrev_b32 v0, 7, v%d" % LANE); a("v_mov_b32 v%d, 1" % ZV)
            for k in range(4):
                a("s_mov_b32 s6, %d" % (224 * 128 + k * 8192))
                a("buffer_atomic_add v%d, v0, s[%d:%d], s6 offen sc1" % (ZV, SFL, SFL + 3))
            a.label(L)
        a.vmwait(("W", 0), ("X", 0)); a("s_barrier")
        self.stamp(1)
        L = a.newlabel("nzs")
        a("s_cmp_lg_u32 s%d, 7" % S_C); a("s_cbranch_scc1 %s" % L); a("s_cmp_lg_u32 s%d, 0" % WAVE); a("s_cbranch_scc1 %s" % L)
        a("v_mov_b32 v0, 32"); a("v_mov_b32 v5, 1"); a("s_mov_b64 exec, 1")
        a("buffer_atomic_add v5, v0, s[%d:%d], 0 offen sc1" % (SDBG, SDBG + 3)); a("s_mov_b64 exec, -1")
        a.label(L)
        for x in freads_l(0): a(x)
        for u in range(NU):
            M = mfmas_l(u)
            a("s_waitcnt lgkmcnt(0)")
            if u + 1 < NU:
                Rd = freads_l(u + 1)
                a(M[0])
                tg = [("W", u + 1), ("X", chunk(u + 1))] + (["AT"] if u == 16 else [])
                a.vmwait(*tg)
                a("s_barrier")
                if u + RING < NU: dma(u + RING)
                if newchunk(u + 1) and chunk(u) + XRING < 14: xload(chunk(u) + XRING)
                for k in range(1, 4):
                    for x in Rd[4 * (k - 1):4 * (k - 1) + 4]: a(x)
                    a(M[k])
                if u == 9:
                    a.vmwait("FL")
                    a("v_readfirstlane_b32 s%d, v%d" % (S_F0, FLV)); a("v_readfirstlane_b32 s%d, v%d" % (S_F1, FLV + 1))
                    Lsn = a.newlabel("snap")
                    a("s_cmp_lg_u32 s%d, 7" % WAVE); a("s_cbranch_scc1 %s" % Lsn)
                    a("v_mov_b32 v0, 32")
                    a("buffer_load_dword v%d, v0, s[%d:%d], 0 offen" % (ZV, SDBG, SDBG + 3))
                    a.label(Lsn)
                if u == 13:
                    kv_epilogue()
                    Lq = a.newlabel("doq")
                    a("s_cmp_lg_u32 s%d, 7" % S_C); a("s_cbranch_scc1 %s" % Lq)
                    self.srd(SWO, P_WO, 401408)
                    a("s_and_b32 s6, s%d, 3" % S_RT); a("s_lshl_b32 s6, s6, 3"); a("s_add_u32 s6, s6, s%d" % WAVE); a("s_lshl_b32 s6, s6, 14")
                    a("v_lshlrev_b32 v0, 7, v%d" % LANE); a("s_add_u32 s7, s6, 8192")
                    a("s_waitcnt vmcnt(0)"); a("s_barrier")
                    a("buffer_load_dword v126, v0, s[%d:%d], s6 offen" % (SWO, SWO + 3)); a("buffer_load_dword v127, v0, s[%d:%d], s7 offen" % (SWO, SWO + 3))
                    kv_arrive_issue(); kv_arrive_check()
                    a("s_branch A_end")
                    a.label(Lq)
                if u == 16: kv_arrive_issue()
                if u == 19: kv_arrive_check()
            else:
                for x in M: a(x)
                a.vmwait_all()
                a("s_barrier")
        self.stamp(4)
        self.phi(ACC, 8, T)
        a("s_lshl_b32 s6, s%d, 2" % S_RT); a("s_lshr_b32 s7, s%d, 1" % WAVE); a("s_add_u32 s6, s6, s7"); a("s_mul_i32 s6, s6, 14336")
        a("s_lshl_b32 s7, s%d, 11" % S_C); a("s_add_u32 s6, s6, s7")
        a("s_and_b32 s7, s%d, 1" % WAVE); a("s_lshl_b32 s7, s7, 10"); a("s_add_u32 s6, s6, s7")
        a("v_lshrrev_b32 v1, 4, v%d" % LANE); a("v_and_b32 v2, 1, v1"); a("v_lshrrev_b32 v1, 1, v1"); a("v_lshl_or_b32 v1, v2, 1, v1")
        a("v_and_b32 v2, 15, v%d" % LANE); a("v_lshlrev_b32 v2, 4, v2"); a("v_lshl_add_u32 v0, v1, 8, v2")
        for k in range(4): a("v_cvt_pk_bf16_f32 v%d, v%d, v%d" % (PK + k, ACC + 2 * k, ACC + 2 * k + 1))
        a("v_permlane16_swap_b32 v%d, v%d" % (PK, PK + 2)); a("v_permlane16_swap_b32 v%d, v%d" % (PK + 1, PK + 3))
        a.vmop("buffer_store_dwordx4 %s, v0, s[%d:%d], s6 offen sc1" % (vr(PK, 4), SPQ, SPQ + 3), "S")
        self.a2_pre()
        L7 = a.newlabel("w7"); L7b = a.newlabel("w7b"); Lfin = a.newlabel("arrf")
        a("s_cmp_eq_u32 s%d, 7" % WAVE); a("s_cbranch_scc1 %s" % L7)
        for k in range(7): self.wo_dma(k)
        a.vmwait("S")
        a("s_barrier")
        a("s_branch %s" % Lfin)
        a.label(L7)
        a("s_waitcnt vmcnt(0)"); a("s_barrier")
        L = a.newlabel("arrq")
        a("s_lshl_b32 s6, s%d, 8" % S_RT); a("s_add_u32 s6, s6, %d" % (65536 + 16 * 256))
        a("v_mov_b32 v1, s6"); a("v_mov_b32 v2, 1"); a("s_mov_b64 exec, 1")
        a("buffer_atomic_add v2, v1, s[%d:%d], 0 offen sc0 sc1" % (SKV, SKV + 3)); a("s_mov_b64 exec, -1")
        a.vm = []
        for k in range(7): self.wo_dma(k)
        a("s_waitcnt vmcnt(7)"); a("v_readfirstlane_b32 s7, v2")
        a("s_cmp_lg_u32 s7, 6"); a("s_cbranch_scc1 %s" % L)
        a("s_and_b32 s6, s%d, 3" % S_RT); a("s_lshl_b32 s6, s6, 3"); a("s_add_u32 s6, s6, 28"); a("s_lshl_b32 s6, s6, 3"); a("s_add_u32 s6, s6, s%d" % XCD); a("s_lshl_b32 s6, s6, 7")
        a("v_lshlrev_b32 v1, 10, v%d" % LANE); a("v_mov_b32 v2, 1"); a("s_mov_b64 exec, 0x7f")
        a("buffer_atomic_add v2, v1, s[%d:%d], s6 offen offset:4 sc1" % (SFL, SFL + 3))
        a("s_mov_b64 exec, -1")
        a.label(L)
        a.label(Lfin)

    def wo_dma(self, k):
        a = self.a
        a("s_lshl_b32 s6, s%d, 10" % WAVE); a("s_add_u32 m0, s6, %d" % (k * 8192)); a("s_lshl_b32 s6, s9, 7"); a("s_add_u32 s6, s6, %d" % (k * 64 * 896))
        a.vmop("buffer_load_dwordx4 v14, s[%d:%d], s6 offen lds" % (SWO, SWO + 3), "WO")

    def a2_pre(self):
        a = self.a
        S_R0, S_WN = 8, 9
        a("s_mov_b32 s%d, s11" % S_R0); a("s_mov_b32 s%d, s12" % S_WN)
        self.srd(SWO, P_WO, 401408)
        a("v_lshrrev_b32 v0, 3, v%d" % LANE); a("v_bfe_u32 v14, v%d, 1, 2" % LANE); a("v_lshrrev_b32 v13, 2, v0"); a("v_xor_b32 v14, v14, v13")
        a("s_and_b32 s6, s%d, 1" % WAVE); a("s_lshl_b32 s6, s6, 1"); a("v_xor_b32 v14, s6, v14")
        a("v_and_b32 v13, 1, v%d" % LANE); a("v_lshl_or_b32 v14, v14, 1, v13")
        a("s_lshl_b32 s6, s%d, 3" % WAVE); a("v_add_u32 v0, s6, v0"); a("v_mul_u32_u24 v0, 896, v0")
        a("v_lshl_add_u32 v14, v14, 4, v0")

    def a2(self):
        a = self.a
        PQ, WR, KVF, ACC, TA = 16, 48, 80, 112, 8
        S_R0, S_WN = 8, 9
        KVL = 57344
        Lend = "A_end"
        self.srd(SOUT, P_OUT, 3670016)
        a("v_and_b32 v1, 15, v%d" % LANE); a("v_lshrrev_b32 v2, 4, v%d" % LANE)
        a("v_bfe_u32 v3, v%d, 2, 2" % LANE); a("v_and_b32 v6, 3, v%d" % LANE)
        a("v_lshl_add_u32 v0, v3, 2, v2"); a("v_lshlrev_b32 v0, 7, v0"); a("v_lshl_add_u32 v0, v3, 5, v0"); a("v_lshl_add_u32 v0, v6, 3, v0")
        a("s_lshr_b32 s6, s%d, 2" % WAVE); a("s_mul_i32 s6, s6, 28672"); a("v_add_u32 v%d, s6, v0" % TA)
        for tl in range(1, 4): a("v_xor_b32 v%d, %d, v%d" % (TA + tl, 32 * tl, TA))
        a("v_lshlrev_b32 v15, 4, v%d" % LANE)
        a.vmwait("WO"); a("s_barrier")
        def wo_read(dst, tile, ph):
            a("ds_read_b64_tr_b16 %s, v%d offset:%d" % (vr(dst, 2), TA + tile, 2048 * ph))
        for ks in range(2):
            for tile in range(4):
                for h2 in range(2): wo_read(WR + (ks * 4 + tile) * 4 + 2 * h2, tile, 2 * ks + h2)
        a("s_lshl_b32 s12, s%d, 13" % WAVE)
        a("s_lshl_b32 s6, s%d, 12" % WAVE); a("s_add_u32 s6, s6, %d" % KVL)
        a("s_cmp_eq_u32 s%d, 6" % WAVE); a("s_cselect_b32 s6, 0, s6"); a("s_cmp_eq_u32 s%d, 7" % WAVE); a("s_cselect_b32 s6, 28672, s6")
        a("v_add_u32 v5, s6, v15")
        a("s_lshr_b32 s7, s%d, 2" % WAVE); a("s_cmp_eq_u32 s7, 1")
        a("s_mov_b32 s6, %d" % KVL); a("s_cselect_b32 s6, %d, s6" % (KVL + 16384)); a("v_add_u32 v3, s6, v15")
        a("s_cselect_b32 s6, 0, %d" % (KVL + 8192)); a("v_add_u32 v4, s6, v15")
        a("s_mov_b32 s6, 28672"); a("s_cselect_b32 s6, s6, %d" % (KVL + 12288)); a("v_add_u32 v6, s6, v15")
        a("s_mov_b32 s10, 0"); a("s_mov_b32 s11, 0xffff0000"); a("s_mov_b32 s13, 0x%x" % EPS)
        a("s_waitcnt lgkmcnt(0)")
        self.stamp(5)
        L = a.newlabel("aw")
        a("s_cmp_lg_u32 s%d, 0" % WAVE); a("s_cbranch_scc1 %s" % L)
        self.poll_flag(1, 2, S_F0, 0)
        a.label(L)
        a("s_barrier")
        a("s_add_u32 s6, s12, 4096")
        for k in range(8):
            a.vmop("buffer_load_dwordx4 %s, v15, s[%d:%d], s%d offen offset:%d %s" % (vr(KVF + 4 * k, 4), SKV, SKV + 3, 12 if k < 4 else 6, 1024 * (k & 3), self.HL), ("KV", k >> 1))
        for fr in range(4):
            a.vmwait(("KV", fr))
            for k in range(4): a("v_cvt_pk_bf16_f32 v%d, v%d, v%d" % (KVF + 8 * fr + k, KVF + 8 * fr + 2 * k, KVF + 8 * fr + 2 * k + 1))
            a("ds_write_b128 v5, %s offset:%d" % (vr(KVF + 8 * fr, 4), fr * 1024))
        L = a.newlabel("pw")
        a("s_cmp_lg_u32 s%d, 0" % WAVE); a("s_cbranch_scc1 %s" % L)
        self.poll_flag(1, 2, S_F1, 4)
        a.label(L)
        a("s_waitcnt lgkmcnt(0)"); a("s_barrier")
        self.stamp(6)
        a("s_and_b32 s6, s%d, 3" % WAVE); a("s_lshl_b32 s7, s%d, 2" % S_R0); a("s_add_u32 s6, s6, s7"); a("s_mul_i32 s6, s6, 14336")
        a("s_lshr_b32 s7, s%d, 2" % WAVE); a("s_mul_i32 s7, s7, 7168"); a("s_add_u32 s6, s6, s7"); a("s_add_u32 s7, s6, 3584")
        g0 = [0, 3, 7, 10]
        for hl in range(8):
            a.vmop("buffer_load_dwordx4 %s, v15, s[%d:%d], s%d offen offset:%d %s" % (vr(PQ + hl * 4, 4), SPQ, SPQ + 3, 6 + (hl >> 2), 256 * g0[hl & 3], self.HL), "PQ")
        a.vmwait("PQ")
        a("s_mov_b64 exec, s[10:11]")
        for hl in range(0, 8, 2): a("v_mov_b32 v%d, 0" % (PQ + hl * 4 + 2)); a("v_mov_b32 v%d, 0" % (PQ + hl * 4 + 3))
        a("s_mov_b64 exec, 0xffff")
        for hl in range(1, 8, 2): a("v_mov_b32 v%d, 0" % (PQ + hl * 4)); a("v_mov_b32 v%d, 0" % (PQ + hl * 4 + 1))
        a("s_mov_b64 exec, -1")
        KB = lambda h: KVF + 8 * (h & 1)
        NN = lambda h: KVF + 16 + 8 * (h & 1)
        Oreg = lambda k: PQ + k
        LEFT = 2
        def kv_read(h):
            ad, off = [(3, 0), (3, 0), (3, 0), (3, 0), (4, 0), (4, 0), (6, 0), (6, 0)][h]
            off = (h * 2048) if h < 4 else (h & 1) * 2048
            return ["ds_read_b128 %s, v%d offset:%d" % (vr(KB(h) + 4 * j, 4), ad, off + 1024 * j) for j in range(2)]
        def m2(h):
            return ["v_mfma_f32_16x16x32_bf16 %s, %s, %s, 0" % (vr(NN(h) + 4 * j, 4), vr(KB(h) + 4 * j, 4), vr(PQ + h * 4, 4)) for j in (1, 0)]
        def valu2(h):
            n = NN(h); out = []
            out.append("v_add_f32 v0, s13, v%d" % (n + 7)); out.append("v_rcp_f32 v0, v0")
            for t in range(0, 8, 2): out.append("v_pk_mul_f32 %s, v[0:1], %s op_sel:[0,0] op_sel_hi:[0,1]" % (vr(n + t, 2), vr(n + t, 2)))
            f0 = 7 * h
            if h & 1 == 0:
                for k in range(3): out.append("v_cvt_pk_bf16_f32 v%d, v%d, v%d" % (Oreg(f0 // 2 + k), n + 2 * k, n + 2 * k + 1))
                out.append("v_mov_b32 v%d, v%d" % (LEFT, n + 6))
            else:
                out.append("v_cvt_pk_bf16_f32 v%d, v%d, v%d" % (Oreg(f0 // 2), LEFT, n))
                for k in range(3): out.append("v_cvt_pk_bf16_f32 v%d, v%d, v%d" % (Oreg(f0 // 2 + 1 + k), n + 1 + 2 * k, n + 2 + 2 * k))
            return out
        def w_read_l(ks):
            out = []
            for tile in range(4):
                for h2 in range(2):
                    ph = 2 * ks + h2; dst = WR + ((ks & 1) * 4 + tile) * 4 + 2 * h2
                    out.append("ds_read_b64_tr_b16 %s, v%d offset:%d" % (vr(dst, 2), TA + tile, 2048 * ph))
            return out
        def m3(ks):
            return ["v_mfma_f32_16x16x32_bf16 %s, %s, %s, %s" % (vr(ACC + 4 * tile, 4), vr(WR + ((ks & 1) * 4 + tile) * 4, 4), vr(Oreg(4 * ks), 4), "0" if ks == 0 else vr(ACC + 4 * tile, 4)) for tile in range(4)]
        for x in kv_read(0) + kv_read(1): a(x)
        a("s_waitcnt lgkmcnt(2)")
        for x in m2(0): a(x)
        for h in range(8):
            a("s_waitcnt lgkmcnt(%d)" % (8 if (h - 3 >= 0 and h - 1 < 7) else 0))
            if h + 1 < 8:
                for x in m2(h + 1): a(x)
            if h + 2 < 8:
                for x in kv_read(h + 2): a(x)
            ks = h - 2
            V = valu2(h)
            if ks >= 0:
                M = m3(ks)
                for i, x in enumerate(M):
                    a(x)
                    for y in V[3 * i:3 * i + 3] if i < 3 else V[9:]: a(y)
                if ks + 2 < 7:
                    for x in w_read_l(ks + 2): a(x)
            else:
                for y in V: a(y)
        a("s_waitcnt lgkmcnt(0)")
        for x in m3(6): a(x)
        a("s_lshl_b32 s6, s%d, 11" % WAVE); a("v_add_u32 v5, s6, v15")
        a("s_xor_b32 s6, s%d, 4" % WAVE); a("s_lshl_b32 s6, s6, 11"); a("v_add_u32 v6, s6, v15")
        a("v_lshrrev_b32 v1, 4, v%d" % LANE); a("v_and_b32 v2, 1, v1"); a("v_lshrrev_b32 v1, 1, v1"); a("v_lshl_or_b32 v1, v2, 1, v1")
        a("v_and_b32 v2, 15, v%d" % LANE); a("v_mul_u32_u24 v2, 1792, v2"); a("v_lshl_add_u32 v3, v1, 4, v2")
        a("s_and_b32 s6, s%d, 3" % WAVE); a("s_lshl_b32 s7, s%d, 2" % S_R0); a("s_add_u32 s6, s6, s7"); a("s_mul_i32 s6, s6, %d" % (16 * 1792))
        a("s_lshl_b32 s7, s%d, 7" % S_WN); a("s_add_u32 s6, s6, s7"); a("s_lshr_b32 s10, s%d, 2" % WAVE); a("s_lshl_b32 s7, s10, 6"); a("s_add_u32 s6, s6, s7")
        a("s_barrier")
        Lx1 = a.newlabel("ax1"); Lx2 = a.newlabel("ax2")
        a("s_cmp_eq_u32 s10, 0"); a("s_cbranch_scc1 %s" % Lx1)
        for k in range(2): a("ds_write_b128 v5, %s offset:%d" % (vr(ACC + 4 * k, 4), 1024 * k))
        a("s_nop 3")
        for k in range(8): a("v_mov_b32 v%d, v%d" % (ACC + k, ACC + 8 + k))
        a("s_branch %s" % Lx2)
        a.label(Lx1)
        for k in range(2): a("ds_write_b128 v5, %s offset:%d" % (vr(ACC + 8 + 4 * k, 4), 1024 * k))
        a.label(Lx2)
        a("s_waitcnt lgkmcnt(0)"); a("s_barrier")
        self.stamp(7)
        R = KVF
        for k in range(2): a("ds_read_b128 %s, v6 offset:%d" % (vr(R + 4 * k, 4), 1024 * k))
        a("s_waitcnt lgkmcnt(0)")
        for k in range(0, 8, 2): a("v_pk_add_f32 %s, %s, %s" % (vr(R + k, 2), vr(R + k, 2), vr(ACC + k, 2)))
        for k in range(4): a("v_cvt_pk_bf16_f32 v%d, v%d, v%d" % (R + 8 + k, R + 2 * k, R + 2 * k + 1))
        a("v_permlane16_swap_b32 v%d, v%d" % (R + 8, R + 10)); a("v_permlane16_swap_b32 v%d, v%d" % (R + 9, R + 11))
        thr = [x for x in self.opts if x.startswith("thr")]
        if thr:
            k, T = thr[0][3:].split("_")
            a("s_sub_u32 s7, s%d, s%d" % (TS0 + 2 * int(k), TS0)); a("s_cmp_gt_u32 s7, %d" % int(T)); a("s_cbranch_scc1 %s" % Lend)
        a.vmop("buffer_store_dwordx4 %s, v3, s[%d:%d], s6 offen" % (vr(R + 8, 4), SOUT, SOUT + 3), "S")
        self.stamp(8)
        a.label(Lend)
        self.dump_stamps()
        a("s_endpgm")

    def build(self):
        a = self.a
        a.raw(open("concat_heads__linear_attn_block__ssm_conv_s4d__prompt.s.ref").read().split("; Override launch")[0].rstrip())
        a.raw("; @launch grid=(%d,1,1) block=(512,1,1) lds=%d" % (NWG, LDS))
        a.raw('.amdgcn_target "amdgcn-amd-amdhsa--gfx950"\n.text\n.globl %s\n.p2align 8\n.type %s,@function\n%s:' % (KNAME, KNAME, KNAME))
        a("s_cmp_ge_u32 s2, %d" % NWG); a("s_cbranch_scc1 K_exit")
        a("s_load_dwordx16 s[16:31], s[0:1], 0"); a("s_load_dwordx8 s[32:39], s[0:1], 64"); a("s_load_dwordx2 s[40:41], s[0:1], 96")
        a("s_and_b32 s%d, s2, 7" % XCD); a("s_lshr_b32 s%d, s2, 3" % SLOT)
        a("v_lshrrev_b32 v1, 6, v0"); a("v_and_b32 v7, 63, v0")
        a("v_readfirstlane_b32 s%d, v1" % WAVE)
        a("s_nop 3")
        if "nocpf" not in self.opts:
            Lc = a.newlabel("cpf")
            a("s_cmp_ge_u32 s%d, 2" % SLOT); a("s_cbranch_scc1 %s" % Lc)
            a("s_getpc_b64 s[6:7]")
            a("s_and_b32 s6, s6, 0xffffff00")
            a("s_lshl_b32 s8, s%d, 12" % WAVE)
            a("v_and_b32 v1, 31, v7"); a("v_lshlrev_b32 v1, 7, v1"); a("v_add_u32 v1, s8, v1")
            a("v_min_u32 v1, CODE_END - %s - 4, v1" % KNAME)
            a("global_load_dword v126, v1, s[6:7]")
            a.label(Lc)
        Bl = "K_exit" if "onlya" in self.opts else "B_entry"
        a("s_cmp_lt_u32 s%d, 28" % SLOT); a("s_cbranch_scc1 %s" % Bl)
        if "onlyb" in self.opts: a("s_branch K_exit")
        a("s_setprio 2")
        self.gemm()
        self.a2()
        a.label("B_entry"); a.vm = []
        if "onlya" not in self.opts:
            from gen_b import gen_b
            gen_b(self)
        a.label("K_exit")
        a("s_endpgm")
        a.label("CODE_END")
        a.raw('''.section .rodata,"a"
.p2align 6
.amdhsa_kernel %s
  .amdhsa_next_free_vgpr 128
  .amdhsa_next_free_sgpr 102
  .amdhsa_accum_offset 128
  .amdhsa_group_segment_fixed_size 0
  .amdhsa_kernarg_size 104
  .amdhsa_user_sgpr_count 2
  .amdhsa_user_sgpr_kernarg_segment_ptr 1
  .amdhsa_system_sgpr_workgroup_id_x 1
.end_amdhsa_kernel''' % KNAME)
        return a.text()

if __name__ == "__main__":
    stamps = "--stamps" in sys.argv
    out = [x for x in sys.argv[1:] if not x.startswith("--")][0]
    open(out, "w").write(Gen(stamps, [x[2:] for x in sys.argv[1:] if x.startswith("--")]).build())
```

```python
from asmlib import *
from gen import *

def gen_b(G):
    a = G.a
    S_J, S_GAM, S_RBK, S_CQ, S_D, S_S, S_KB, S_UB = 8, 9, 10, 11, 12, 13, 14, 15
    S_CH, S_HF = 48, 49
    LA, AI, CR, CI, DT, DS, KA, KT, FY, FX2 = 10, 11, 12, 13, 14, 15, 16, 17, 18, 19
    ACC = 20
    w0, w1, w2, w3, w4, w5, w6, t3, t5, w7, w8, w9, w10, t7 = [32 + 2 * k for k in range(14)]
    s_ = [60 + 2 * k for k in range(9)]
    S3a, S3b, S4a, S4b = 78, 80, 82, 84
    TP = [86 + 2 * k for k in range(6)]
    hw3, hw4, ht3, hw5, hw6, ht5, hw7, hw8, ht7 = range(98, 107)
    hs = list(range(107, 116)); hS3a, hS3b, hS4a, hS4b = range(116, 120)
    PT = list(range(32, 40)); PR = list(range(40, 48))
    YF, XF, XF2 = 60, 76, 32
    RS = 288
    USTG = 73728
    a("s_setprio 3")
    a("s_cmp_ge_u32 s%d, 14" % SLOT); a("s_cselect_b32 s6, 27, 0")
    a("s_lshl_b32 s7, s%d, 1" % SLOT); a("s_sub_u32 s7, s7, s6")
    a("s_mul_i32 s%d, s%d, 28" % (S_J, XCD)); a("s_add_u32 s%d, s%d, s7" % (S_J, S_J))
    a("s_lshr_b32 s%d, s%d, 5" % (S_GAM, S_J)); a("s_and_b32 s%d, s%d, 31" % (S_RBK, S_J)); a("s_lshr_b32 s%d, s%d, 1" % (S_CQ, S_J))
    a("s_and_b32 s%d, s%d, 3" % (S_CH, WAVE)); a("s_lshr_b32 s%d, s%d, 2" % (S_HF, WAVE))
    a("s_lshl_b32 s%d, s%d, 2" % (S_D, S_CQ)); a("s_add_u32 s%d, s%d, s%d" % (S_D, S_D, S_CH))
    a("v_and_b32 v1, 15, v%d" % LANE); a("v_lshrrev_b32 v2, 4, v%d" % LANE)
    a("v_lshrrev_b32 v3, 3, v%d" % LANE); a("v_mul_u32_u24 v3, 896, v3")
    a("v_and_b32 v4, 7, v%d" % LANE); a("v_lshl_add_u32 v3, v4, 4, v3")
    a("s_lshl_b32 s6, s%d, 3" % S_RBK); a("s_add_u32 s6, s6, s%d" % WAVE); a("s_mul_i32 s6, s6, 7168"); a("s_lshl_b32 s7, s%d, 7" % S_GAM); a("s_add_u32 s6, s6, s7")
    a("s_lshl_b32 s7, s%d, 10" % WAVE); a("s_add_u32 m0, s7, %d" % USTG)
    a("v_lshlrev_b32 v4, 2, v%d" % LANE); a("s_lshl_b32 s7, s%d, 1" % S_D); a("s_add_u32 s7, s7, s%d" % S_HF); a("s_lshl_b32 s7, s7, 8"); a("v_add_u32 v4, s7, v4")
    a("s_lshl_b32 s7, s%d, 1" % S_D); a("v_mov_b32 v5, s7")
    a("s_add_u32 s%d, s%d, 512" % (S_FA, S_J)); a("s_lshl_b32 s%d, s%d, 7" % (S_FA, S_FA)); a("v_mov_b32 v9, s%d" % S_FA)
    a("s_waitcnt lgkmcnt(0)")
    G.srd(SU, P_U, 1835008)
    G.stamp(0)
    a.vmop("buffer_load_dwordx4 v3, s[%d:%d], s6 offen lds" % (SU, SU + 3), "UT")
    G.srd(SFL, P_WS, 131072, WS_FL)
    a.vmop("buffer_load_dwordx2 v[124:125], v9, s[%d:%d], 0 offen sc1" % (SFL, SFL + 3), "UT")
    for r, p in ((LA, P_LA), (AI, P_AI), (CR, P_CR), (CI, P_CI)):
        a.vmop("global_load_dword v%d, v4, s[%d:%d]" % (r, p, p + 1), "PAR")
    a.vmop("global_load_ushort v%d, v5, s[%d:%d]" % (DT, P_DT, P_DT + 1), "PAR")
    a.vmop("global_load_ushort v%d, v5, s[%d:%d]" % (DS, P_DS, P_DS + 1), "PAR")
    if "pfb" in G.opts:
        a("s_lshl_b32 s6, s%d, 3" % SLOT); a("s_add_u32 s6, s6, s%d" % WAVE)
        a("s_mul_i32 s7, s%d, 28" % XCD); a("s_add_u32 s7, s7, s6"); a("s_sub_u32 s7, s7, 147")
        a("s_cmp_ge_u32 s6, 147")
        a("s_cselect_b32 s56, s%d, s%d" % (P_X, P_W)); a("s_cselect_b32 s57, s%d, s%d" % (P_X + 1, P_W + 1)); a("s_cselect_b32 s7, s7, s6")
        a("s_sub_u32 s58, s6, 175"); a("s_cmp_ge_u32 s6, 175")
        a("s_cselect_b32 s56, s%d, s56" % P_WO); a("s_cselect_b32 s57, s%d, s57" % (P_WO + 1)); a("s_cselect_b32 s7, s58, s7")
        a("s_lshl_b32 s7, s7, 13"); a("v_lshlrev_b32 v6, 7, v%d" % LANE); a("v_add_u32 v6, s7, v6")
        a.vmop("global_load_dword v127, v6, s[56:57]", "PF")
    G.srd(SUT, P_WS, 1835008, WS_UT); G.srd(SDBG, P_DBG, 256); G.srd(SOUT, P_OUT, 3670016)
    a("v_bfe_u32 v3, v%d, 2, 2" % LANE); a("v_lshl_add_u32 v3, v2, 3, v3"); a("v_lshlrev_b32 v3, 7, v3")
    a("v_and_b32 v4, 3, v%d" % LANE); a("v_lshl_add_u32 v3, v4, 3, v3")
    a("s_lshl_b32 s6, s%d, 5" % S_CH); a("s_lshl_b32 s7, s%d, 12" % S_HF); a("s_add_u32 s6, s6, s7"); a("s_add_u32 s6, s6, %d" % USTG); a("v_add_u32 v3, s6, v3")
    a("s_lshl_b32 s6, s%d, 6" % S_GAM); a("s_lshl_b32 s7, s%d, 4" % S_CH); a("s_add_u32 s6, s6, s7"); a("s_lshl_b32 s6, s6, 12")
    a("s_lshl_b32 s7, s%d, 7" % S_RBK); a("s_add_u32 s6, s6, s7"); a("s_lshl_b32 s7, s%d, 6" % S_HF); a("s_add_u32 s6, s6, s7")
    a("v_lshlrev_b32 v4, 12, v1"); a("v_lshl_add_u32 v4, v2, 4, v4")
    a("s_mul_i32 s%d, s%d, 9216" % (S_KB, WAVE))
    a("v_mul_u32_u24 v5, %d, v1" % RS); a("v_lshl_add_u32 v5, v2, 4, v5"); a("v_add_u32 v%d, s%d, v5" % (FY, S_KB))
    a("v_min_u32 v6, 8, v1"); a("v_mul_u32_u24 v6, %d, v6" % RS); a("v_lshl_add_u32 v6, v2, 4, v6"); a("v_add_u32 v%d, s%d, v6" % (FX2, S_KB))
    a.vmwait("UT"); a("s_barrier")
    for hh in range(2): a("ds_read_b64_tr_b16 %s, v3 offset:%d" % (vr(YF + 2 * hh, 2), hh * 512))
    a("v_readfirstlane_b32 s%d, v124" % S_F0); a("v_readfirstlane_b32 s%d, v125" % S_F1)
    a("s_waitcnt lgkmcnt(0)")
    a.vmop("buffer_store_dwordx4 %s, v4, s[%d:%d], s6 offen sc1" % (vr(YF, 4), SUT, SUT + 3), "UTS")
    G.stamp(1)
    a("s_and_b32 s6, s%d, 3" % S_GAM); a("s_lshl_b32 s6, s6, 6"); a("s_lshr_b32 s7, s%d, 2" % S_GAM); a("s_lshl_b32 s7, s7, 2")
    a("s_add_u32 s6, s6, s7"); a("s_add_u32 s51, s6, 4")
    SKX = 68
    G.srd(SKX, P_WS, 448 * 4096, WS_KX)
    def bcast_group(Lskip):
        a("s_cmp_lg_u32 s7, 31"); a("s_cbranch_scc1 %s" % Lskip)
        a("v_lshlrev_b32 v3, 7, v%d" % LANE); a("v_mov_b32 v4, 1"); a("s_lshl_b32 s6, s%d, 12" % S_GAM); a("s_add_u32 s6, s6, 65536")
        a("s_mov_b64 exec, 0xffffffff")
        a("buffer_atomic_add v4, v3, s[%d:%d], s6 offen sc1" % (SFL, SFL + 3))
        a("s_mov_b64 exec, -1")
    a("s_cmp_ge_u32 s%d, 14" % SLOT); a("s_cbranch_scc1 B_heavy")
    a("s_waitcnt vmcnt(0)"); a("s_barrier")
    a("s_cmp_lg_u32 s%d, 7" % WAVE); a("s_cbranch_scc1 B_join")
    G.atomic_ret(51, 3, 4, 7)
    bcast_group("B_join")
    a("s_branch B_join")
    a.label("B_heavy")
    a.vmwait("PAR")
    a("v_lshlrev_b32 v%d, 16, v%d" % (DT, DT)); a("v_lshlrev_b32 v%d, 16, v%d" % (DS, DS))
    a("s_mov_b32 s50, 0x%x" % LOG2E)
    a("v_mul_f32 v%d, s50, v%d" % (DT, DT)); a("v_exp_f32 v%d, v%d" % (DT, DT))
    a("s_mov_b32 s6, 0x7fff7fff")
    a("v_and_b32 v3, s6, v%d" % CR); a("v_and_b32 v5, s6, v%d" % CI)
    a("v_pk_max_u16 v3, v3, v5")
    a("v_lshrrev_b32 v4, 16, v3"); a("v_and_b32 v3, 0xffff, v3"); a("v_max_u32 v3, v3, v4")
    a("v_cvt_pk_bf16_f32 v%d, v%d, v%d" % (DT, DT, DT)); a("v_lshlrev_b32 v%d, 16, v%d" % (DT, DT))
    for sh in (1, 2, 4, 8): a("v_max_u32_dpp v3, v3, v3 row_shr:%d row_mask:0xf bank_mask:0xf" % sh)
    a("v_max_u32_dpp v3, v3, v3 row_bcast:15 row_mask:0xa bank_mask:0xf")
    a("v_max_u32_dpp v3, v3, v3 row_bcast:31 row_mask:0xc bank_mask:0xf")
    a("v_mul_f32 v%d, 0x%x, v%d" % (KA, LOG2E | 0x80000000, DT)); a("v_mul_f32 v%d, 0.15915494, v%d" % (KT, DT))
    a("v_readlane_b32 s6, v3, 63")
    a("s_lshr_b32 s6, s6, 7"); a("s_sub_u32 s%d, 136, s6" % S_S)
    a("s_mov_b32 m0, s%d" % S_KB); a("v_mov_b32 v3, 0x3c00")
    a("ds_write_addtid_b32 v3 offset:0")
    for k in range(12): a("v_mov_b32 v%d, 0" % (ACC + k))
    a("s_mov_b32 s77, 0"); a("s_mov_b32 s78, 0x41000000"); a("s_mov_b32 s79, 0x43000000")

    def cmul_batch(lst):
        assert len(lst) <= len(TP)
        if "kgnc" in G.opts: return
        for (d, x, y), t in zip(lst, TP): a("v_pk_mul_f32 %s, %s, %s op_sel:[0,0] op_sel_hi:[0,1]" % (vr(t, 2), vr(x, 2), vr(y, 2)))
        for (d, x, y), t in zip(lst, TP): a("v_pk_fma_f32 %s, %s, %s, %s op_sel:[1,1,0] op_sel_hi:[1,0,1] neg_lo:[1,0,0]" % (vr(d, 2), vr(x, 2), vr(y, 2), vr(t, 2)))
    def cvt(h, x, conj=False): a("v_cvt_pk_f16_f32 v%d, v%d, %sv%d" % (h, x, "-" if conj else "", x + 1))
    def wr(reg, row):
        if "kgnw" not in G.opts: a("ds_write_addtid_b32 v%d offset:%d" % (reg, row * RS))
    def prods(lst, extra=()):
        extra = list(extra)
        n = len(lst)
        for k in range(n + 4):
            if k < n and "kgnp" not in G.opts: a("v_pk_mul_f16 v%d, v%d, v%d op_sel:[0,0] op_sel_hi:[0,1]" % (PT[k % 8], lst[k][1], lst[k][2]))
            if 0 <= k - 2 < n and "kgnp" not in G.opts:
                j = k - 2
                a("v_pk_fma_f16 v%d, v%d, v%d, v%d op_sel:[1,1,0] op_sel_hi:[1,0,1] neg_lo:[1,0,0]" % (PR[j % 8], lst[j][1], lst[j][2], PT[j % 8]))
            if 0 <= k - 4 < n: wr(PR[(k - 4) % 8], lst[k - 4][0])
            if extra: a(extra.pop(0))
        for x in extra: a(x)
    X0, X1, X2 = 16, 1, 17
    a.label("KG_loop")
    for r, d in ((LA, 3), (AI, 4), (CR, 5), (CI, 6)):
        a("v_lshlrev_b32 v%d, 16, v%d" % (d, r)); a("v_lshrrev_b32 v%d, 16, v%d" % (r, r))
    a("v_mul_f32 v3, s50, v3"); a("v_exp_f32 v3, v3")
    a("v_mul_f32 v4, v4, v%d" % KT)
    a("v_ldexp_f32 v%d, v5, s%d" % (s_[0], S_S)); a("v_ldexp_f32 v%d, v6, s%d" % (s_[0] + 1, S_S))
    a("v_cvt_pk_bf16_f32 v3, v3, v3"); a("v_lshlrev_b32 v3, 16, v3"); a("v_mul_f32 v3, v3, v%d" % KA)
    m = [TP[0], TP[0] + 1, TP[1]]; ph = [TP[1] + 1, TP[2], TP[2] + 1]
    a("v_mul_f32 v%d, s78, v4" % ph[1]); a("v_mul_f32 v%d, s79, v4" % ph[2])
    a("v_fract_f32 v%d, v4" % ph[0]); a("v_fract_f32 v%d, v%d" % (ph[1], ph[1])); a("v_fract_f32 v%d, v%d" % (ph[2], ph[2]))
    a("v_mul_f32 v%d, s78, v3" % m[1]); a("v_mul_f32 v%d, s79, v3" % m[2])
    W = [w0, w3, w7]
    for k in range(3): a("v_cos_f32 v%d, v%d" % (W[k], ph[k])); a("v_sin_f32 v%d, v%d" % (W[k] + 1, ph[k]))
    a("v_exp_f32 v%d, v3" % m[0]); a("v_exp_f32 v%d, v%d" % (m[1], m[1])); a("v_exp_f32 v%d, v%d" % (m[2], m[2]))
    cvt(hs[0], s_[0])
    for k in range(3): a("v_mul_f32 v%d, v%d, v%d" % (W[k], W[k], m[k])); a("v_mul_f32 v%d, v%d, v%d" % (W[k] + 1, W[k] + 1, m[k]))
    cmul_batch([(w4, w3, w3), (w8, w7, w7), (s_[1], s_[0], w0), (w1, w0, w0)])
    Lit1 = a.newlabel("it1"); Lnp = a.newlabel("nopub")
    a("s_cmp_lg_u32 s77, 0"); a("s_cbranch_scc1 %s" % Lnp)
    a.vmwait("UTS"); a("s_barrier")
    a("s_cmp_lg_u32 s%d, 7" % WAVE); a("s_cbranch_scc1 %s" % Lnp)
    a("v_mov_b32 v3, s51"); a("v_mov_b32 v8, 1"); a("s_mov_b64 exec, 1")
    a("buffer_atomic_add v8, v3, s[%d:%d], 0 offen sc0 sc1" % (SDBG, SDBG + 3))
    a("s_mov_b64 exec, -1")
    a.label(Lnp)
    kp = [int(o[2:]) for o in G.opts if o.startswith("kp")]
    a("s_setprio %d" % (kp[0] if kp else 3))
    cvt(hw3, w3, True); cvt(hw7, w7); wr(hw3, 1)
    cmul_batch([(w5, w4, w4), (w9, w8, w8), (s_[2], s_[1], w0), (s_[3], s_[1], w1), (w2, w1, w1), (t3, w3, w4)])
    cvt(hw4, w4, True); cvt(hw8, w8); cvt(hs[1], s_[1]); wr(hw4, 2); wr(hs[1], X0 + 0)
    cmul_batch([(w6, w5, w5), (w10, w9, w9), (s_[4], s_[2], w1), (t7, w7, w8), (s_[5], s_[1], w2), (s_[6], s_[2], w2)])
    cvt(hw5, w5, True); cvt(ht3, t3, True); cvt(hs[2], s_[2]); cvt(hs[3], s_[3])
    wr(hw5, 4); wr(ht3, 3); wr(hs[2], X0 + 1); wr(hs[3], X0 + 2)
    cmul_batch([(t5, w5, w6), (s_[7], s_[3], w2), (s_[8], s_[4], w2), (S3a, s_[4], w9)])
    cvt(hw6, w6, True); cvt(ht7, t7); cvt(hs[4], s_[4]); cvt(hs[5], s_[5]); cvt(hs[6], s_[6])
    wr(hw6, 8); wr(hs[4], X0 + 3); wr(hs[5], X0 + 4); wr(hs[6], X0 + 5)
    cmul_batch([(S3b, s_[8], w9), (S4a, s_[8], w10)])
    cvt(ht5, t5, True); cvt(hs[7], s_[7]); cvt(hs[8], s_[8]); cvt(hS3a, S3a)
    wr(ht5, 12); wr(hs[7], X0 + 6); wr(hs[8], X0 + 7)
    cmul_batch([(S4b, S3b, w10)])
    cvt(hS3b, S3b); cvt(hS4a, S4a)
    lo = [None, hw3, hw4, ht3]; hi = [None, hw5, hw6, ht5]; M = [None, hw7, hw8, ht7]
    prods([(m0 + 4 * m1, lo[m0], hi[m1]) for m1 in (1, 2, 3) for m0 in (1, 2, 3)] + [(X0 + 8 + k, hs[k + 1], hw7) for k in range(8)],
          ["v_cvt_pk_f16_f32 v%d, v%d, v%d" % (hS4b, S4b, S4b + 1)])
    rd1 = []
    for ks in range(4):
        rd1.append("ds_read_b128 %s, v%d offset:%d" % (vr(YF + 4 * ks, 4), FY, ks * 64))
        rd1.append("ds_read_b128 %s, v%d offset:%d" % (vr(XF + 4 * ks, 4), FY, X0 * RS + ks * 64))
    for x in rd1: a(x)
    wr(hS3a, X1 + 8); wr(hS3b, X1 + 9); wr(hS4a, X2 + 0); wr(hS4b, X2 + 4); wr(hs[0], X2 + 8)
    p2 = ([(X1 + k, hs[2 * k + 2], hw8) for k in range(4)] + [(X1 + 4 + k, hs[2 * k + 2], ht7) for k in range(4)]
          + [(X1 + 8 + 2 * i, hS3a, M[i]) for i in (1, 2, 3)] + [(X1 + 9 + 2 * i, hS3b, M[i]) for i in (1, 2, 3)]
          + [(X2 + i, hS4a, M[i]) for i in (1, 2, 3)] + [(X2 + 4 + i, hS4b, M[i]) for i in (1, 2, 3)])
    prods(p2[:8])
    Lc1 = a.newlabel("chk1"); Lc2 = a.newlabel("chk2")
    a("s_cmp_lg_u32 s77, 0"); a("s_cbranch_scc1 %s" % Lc2)
    a("s_cmp_lg_u32 s%d, 7" % WAVE); a("s_cbranch_scc1 %s" % Lc2)
    a("s_waitcnt vmcnt(0)"); a("v_readfirstlane_b32 s7, v8")
    bcast_group(Lc2)
    a.label(Lc2)
    a("s_waitcnt lgkmcnt(8)")
    mf0 = ["v_mfma_f32_16x16x32_f16 %s, %s, %s, %s" % (vr(ACC, 4), vr(XF + 4 * ks, 4), vr(YF + 4 * ks, 4), vr(ACC, 4)) for ks in range(4)]
    prods(p2[8:], [mf0[0], "s_nop 0", mf0[1], "s_nop 0", mf0[2], "s_nop 0", mf0[3]])
    for ks in range(4):
        a("ds_read_b128 %s, v%d offset:%d" % (vr(XF + 4 * ks, 4), FY, X1 * RS + ks * 64))
        a("ds_read_b128 %s, v%d offset:%d" % (vr(XF2 + 4 * ks, 4), FX2, X2 * RS + ks * 64))
    for ks in range(4):
        a("s_waitcnt lgkmcnt(%d)" % (6 - 2 * ks))
        a("v_mfma_f32_16x16x32_f16 %s, %s, %s, %s" % (vr(ACC + 4, 4), vr(XF + 4 * ks, 4), vr(YF + 4 * ks, 4), vr(ACC + 4, 4)))
        a("v_mfma_f32_16x16x32_f16 %s, %s, %s, %s" % (vr(ACC + 8, 4), vr(XF2 + 4 * ks, 4), vr(YF + 4 * ks, 4), vr(ACC + 8, 4)))
    a("s_add_u32 s77, s77, 1"); a("s_cmp_lt_u32 s77, %d" % (22 if "kgl" in G.opts else 2)); a("s_cbranch_scc1 KG_loop")
    G.stamp(2)
    a("v_lshlrev_b32 v8, 4, v%d" % LANE)
    a("v_add_f32 v%d, v%d, v%d" % (DT, DT, DT)); a("s_sub_u32 s7, 0, s%d" % S_S)
    for k in range(12): a("v_mul_f32 v%d, v%d, v%d" % (ACC + k, ACC + k, DT))
    for k in range(12): a("v_ldexp_f32 v%d, v%d, s7" % (ACC + k, ACC + k))
    a("v_add_u32 v3, s%d, v8" % S_KB)
    for k in range(3): a("ds_write_b128 v3, %s offset:%d" % (vr(ACC + 4 * k, 4), 1024 * k))
    a("s_xor_b32 s6, s%d, 4" % WAVE); a("s_mul_i32 s6, s6, 9216"); a("v_add_u32 v3, s6, v8")
    a("s_lshl_b32 s6, s%d, 11" % S_CH); a("s_add_u32 s59, s6, %d" % USTG)
    a("v_cmp_le_u32 vcc, 2, v2")
    a("s_waitcnt lgkmcnt(0)"); a("s_barrier")
    G.stamp(3)
    LT2 = a.newlabel("own2"); Lj = a.newlabel("ownj")
    a("s_cmp_lg_u32 s%d, 0" % S_HF); a("s_cbranch_scc1 %s" % LT2)
    for q in range(2): a("ds_read_b128 %s, v3 offset:%d" % (vr(32 + 4 * q, 4), q * 1024))
    a("v_lshrrev_b32 v3, 1, v2"); a("v_lshlrev_b32 v3, 8, v3"); a("v_lshl_add_u32 v3, v1, 4, v3"); a("v_and_b32 v4, 1, v2"); a("v_lshl_add_u32 v3, v4, 3, v3")
    a("v_add_u32 v44, s59, v3")
    a("v_lshlrev_b32 v3, 7, v2"); a("v_lshl_add_u32 v3, v1, 3, v3"); a("v_add_u32 v3, 528, v3"); a("v_add_u32 v4, 4, v3")
    a("v_lshlrev_b32 v5, 7, v2"); a("v_lshl_add_u32 v5, v1, 2, v5"); a("v_add_u32 v5, %d, v5" % (784 - 256)); a("v_add_u32 v6, 64, v5")
    a("v_cndmask_b32 v3, v3, v5, vcc"); a("v_cndmask_b32 v4, v4, v6, vcc")
    a("v_add_u32 v3, s59, v3"); a("v_add_u32 v4, s59, v4")
    a("s_waitcnt lgkmcnt(0)")
    for k in range(0, 8, 2): a("v_pk_add_f32 %s, %s, %s" % (vr(32 + k, 2), vr(32 + k, 2), vr(ACC + k, 2)))
    for k in range(4): a("v_cvt_pk_bf16_f32 v%d, v%d, v%d" % (40 + k, 32 + 2 * k, 33 + 2 * k))
    a("ds_write_b64 v44, v[40:41] offset:16")
    a("ds_write_b32 v3, v42"); a("ds_write_b32 v4, v43")
    a("s_branch %s" % Lj)
    a.label(LT2)
    a("ds_read_b128 v[32:35], v3 offset:2048")
    a("v_mov_b32 v3, 0"); a("v_cndmask_b32 v3, v3, v%d, vcc" % DS); a("v_add_f32 v%d, v%d, v3" % (ACC + 8, ACC + 8))
    a("v_lshlrev_b32 v3, 7, v2"); a("v_lshl_add_u32 v3, v1, 1, v3"); a("v_add_u32 v3, 1040, v3")
    a("v_cmp_eq_u32 vcc, 32, v%d" % LANE); a("v_mov_b32 v5, 14"); a("v_cndmask_b32 v4, v3, v5, vcc")
    a("v_add_u32 v3, s59, v3"); a("v_add_u32 v4, s59, v4")
    a("s_waitcnt lgkmcnt(0)")
    for k in (0, 2): a("v_pk_add_f32 %s, %s, %s" % (vr(32 + k, 2), vr(32 + k, 2), vr(ACC + 8 + k, 2)))
    a("v_cvt_pk_bf16_f32 v36, v32, v33"); a("v_cvt_pk_bf16_f32 v37, v34, v35")
    a("s_mov_b32 s6, -1"); a("s_mov_b32 s7, 1"); a("s_mov_b64 exec, s[6:7]")
    a("ds_write_b16 v4, v36")
    a("s_mov_b64 exec, 0xffffffff")
    a("ds_write_b16_d16_hi v3, v36 offset:32")
    a("ds_write_b16 v3, v37 offset:64"); a("ds_write_b16_d16_hi v3, v37 offset:96")
    a("s_mov_b64 exec, -1")
    a.label(Lj)
    a("s_waitcnt lgkmcnt(0)"); a("s_barrier")
    Lnpub = a.newlabel("npub")
    a("s_cmp_eq_u32 s%d, 0" % S_HF); a("s_cbranch_scc1 %s" % Lnpub)
    a("v_add_u32 v3, s59, v8")
    a("ds_read_b128 v[32:35], v3"); a("ds_read_b128 v[36:39], v3 offset:1024")
    a("s_lshl_b32 s6, s%d, 12" % S_D)
    a("s_waitcnt lgkmcnt(0)")
    a("buffer_store_dwordx4 v[32:35], v8, s[%d:%d], s6 offen sc1" % (SKX, SKX + 3))
    a("s_mov_b64 exec, 1")
    a("buffer_store_dwordx4 v[36:39], v8, s[%d:%d], s6 offen offset:1024 sc1" % (SKX, SKX + 3))
    a("s_mov_b64 exec, -1")
    a.label(Lnpub)
    a.label("B_join"); a.fence(4)
    UR = 120
    a("v_lshlrev_b32 v8, 4, v%d" % LANE)
    G.poll_flag(3, 4, S_F0, 0)
    Lnsig = a.newlabel("nsig")
    a("s_cmp_lt_u32 s%d, 14" % SLOT); a("s_cbranch_scc1 %s" % Lnsig)
    a("s_cmp_eq_u32 s%d, 0" % S_HF); a("s_cbranch_scc1 %s" % Lnsig)
    a("s_xor_b32 s6, s%d, 128" % S_FA); a("v_mov_b32 v3, s6"); a("v_mov_b32 v4, 1"); a("s_mov_b64 exec, 1")
    a("buffer_atomic_add v4, v3, s[%d:%d], 0 offen offset:4 sc1" % (SFL, SFL + 3))
    a("s_mov_b64 exec, -1")
    a.label(Lnsig)
    a("s_setprio %d" % (0 if "bprio" not in G.opts else 1))
    a("s_lshl_b32 s6, s%d, 12" % S_D); a("s_lshl_b32 s7, s%d, 11" % S_HF); a("s_add_u32 s6, s6, s7")
    for k in range(2):
        a("buffer_load_dwordx4 %s, v8, s[%d:%d], s6 offen offset:%d %s" % (vr(UR + 4 * k, 4), SUT, SUT + 3, 1024 * k, G.HL))
    a("s_lshl_b32 s%d, s%d, 14" % (S_KB, S_CH)); a("s_lshl_b32 s%d, s%d, 12" % (S_UB, S_CH)); a("s_add_u32 s%d, s%d, 65536" % (S_UB, S_UB))
    D = lambda k: 48 + 8 * k
    Rr = 32
    a("v_lshrrev_b32 v4, 1, v8"); a("v_lshrrev_b32 v5, 2, v8"); a("v_lshrrev_b32 v6, 3, v8")
    Lown = a.newlabel("eown"); Lrd = a.newlabel("erd"); Lo1 = a.newlabel("eo1"); Lp1 = a.newlabel("ep1")
    a("s_cmp_ge_u32 s%d, 14" % SLOT); a("s_cbranch_scc1 %s" % Lown)
    a("s_cmp_lg_u32 s%d, 0" % S_HF); a("s_cbranch_scc1 B_noexp")
    Lq = a.newlabel("pq"); Lqd = a.newlabel("pqd")
    a("s_mov_b32 s6, 0"); a("s_add_u32 s7, s%d, 4" % S_F1); a("s_mov_b64 exec, 1")
    a.label(Lq)
    a("buffer_load_dword v3, v9, s[%d:%d], 0 offen offset:4 sc1" % (SFL, SFL + 3))
    a("s_add_u32 s6, s6, 1"); a("s_waitcnt vmcnt(0)")
    a("v_cmp_eq_u32 vcc, s7, v3"); a("s_cbranch_vccnz %s" % Lqd)
    a("s_sleep %d" % G.SLEEP); a("s_cmp_lt_u32 s6, 0x%x" % POLL_CAP); a("s_cbranch_scc1 %s" % Lq)
    a.label(Lqd)
    a("s_mov_b64 exec, -1")
    a("s_lshl_b32 s6, s%d, 12" % S_D)
    gl = lambda kind, dst, va, off: a("buffer_load_%s %s, v%d, s[%d:%d], s6 offen offset:%d %s" % (kind, dst, va, SKX, SKX + 3, off, G.HL))
    gl("dwordx4", vr(Rr, 4), 8, 16); gl("dword", "v%d" % (Rr + 4), 8, 12); gl("dwordx2", vr(Rr + 6, 2), 4, 272); gl("dword", "v%d" % (Rr + 5), 4, 268)
    gl("dword", "v%d" % (Rr + 8), 5, 784); gl("dword", "v%d" % (Rr + 9), 5, 780)
    a("s_branch %s" % Lrd)
    a.label(Lown)
    a("v_add_u32 v3, s59, v8"); a("v_add_u32 v4, s59, v4"); a("v_add_u32 v5, s59, v5"); a("v_add_u32 v6, s59, v6")
    a("s_cmp_lg_u32 s%d, 0" % S_HF); a("s_cbranch_scc1 %s" % Lo1)
    a("ds_read_b128 %s, v3 offset:16" % vr(Rr, 4)); a("ds_read_b32 v%d, v3 offset:12" % (Rr + 4))
    a("ds_read_b64 %s, v4 offset:272" % vr(Rr + 6, 2)); a("ds_read_b32 v%d, v4 offset:268" % (Rr + 5))
    a("ds_read_b32 v%d, v5 offset:784" % (Rr + 8)); a("ds_read_b32 v%d, v5 offset:780" % (Rr + 9))
    a("s_branch %s" % Lrd)
    a.label(Lo1)
    for p in range(2):
        a("ds_read_u16 v%d, v6 offset:%d" % (Rr + 10 + 2 * p, 1038 + 128 * p)); a("ds_read_u16 v%d, v6 offset:%d" % (Rr + 11 + 2 * p, 1040 + 128 * p))
    a("ds_read_u16 v%d, v6 offset:1036" % (Rr + 14))
    a.label(Lrd)
    a("s_mov_b32 s6, 0xffff"); a("s_mov_b32 s7, 0x01000302"); a("s_mov_b32 s76, 0x03020302"); a("s_mov_b32 s77, 0x01000100")
    a("v_and_b32 v3, 1, v%d" % LANE); a("v_cmp_eq_u32 vcc, 1, v3")
    a("s_waitcnt vmcnt(0) lgkmcnt(0)"); a.vm = []
    L3 = a.newlabel("e1"); L4 = a.newlabel("e2")
    a("s_cmp_lg_u32 s%d, 0" % S_HF); a("s_cbranch_scc1 %s" % L3)
    d = D(0)
    a("v_perm_b32 v%d, v%d, v%d, s7" % (d, Rr + 7, Rr + 7)); a("v_perm_b32 v%d, v%d, v%d, s76" % (d + 1, Rr + 6, Rr + 6))
    a("v_perm_b32 v%d, v%d, v%d, s7" % (d + 2, Rr + 6, Rr + 6)); a("v_perm_b32 v%d, v%d, v%d, s76" % (d + 3, Rr + 5, Rr + 5))
    a("s_mov_b64 exec, 0xffffffff")
    a("v_bfi_b32 v%d, s6, v%d, v%d" % (d, Rr + 3, Rr + 2)); a("v_bfi_b32 v%d, s6, v%d, v%d" % (d + 1, Rr + 2, Rr + 1))
    a("v_bfi_b32 v%d, s6, v%d, v%d" % (d + 2, Rr + 1, Rr)); a("v_bfi_b32 v%d, s6, v%d, v%d" % (d + 3, Rr, Rr + 4))
    a("s_mov_b64 exec, -1")
    d = D(1)
    a("v_perm_b32 v%d, v%d, v%d, s76" % (d, Rr + 8, Rr + 8)); a("v_perm_b32 v%d, v%d, v%d, s77" % (d + 1, Rr + 8, Rr + 8))
    a("v_bfi_b32 v%d, s6, v%d, v%d" % (d + 2, Rr + 8, Rr + 9)); a("v_perm_b32 v%d, v%d, v%d, s76" % (d + 3, Rr + 9, Rr + 9))
    a("v_mov_b32 v10, 0"); a("v_mov_b32 v11, 0")
    a("s_branch %s" % L4)
    a.label(L3)
    for p in range(2):
        d = D(p); V0, V1 = Rr + 10 + 2 * p, Rr + 11 + 2 * p
        a("v_lshl_or_b32 v%d, v%d, 16, v%d" % (d, V1, V1)); a("v_lshl_or_b32 v%d, v%d, 16, v%d" % (d + 2, V0, V0)); a("v_mov_b32 v%d, v%d" % (d + 3, d + 2))
        a("v_cndmask_b32 v%d, v%d, v%d, vcc" % (V0, V0, V1)); a("v_lshl_or_b32 v%d, v%d, 16, v%d" % (d + 1, V0, V1))
    a("v_mov_b32 v10, v%d" % (D(0) + 2)); a("v_lshl_or_b32 v11, v%d, 16, v%d" % (Rr + 14, Rr + 14))
    a.label(L4)
    a("v_sub_u32 v3, 1008, v8")
    a("s_sub_u32 s6, 1, s%d" % S_HF); a("s_lshl_b32 s6, s6, 11"); a("s_add_u32 s6, s6, s%d" % S_KB)
    for sg in range(4):
        a("v_xor_b32 v4, %d, v3" % (sg << 6)); a("v_add_u32 v%d, s6, v4" % (Rr + sg))
    for k in range(2): a("ds_write_b128 v%d, %s offset:%d" % (Rr, vr(D(k), 4), 1024 * (1 - k)))
    for k in range(2): a("ds_read_b64 %s, v%d offset:%d" % (vr(D(k) + 4, 2), Rr, 1024 * (1 - k) + 16))
    a("s_waitcnt lgkmcnt(0)")
    a("s_mov_b64 exec, 1"); a("v_mov_b32 v%d, v10" % (D(0) + 4)); a("v_mov_b32 v%d, v11" % (D(0) + 5)); a("s_mov_b64 exec, -1")
    E = 64
    for k in range(2):
        d = D(k); e = E + 12 * k
        for q in range(4): a("v_alignbit_b32 v%d, v%d, v%d, 16" % (e + q, d + q + 1, d + q))
        a("ds_write_b128 v%d, %s offset:%d" % (Rr + 1, vr(e, 4), 4096 + 1024 * (1 - k)))
        for q in range(4): a("v_mov_b32 v%d, v%d" % (e + 4 + q, d + 1 + q))
        a("ds_write_b128 v%d, %s offset:%d" % (Rr + 2, vr(e + 4, 4), 8192 + 1024 * (1 - k)))
        for q in range(4): a("v_alignbit_b32 v%d, v%d, v%d, 16" % (e + 8 + q, d + q + 2, d + q + 1))
        a("ds_write_b128 v%d, %s offset:%d" % (Rr + 3, vr(e + 8, 4), 12288 + 1024 * (1 - k)))
    a.label("B_noexp"); a.fence(2)
    a("s_waitcnt vmcnt(0)")
    a("s_barrier")
    a("s_lshl_b32 s6, s%d, 11" % S_HF); a("s_add_u32 s6, s6, s%d" % S_UB); a("v_add_u32 v9, s6, v8")
    for k in range(2): a("ds_write_b128 v9, %s offset:%d" % (vr(UR + 4 * k, 4), 1024 * k))
    AA, BA, CA, AB, BB = 112, 120, 96, 32, 64
    a("v_lshrrev_b32 v3, 2, v1"); a("v_and_b32 v4, 3, v1"); a("v_sub_u32 v4, 3, v4")
    a("v_lshlrev_b32 v3, 3, v3"); a("v_lshlrev_b32 v5, 4, v2"); a("v_sub_u32 v3, v5, v3")
    a("s_sub_u32 s6, 1, s%d" % S_HF); a("s_lshl_b32 s6, s6, 8"); a("s_add_u32 s6, s6, s%d" % S_KB)
    a("v_lshlrev_b32 v5, 6, v4"); a("v_lshlrev_b32 v4, 12, v4"); a("v_add_u32 v4, s6, v4")
    for mm in range(4):
        for wh in range(2):
            a("v_add_u32 v6, %d, v3" % (216 - 64 * mm + 8 * wh)); a("v_xor_b32 v6, v6, v5"); a("v_add_u32 v%d, v6, v4" % (AA + 2 * mm + wh))
    a("s_lshl_b32 s7, s%d, 8" % S_HF)
    a("v_lshlrev_b32 v3, 5, v1"); a("v_lshl_add_u32 v3, v2, 4, v3"); a("v_subrev_u32 v10, s7, v3")
    a("s_sub_u32 s6, s%d, 288" % S_UB); a("v_add_u32 v11, s6, v10"); a("v_mov_b32 v12, 0")
    a("s_cmp_eq_u32 s%d, 0" % S_HF); a("s_cselect_b32 s77, 0x00ff0000, 0"); a("s_cselect_b32 s79, 0x0fff000f, 0"); a("s_mov_b32 s76, 0"); a("s_mov_b32 s78, 0")
    a("s_waitcnt lgkmcnt(0)"); a("s_barrier")
    G.stamp(4)
    Llo = a.newlabel("conv_lo"); Lout = a.newlabel("conv_out")
    a("s_cmp_lt_u32 s%d, 14" % SLOT); a("s_cbranch_scc1 %s" % Llo)
    def conv(ts):
        n = max(ts) + 1
        def rdA(mm, s):
            off = 512 * (7 - s)
            return ["ds_read_b64 %s, v%d offset:%d" % (vr(AB + 4 * s, 2), AA + 2 * mm, off), "ds_read_b64 %s, v%d offset:%d" % (vr(AB + 4 * s + 2, 2), AA + 2 * mm + 1, off)]
        def rdB(mm, q): return ["ds_read_b128 %s, v11 offset:%d" % (vr(BB + 4 * q, 4), 512 * q - 64 * mm + 256)]
        lst = [(ti, s, t - s) for ti, t in enumerate(ts) for s in range(t + 1)]
        lst.sort(key=lambda z: (z[1], -z[2]))
        lastA = {}; lastB = {}
        for k, (ti, s, q) in enumerate(lst): lastA[s] = k; lastB[q] = k
        for s in range(n):
            for x in rdA(0, s) + rdB(0, s): a(x)
        for mm in range(4):
            a("v_cmp_gt_i32 vcc, %d, v10" % (32 + 64 * mm))
            a("s_waitcnt lgkmcnt(0)")
            for k in range(4): a("v_cndmask_b32 v%d, v%d, v12, vcc" % (BB + k, BB + k))
            if mm == 0:
                a("s_mov_b64 exec, s[76:77]"); a("v_mov_b32 v%d, 0" % AB); a("v_mov_b32 v%d, 0" % (AB + 1))
                a("s_mov_b64 exec, s[78:79]"); a("v_mov_b32 v%d, 0" % (AB + 2)); a("v_mov_b32 v%d, 0" % (AB + 3))
                a("s_mov_b64 exec, -1")
            seen = set(); pend = []
            for k, (ti, s, q) in enumerate(lst):
                c = vr(CA + 4 * ti, 4)
                first = mm == 0 and ti not in seen; seen.add(ti)
                a("v_mfma_f32_16x16x32_bf16 %s, %s, %s, %s" % (c, vr(AB + 4 * s, 4), vr(BB + 4 * q, 4), "0" if first else c))
                for x in pend: a(x)
                pend = []
                if mm + 1 < 4:
                    if lastA[s] == k: pend += rdA(mm + 1, s)
                    if lastB[q] == k: pend += rdB(mm + 1, q)
            if pend: a("s_nop 3")
            for x in pend: a(x)
    conv([7, 6, 5, 4])
    a("s_mov_b32 s76, 0x04050607")
    a("s_branch %s" % Lout)
    a.label(Llo)
    conv([3, 2, 1, 0])
    a("s_mov_b32 s76, 0x00010203")
    a.label(Lout); a.fence(8)
    G.stamp(5)
    a("s_barrier")
    L5 = a.newlabel("x1"); L6 = a.newlabel("x2")
    a("s_lshl_b32 s6, s%d, 11" % WAVE); a("v_add_u32 v3, s6, v8")
    a("s_xor_b32 s6, s%d, 4" % WAVE); a("s_lshl_b32 s6, s6, 11"); a("v_add_u32 v4, s6, v8")
    a("s_cmp_eq_u32 s%d, 0" % S_HF); a("s_cbranch_scc1 %s" % L5)
    for k in range(2): a("ds_write_b128 v3, %s offset:%d" % (vr(CA + 4 * k, 4), 1024 * k))
    a("s_nop 3")
    for k in range(8): a("v_mov_b32 v%d, v%d" % (CA + k, CA + 8 + k))
    a("s_branch %s" % L6)
    a.label(L5)
    for k in range(2): a("ds_write_b128 v3, %s offset:%d" % (vr(CA + 8 + 4 * k, 4), 1024 * k))
    a.label(L6)
    a("s_waitcnt lgkmcnt(0)"); a("s_barrier")
    for k in range(2): a("ds_read_b128 %s, v4 offset:%d" % (vr(32 + 4 * k, 4), 1024 * k))
    a("v_lshlrev_b32 v3, 5, v1"); a("v_lshl_add_u32 v3, v2, 3, v3")
    a("s_mul_i32 s6, s%d, 2112" % S_CH); a("s_lshl_b32 s7, s%d, 10" % S_HF); a("s_add_u32 s6, s6, s7"); a("s_add_u32 s6, s6, 32768"); a("v_add_u32 v3, s6, v3")
    a("v_bfe_u32 v5, v%d, 2, 2" % LANE); a("v_mul_u32_u24 v5, 2112, v5"); a("v_lshl_add_u32 v5, v2, 5, v5")
    a("v_and_b32 v4, 3, v%d" % LANE); a("v_lshl_add_u32 v5, v4, 3, v5"); a("s_lshl_b32 s6, s%d, 8" % WAVE); a("s_add_u32 s6, s6, 32768"); a("v_add_u32 v5, s6, v5")
    a("s_lshr_b32 s6, s%d, 1" % WAVE); a("s_lshl_b32 s6, s6, 3"); a("s_lshr_b32 s6, s76, s6"); a("s_and_b32 s6, s6, 0xff"); a("s_lshl_b32 s6, s6, 1")
    a("s_and_b32 s7, s%d, 1" % WAVE); a("s_add_u32 s6, s6, s7"); a("s_mul_i32 s6, s6, %d" % (128 * 1792))
    a("s_lshl_b32 s7, s%d, 3" % S_CQ); a("s_add_u32 s6, s6, s7"); a("s_add_u32 s6, s6, 896"); a("s_add_u32 s7, s6, %d" % (64 * 1792))
    a("v_mul_u32_u24 v4, 1792, v%d" % LANE)
    a("s_waitcnt lgkmcnt(0)")
    for k in range(0, 8, 2): a("v_pk_add_f32 %s, %s, %s" % (vr(CA + k, 2), vr(CA + k, 2), vr(32 + k, 2)))
    for k in range(4): a("v_cvt_pk_bf16_f32 v%d, v%d, v%d" % (40 + k, CA + 2 * k, CA + 2 * k + 1))
    for k in range(2): a("ds_write_b64 v3, %s offset:%d" % (vr(40 + 2 * k, 2), 512 * k))
    a("s_waitcnt lgkmcnt(0)"); a("s_barrier")
    for k in range(2): a("ds_read_b64_tr_b16 %s, v5 offset:%d" % (vr(44 + 2 * k, 2), 128 * k))
    for k in range(2):
        a("s_waitcnt lgkmcnt(%d)" % (1 - k))
        a.vmop("buffer_store_dwordx2 %s, v4, s[%d:%d], s%d offen" % (vr(44 + 2 * k, 2), SOUT, SOUT + 3, 6 + k), "S")
    G.stamp(6)
    G.dump_stamps('B')
```

```python
import sys
from asmlib import *

KNAME = "concat_heads__linear_attn_block__ssm_conv_s4d__prompt_kernel"
NWG = 464
LDS = 81920
WS_PQ, WS_UT, WS_KV, WS_FL, WS_TS, WS_KX = 0, 0x200000, 0x400000, 0x480000, 0x500000, 0x600000
LOG2E = 0x3fb8aa3b
EPS = 0x358637bd
POLL_CAP = 1 << 15

XCD, SLOT, WAVE = 3, 4, 5
P_X, P_W, P_WO, P_U, P_LA, P_AI, P_CR, P_CI, P_DT, P_DS, P_OUT, P_DBG, P_WS = 16, 18, 20, 22, 24, 26, 28, 30, 32, 34, 36, 38, 40
S_F0, S_F1, S_FA = 42, 43, 100
SX, SW, SPQ, SKV, SOUT, SDBG, SWO, SUT, SU, SFL = 44, 48, 52, 56, 60, 64, 68, 52, 44, 72
TS0 = 80
LANE = 7

class Gen:
    def __init__(self, stamps=False, opts=()):
        self.a = Asm()
        self.opts = set(opts)
        self.stamps = stamps
        self.SLEEP = 2
        for o in self.opts:
            if o.startswith('sleep'): self.SLEEP = int(o[5:])
        self.HL = "nt" if "nt" in self.opts else ("" if "plain" in self.opts else "sc1")

    def srd(self, d, p, nbytes, off=0):
        a = self.a
        if off:
            a("s_add_u32 s%d, s%d, 0x%x" % (d, p, off)); a("s_addc_u32 s%d, s%d, 0" % (d + 1, p + 1))
        else:
            a("s_mov_b32 s%d, s%d" % (d, p)); a("s_mov_b32 s%d, s%d" % (d + 1, p + 1))
        a("s_mov_b32 s%d, 0x%x" % (d + 2, nbytes)); a("s_mov_b32 s%d, 0x00020000" % (d + 3))

    def stamp(self, k):
        if not self.stamps: return
        self.a("s_memrealtime s[%d:%d]" % (TS0 + 2 * k, TS0 + 2 * k + 1))
        self.a("s_waitcnt lgkmcnt(0)")

    def dump_stamps(self, role='A'):
        if not self.stamps: return
        a = self.a
        a.vmwait_all()
        self.stamp(9)
        amp = [x for x in self.opts if x.startswith("amp")]
        if amp:
            r, k, wg = amp[0][3:].split("_")
            if r == role:
                L = a.newlabel("amp"); Lw = a.newlabel("ampw")
                a("s_cmp_lg_u32 s2, %d" % int(wg)); a("s_cbranch_scc1 %s" % L)
                a("s_sub_u32 s6, s%d, s%d" % (TS0 + 2 * int(k), TS0)); a("s_mul_i32 s6, s6, 3"); a("s_add_u32 s6, s6, s%d" % (TS0 + 18))
                a.label(Lw)
                a("s_sleep 2"); a("s_memrealtime s[10:11]"); a("s_waitcnt lgkmcnt(0)")
                a("s_sub_u32 s7, s10, s6"); a("s_cmp_lt_i32 s7, 0"); a("s_cbranch_scc1 %s" % Lw)
                a.label(L)
            return
        if "hstamps" in self.opts:
            L = a.newlabel("hs")
            a("s_cmp_lg_u32 s%d, 0" % WAVE); a("s_cbranch_scc1 %s" % L)
            wg, pairs, base = (288, [(1, 2), (3, 4), (5, 6), (7, 8), (9, 9)], [36, 40, 44, 48, 52]) if role == "A" else (32, [(1, 2), (3, 4), (5, 9)], [56, 60, 12])
            a("s_cmp_lg_u32 s2, %d" % wg); a("s_cbranch_scc1 %s" % L)
            a("s_mov_b64 exec, 1")
            for (k1, k2), off in zip(pairs, base):
                a("s_sub_u32 s6, s%d, s%d" % (TS0 + 2 * k1, TS0)); a("s_sub_u32 s7, s%d, s%d" % (TS0 + 2 * k2, TS0))
                a("s_mul_i32 s7, s7, 10000"); a("s_add_u32 s6, s6, s7"); a("v_mov_b32 v1, s6"); a("v_mov_b32 v0, %d" % off)
                a("buffer_store_dword v1, v0, s[%d:%d], 0 offen" % (SDBG, SDBG + 3))
            a("s_mov_b64 exec, -1")
            a.label(L)
            return
        self.srd(76, P_WS, 0x100000, WS_TS)
        a("s_lshl_b32 s6, s2, 3"); a("s_add_u32 s6, s6, s%d" % WAVE); a("s_lshl_b32 s6, s6, 6")
        a("v_mov_b32 v0, s6")
        a("s_mov_b64 exec, 1")
        for k in range(10):
            a("v_mov_b32 v1, s%d" % (TS0 + 2 * k))
            a("buffer_store_dword v1, v0, s[76:79], 0 offen offset:%d" % (4 * k))
        a("s_mov_b64 exec, -1")

    def atomic_ret(self, s_off, va, vb, s_dst, srd=None):
        a = self.a
        SDBG = srd if srd is not None else globals()["SDBG"]
        a("v_mov_b32 v%d, s%d" % (va, s_off)); a("v_mov_b32 v%d, 1" % vb)
        a("s_mov_b64 exec, 1")
        a("buffer_atomic_add v%d, v%d, s[%d:%d], 0 offen sc0 sc1" % (vb, va, SDBG, SDBG + 3))
        a("s_mov_b64 exec, -1")
        a("s_waitcnt vmcnt(0)")
        a("v_readfirstlane_b32 s%d, v%d" % (s_dst, vb))

    def poll_flag(self, va, vv, s_old, off=0):
        a = self.a
        L = a.newlabel("poll"); D = a.newlabel("polld")
        a("s_mov_b32 s6, 0"); a("v_mov_b32 v%d, s%d" % (va, S_FA))
        a("s_mov_b64 exec, 1")
        a.label(L)
        a("buffer_load_dword v%d, v%d, s[%d:%d], 0 offen offset:%d sc1" % (vv, va, SFL, SFL + 3, off))
        a("s_add_u32 s6, s6, 1")
        a("s_waitcnt vmcnt(0)")
        a("v_cmp_ne_u32 vcc, s%d, v%d" % (s_old, vv))
        a("s_cbranch_vccnz %s" % D)
        a("s_sleep %d" % self.SLEEP)
        a("s_cmp_lt_u32 s6, 0x%x" % POLL_CAP)
        a("s_cbranch_scc1 %s" % L)
        a.label(D)
        a("s_mov_b64 exec, -1")

    def poll2(self, va, vv):
        a = self.a
        L = a.newlabel("poll"); D = a.newlabel("polld")
        a("s_mov_b32 s6, 0"); a("v_mov_b32 v%d, s%d" % (va, S_FA))
        a("s_mov_b64 exec, 1")
        a.label(L)
        a("buffer_load_dwordx2 %s, v%d, s[%d:%d], 0 offen sc1" % (vr(vv, 2), va, SFL, SFL + 3))
        a("s_add_u32 s6, s6, 1")
        a("s_waitcnt vmcnt(0)")
        a("v_cmp_ne_u64 vcc, s[%d:%d], %s" % (S_F0, S_F1, vr(vv, 2)))
        a("s_cbranch_vccnz %s" % D)
        a("s_sleep %d" % self.SLEEP)
        a("s_cmp_lt_u32 s6, 0x%x" % POLL_CAP)
        a("s_cbranch_scc1 %s" % L)
        a.label(D)
        a("s_mov_b64 exec, -1")

    def phi(self, base, n, tmp):
        a = self.a
        for k in range(0, n, 2): a("v_pk_mul_f32 %s, %s, s[14:15]" % (vr(tmp + k, 2), vr(base + k, 2)))
        for k in range(n):
            a("v_exp_f32_e64 v%d, v%d clamp" % (tmp + k, tmp + k))
            a("v_max_f32 v%d, s13, v%d" % (base + k, base + k))
        for k in range(0, n, 2): a("v_pk_add_f32 %s, %s, %s" % (vr(base + k, 2), vr(base + k, 2), vr(tmp + k, 2)))

    def gemm(self, isq):
        a = self.a
        XA, XW, XR0, XR1, FLV, DA, FA = 1, 2, 3, 4, 12, 6, 8
        FS = 32 if isq else 24
        F0, F1 = 16, 16 + FS
        ACC = 16 + 2 * FS
        XS = 96
        U = 7 if isq else 14
        RING = 4; XBASE = 32768; XRING = 3
        S_WB, S_T, S_RB, S_HP, S_M = 9, 10, 11, 12, 8
        S_X = 76
        Xs = lambda c, q: XS + ((c & 3) * 2 + q) * 4
        a("s_and_b32 s14, s%d, 1" % XCD)
        if isq:
            a("s_sub_u32 s10, s%d, 44" % SLOT)
            a("s_mul_i32 s6, s10, 21846"); a("s_lshr_b32 s6, s6, 16")
            a("s_mul_i32 s7, s6, 3"); a("s_sub_u32 s7, s10, s7"); a("s_lshl_b32 s15, s14, 2"); a("s_add_u32 s%d, s7, s15" % S_HP)
            a("s_lshl_b32 s15, s14, 1"); a("s_add_u32 s15, s15, s7")
            a("s_cmp_ge_u32 s10, 12"); a("s_cselect_b32 s%d, 3, s%d" % (S_HP, S_HP)); a("s_cselect_b32 s6, s15, s6")
            a("s_lshl_b32 s%d, s%d, 7" % (S_WB, S_HP))
        else:
            a("s_sub_u32 s7, s%d, 28" % SLOT); a("s_lshr_b32 s6, s7, 2"); a("s_and_b32 s7, s7, 3"); a("s_lshl_b32 s15, s14, 2"); a("s_add_u32 s%d, s7, s15" % S_HP)
            a("s_mul_i32 s%d, s%d, 112" % (S_WB, S_HP)); a("s_add_u32 s%d, s%d, 896" % (S_WB, S_WB))
        a("s_lshr_b32 s%d, s%d, 1" % (S_RB, XCD)); a("s_lshl_b32 s%d, s%d, 2" % (S_RB, S_RB)); a("s_add_u32 s%d, s%d, s6" % (S_RB, S_RB))
        a("s_lshl_b32 s6, s%d, 3" % S_RB); a("s_add_u32 s6, s6, s%d" % WAVE); a("s_mul_i32 s%d, s6, 14336" % S_X)
        a("s_add_u32 s%d, s%d, 7168" % (S_X + 1, S_X))
        a("s_lshl_b32 s%d, s2, 7" % S_FA)
        a("s_and_b32 s6, s%d, 3" % S_RB); a("s_lshl_b32 s6, s6, 1"); a("s_and_b32 s7, s%d, 3" % S_HP); a("s_add_u32 s6, s6, s7")
        if isq: a("s_add_u32 s6, s6, 4")
        a("s_cmp_ge_u32 s6, 7"); a("s_cselect_b32 s7, 7, 0"); a("s_sub_u32 s6, s6, s7")
        if "norot" in self.opts: a("s_mov_b32 s6, 0")
        a("s_lshl_b32 s69, s6, 7"); a("s_mul_i32 s68, s6, %d" % (64 * 2688))
        t = F0; I, Gq = F0 + 8, F0 + 9
        a("v_and_b32 v%d, 15, v%d" % (I, LANE)); a("v_lshrrev_b32 v%d, 4, v%d" % (Gq, LANE))
        a("v_lshrrev_b32 v%d, 3, v%d" % (t, LANE)); a("v_and_b32 v%d, 7, v%d" % (t + 1, LANE))
        a("v_xor_b32 v%d, v%d, v%d" % (t + 1, t + 1, t))
        a("v_mul_u32_u24 v%d, 896, v%d" % (t + 2, t)); a("v_lshl_add_u32 v%d, v%d, 4, v%d" % (XA, t + 1, t + 2))
        a("s_lshl_b32 s78, s%d, 11" % WAVE); a("s_add_u32 s78, s78, %d" % XBASE)
        a("s_and_b32 s6, s%d, 2" % WAVE); a("s_lshl_b32 s6, s6, 1")
        a("v_or_b32 v%d, s6, v%d" % (t + 4, Gq))
        a("v_lshrrev_b32 v%d, 1, v%d" % (t + 5, I)); a("v_xor_b32 v%d, v%d, v%d" % (t + 5, t + 5, t + 4))
        a("v_and_b32 v%d, 1, v%d" % (t + 6, I)); a("v_lshl_or_b32 v%d, v%d, 1, v%d" % (t + 5, t + 5, t + 6))
        a("v_lshrrev_b32 v%d, 3, v%d" % (t + 6, t + 5))
        a("v_and_b32 v%d, 7, v%d" % (t + 5, t + 5))
        if not isq: a("v_min_u32 v%d, 6, v%d" % (t + 5, t + 5))
        a("s_lshl_b32 s6, s%d, 2" % WAVE); a("v_add_u32 v%d, s6, v%d" % (t + 7, Gq)); a("v_mul_u32_u24 v%d, 2688, v%d" % (t + 7, t + 7))
        a("v_mul_u32_u24 v%d, %d, v%d" % (t + 6, 32 * 2688 if isq else 896, t + 6))
        a("v_lshl_add_u32 v%d, v%d, 4, v%d" % (t + 7, t + 5, t + 7)); a("v_add_u32 v%d, v%d, v%d" % (DA, t + 7, t + 6))
        a("s_lshl_b32 s%d, s%d, 10" % (S_M, WAVE))
        a("v_mov_b32 v0, s%d" % S_FA)
        a("s_waitcnt lgkmcnt(0)")
        self.srd(SX, P_X, 1835008); self.srd(SW, P_W, 1204224)
        self.stamp(0)
        def dma(u):
            if "nodma" in self.opts: return
            a("s_add_u32 m0, s%d, %d" % (S_M, (u % RING) * 8192))
            a("s_add_u32 s%d, s%d, s68" % (S_T, S_WB))
            a.vmop("buffer_load_dwordx4 v%d, s[%d:%d], s%d offen lds" % (DA, SW, SW + 3, S_T), ("W", u))
            a("s_add_u32 s68, s68, %d" % ((64 if isq else 32) * 2688)); a("s_cmp_ge_u32 s68, %d" % (448 * 2688)); a("s_cselect_b32 s68, 0, s68")
        def xload(c):
            if "noxl" in self.opts: return
            for q in range(2):
                a("s_add_u32 m0, s78, %d" % ((c % XRING) * 16384 + q * 1024))
                a("s_add_u32 s%d, s%d, s69" % (S_T, S_X + q))
                a.vmop("buffer_load_dwordx4 v%d, s[%d:%d], s%d offen lds" % (XA, SX, SX + 3, S_T), ("X", c))
            a("s_add_u32 s69, s69, 128"); a("s_cmp_ge_u32 s69, 896"); a("s_cselect_b32 s69, 0, s69")
        self.srd(SKV, P_WS, 65536 + 8192, WS_KV)
        xload(0); dma(0); a("s_barrier")
        if isq:
            xload(1); dma(1); a("s_barrier"); xload(2); dma(2); dma(3)
        else:
            dma(1); xload(1); a("s_barrier"); dma(2); dma(3); xload(2)
        if "pfa" in self.opts:
            Lpf = a.newlabel("pf"); Lpx = a.newlabel("pfx")
            a("s_sub_u32 s6, s%d, 28" % SLOT)
            a("s_bitcmp1_b32 s%d, 0" % WAVE); a("s_cbranch_scc1 %s" % Lpx)
            a("s_lshl_b32 s6, s6, 2"); a("s_lshr_b32 s7, s%d, 1" % WAVE); a("s_add_u32 s6, s6, s7")
            a("s_mul_i32 s6, s6, %d" % (56 * 128)); a("s_add_u32 s6, s6, %d" % (128 * 2688))
            a("v_min_u32 v5, 55, v%d" % LANE); a("v_lshlrev_b32 v5, 7, v5")
            a("buffer_load_dword v127, v5, s[%d:%d], s6 offen" % (SW, SW + 3))
            a("s_branch %s" % Lpf)
            a.label(Lpx)
            a("s_cmp_lg_u32 s%d, 1" % WAVE); a("s_cbranch_scc1 %s" % Lpf)
            a("s_cmp_ge_u32 s6, 16"); a("s_cbranch_scc1 %s" % Lpf)
            a("s_lshl_b32 s7, s%d, 4" % XCD); a("s_add_u32 s6, s6, s7"); a("s_mul_i32 s6, s6, 14336")
            a("v_lshrrev_b32 v5, 2, v%d" % LANE); a("v_mul_u32_u24 v5, 896, v5"); a("v_and_b32 v127, 3, v%d" % LANE); a("v_lshl_add_u32 v5, v127, 7, v5")
            a("buffer_load_dword v127, v5, s[%d:%d], s6 offen offset:384" % (SX, SX + 3))
            a.label(Lpf)
        self.srd(SFL, P_WS, 131072, WS_FL)
        a.vmop("buffer_load_dwordx2 %s, v0, s[%d:%d], 0 offen sc1" % (vr(FLV, 2), SFL, SFL + 3), "FL")
        self.srd(SDBG, P_DBG, 256); self.srd(SPQ, P_WS, 1835008, WS_PQ)
        a("s_lshr_b32 s6, s%d, 1" % WAVE); a("s_lshl_b32 s6, s6, 12"); a("s_add_u32 s6, s6, %d" % XBASE)
        a("v_and_b32 v%d, 7, v%d" % (t, I)); a("v_xor_b32 v%d, v%d, v%d" % (t, t, Gq)); a("v_lshlrev_b32 v%d, 4, v%d" % (t, t)); a("v_lshl_add_u32 v%d, v%d, 7, v%d" % (t, I, t))
        a("v_xor_b32 v%d, 64, v%d" % (t + 1, t)); a("v_add_u32 v%d, s6, v%d" % (XR0, t)); a("v_add_u32 v%d, s6, v%d" % (XR1, t + 1))
        a("v_bfe_u32 v%d, v%d, 2, 2" % (t, LANE)); a("v_and_b32 v%d, 3, v%d" % (t + 1, LANE))
        a("v_and_b32 v%d, 1, v%d" % (t + 2, Gq)); a("v_lshl_or_b32 v%d, v%d, 2, v%d" % (t + 2, t + 2, t))
        a("v_lshl_add_u32 v%d, v%d, 3, v%d" % (t + 3, Gq, t)); a("v_lshlrev_b32 v%d, 8, v%d" % (t + 3, t + 3))
        a("s_and_b32 s7, s%d, 1" % WAVE)
        for tt in range(4):
            if isq:
                a("s_lshl_b32 s6, s7, 6"); a("s_add_u32 s6, s6, %d" % (128 * (tt >> 1) + 32 * (tt & 1))); sh = 3
            else:
                a("s_mul_i32 s6, s7, %d" % (48 if tt < 2 else 56)); a("s_add_u32 s6, s6, %d" % (32 * tt if tt < 2 else 128 + 32 * (tt - 2))); sh = 3
            a("v_lshlrev_b32 v%d, %d, v%d" % (t + 4, sh, t + 1)); a("v_add_u32 v%d, s6, v%d" % (t + 4, t + 4))
            a("v_lshrrev_b32 v%d, 5, v%d" % (t + 5, t + 4)); a("v_xor_b32 v%d, v%d, v%d" % (t + 5, t + 5, t + 2))
            a("v_and_b32 v%d, 31, v%d" % (t + 4, t + 4)); a("v_lshl_or_b32 v%d, v%d, 5, v%d" % (t + 4, t + 5, t + 4))
            a("v_add_u32 v%d, v%d, v%d" % (FA + tt, t + 4, t + 3))
        a("s_mov_b32 s14, 0x%x" % LOG2E); a("s_mov_b32 s15, 0x%x" % LOG2E); a("s_mov_b32 s13, 0x%x" % EPS)
        def xwrite(c):
            if "noxw" in self.opts: return
            for q in range(2): a("ds_write_b128 v%d, %s offset:%d" % (XW, vr(Xs(c, q), 4), (c & 1) * 16384 + q * 1024))
        def freads_l(u):
            out = []
            if "nofr" in self.opts: return out
            Fb = F1 if u & 1 else F0
            c = chunk(u)
            for rt in range(2):
                for kk in ((0, 1) if isq else (u & 1,)):
                    d = Fb + 16 + ((rt * 2 + kk) * 4 if isq else rt * 4)
                    out.append("ds_read_b128 %s, v%d offset:%d" % (vr(d, 4), XR1 if kk else XR0, (c % XRING) * 16384 + rt * 2048))
            for tt in range(4):
                for hh in range(2):
                    out.append("ds_read_b64_tr_b16 %s, v%d offset:%d" % (vr(Fb + 4 * tt + 2 * hh, 2), FA + tt, (u % RING) * 8192 + hh * 1024))
            return out
        def freads(u):
            for x in freads_l(u): a(x)
        def newchunk(u): return isq or (u & 1) == 0
        def chunk(u): return u if isq else u >> 1
        def mfmas_l(u):
            out = []
            if "nomf" in self.opts: return out
            Fb = F1 if u & 1 else F0
            for tt in range(4):
                for rt in range(2):
                    if isq:
                        acc = ACC + (rt * 2 + (tt & 1)) * 4; x = Fb + 16 + (rt * 2 + (tt >> 1)) * 4; first = (u == 0 and tt < 2)
                        out.append("v_mfma_f32_16x16x32_bf16 %s, %s, %s, %s" % (vr(acc, 4), vr(Fb + 4 * tt, 4), vr(x, 4), "0" if first else vr(acc, 4)))
                    else:
                        acc = ACC + (tt * 2 + rt) * 4; x = Fb + 16 + rt * 4; first = (u == 0)
                        out.append("v_mfma_f32_16x16x32_bf16 %s, %s, %s, %s" % (vr(acc, 4), vr(x, 4), vr(Fb + 4 * tt, 4), "0" if first else vr(acc, 4)))
            return out
        if "twice" in self.opts:
            a("s_mov_b32 s78, 0"); Ltw = a.newlabel("tw"); a.label(Ltw)
        a.vmwait(("W", 0), ("X", 0)); a("s_barrier")
        self.stamp(1)
        freads(0)
        for u in range(U):
            if u + 1 < U:
                M = mfmas_l(u); Rd = freads_l(u + 1)
                a("s_waitcnt lgkmcnt(0)")
                for x in M[:2]: a(x)
                a.vmwait(("W", u + 1), ("X", chunk(u + 1)))
                a("s_barrier")
                if u + RING < U: dma(u + RING)
                if newchunk(u + 1) and chunk(u) + XRING < 7: xload(chunk(u) + XRING)
                for k in range(2, 8):
                    for x in Rd[2 * (k - 2):2 * (k - 2) + 2]: a(x)
                    if k < len(M): a(M[k])
                if u == (4 if isq else 10):
                    a.vmwait("FL")
                    Lsn = a.newlabel("snap")
                    a("s_cmp_lg_u32 s%d, 7" % WAVE); a("s_cbranch_scc1 %s" % Lsn)
                    a("v_mov_b32 v0, 32")
                    a("buffer_load_dword v5, v0, s[%d:%d], 0 offen" % (SDBG, SDBG + 3))
                    a.label(Lsn)
            else:
                a("s_waitcnt lgkmcnt(0)")
                for x in mfmas_l(u): a(x)
                a("v_readfirstlane_b32 s%d, v%d" % (S_F0, FLV)); a("v_readfirstlane_b32 s%d, v%d" % (S_F1, FLV + 1))
                a.vmwait_all()
                if not isq:
                    a("s_barrier")
                    self.a2_pre()
        if "twice" in self.opts:
            a("s_add_u32 s78, s78, 1"); a("s_cmp_lt_u32 s78, 2"); a("s_cbranch_scc1 %s" % Ltw)
        self.stamp(2)
        T = XS
        if isq:
            self.phi(ACC, 16, T)
            a("s_lshl_b32 s6, s%d, 2" % S_RB); a("s_lshr_b32 s7, s%d, 1" % WAVE); a("s_add_u32 s6, s6, s7"); a("s_mul_i32 s6, s6, 28672")
            a("s_lshl_b32 s7, s%d, 11" % S_HP); a("s_add_u32 s6, s6, s7")
            a("s_and_b32 s7, s%d, 1" % WAVE); a("s_lshl_b32 s7, s7, 10"); a("s_add_u32 s6, s6, s7"); a("s_add_u32 s7, s6, 14336")
            a("v_lshrrev_b32 v1, 4, v%d" % LANE); a("v_and_b32 v2, 1, v1"); a("v_lshrrev_b32 v1, 1, v1"); a("v_lshl_or_b32 v1, v2, 1, v1")
            a("v_and_b32 v2, 15, v%d" % LANE); a("v_lshlrev_b32 v2, 4, v2"); a("v_lshl_add_u32 v0, v1, 8, v2")
            for rt in range(2):
                d = T + 16 + rt * 4
                for k in range(4): a("v_cvt_pk_bf16_f32 v%d, v%d, v%d" % (d + k, ACC + rt * 8 + 2 * k, ACC + rt * 8 + 2 * k + 1))
            for rt in range(2):
                d = T + 16 + rt * 4
                a("v_permlane16_swap_b32 v%d, v%d" % (d, d + 2)); a("v_permlane16_swap_b32 v%d, v%d" % (d + 1, d + 3))
                a.vmop("buffer_store_dwordx4 %s, v0, s[%d:%d], s%d offen sc1" % (vr(d, 4), SPQ, SPQ + 3, 6 + rt), "S")
            self.stamp(3)
            Lok = a.newlabel("zok"); Lz = a.newlabel("zp")
            a("s_cmp_lg_u32 s%d, 7" % WAVE); a("s_cbranch_scc1 %s" % Lok)
            a("s_mov_b32 s6, 0"); a("v_mov_b32 v4, 32")
            a.label(Lz)
            a("v_readfirstlane_b32 s7, v5"); a("s_cmp_ge_u32 s7, 16"); a("s_cbranch_scc1 %s" % Lok)
            a("s_sleep 8")
            a("buffer_load_dword v5, v4, s[%d:%d], 0 offen sc1" % (SDBG, SDBG + 3))
            a("s_add_u32 s6, s6, 1"); a("s_waitcnt vmcnt(0)"); a("s_cmp_lt_u32 s6, 0x%x" % POLL_CAP); a("s_cbranch_scc1 %s" % Lz)
            a.label(Lok)
            a.vmwait_all(); a("s_barrier")
            Lq7 = a.newlabel("q7")
            a("s_cmp_eq_u32 s%d, 7" % WAVE); a("s_cbranch_scc1 %s" % Lq7)
            self.a2_pre(); a("s_branch A2_entry")
            a.label(Lq7)
            L = a.newlabel("arrq")
            a("s_cmp_lg_u32 s%d, 7" % WAVE); a("s_cbranch_scc1 %s" % L)
            a("s_lshl_b32 s6, s%d, 8" % S_RB); a("s_add_u32 s6, s6, %d" % (65536 + 8 * 256))
            self.atomic_ret(6, 1, 2, 7, SKV)
            a("s_cmp_lg_u32 s7, 6"); a("s_cbranch_scc1 %s" % L)
            a("s_and_b32 s6, s%d, 3" % S_RB); a("s_mul_i32 s7, s6, 6")
            a("v_cmp_le_u32 vcc, 6, v%d" % LANE); a("v_cndmask_b32 v2, 0, 1, vcc")
            a("v_mul_u32_u24 v1, 6, v2"); a("v_sub_u32 v1, v%d, v1" % LANE); a("v_add_u32 v1, s7, v1")
            a("s_lshl_b32 s7, s6, 1"); a("v_add_u32 v3, s7, v%d" % LANE); a("v_and_b32 v3, 3, v3"); a("v_add_u32 v3, 24, v3")
            a("s_lshr_b32 s7, s6, 1"); a("v_mov_b32 v4, s7")
            a("v_cmp_le_u32 vcc, 12, v%d" % LANE); a("v_cndmask_b32 v1, v1, v3, vcc"); a("v_cndmask_b32 v2, v2, v4, vcc")
            a("v_cmp_le_u32 vcc, 14, v1"); a("v_cndmask_b32 v3, 0, 2, vcc"); a("v_add3_u32 v1, v1, v3, 28")
            a("v_lshl_add_u32 v1, v1, 3, v2"); a("v_lshlrev_b32 v1, 7, v1")
            a("s_and_b32 s6, s%d, 6" % XCD); a("s_lshl_b32 s6, s6, 7")
            a("v_mov_b32 v2, 1"); a("s_mov_b64 exec, 0x3fff")
            a("buffer_atomic_add v2, v1, s[%d:%d], s6 offen offset:4 sc1" % (SFL, SFL + 3))
            a("s_mov_b64 exec, -1")
            a("s_mov_b32 s6, %d" % (65536 + 24 * 256))
            self.atomic_ret(6, 1, 2, 7, SKV)
            a("s_cmp_lg_u32 s7, %d" % (23 if "one" not in self.opts else 143)); a("s_cbranch_scc1 %s" % L)
            a("v_lshlrev_b32 v1, 7, v%d" % LANE); a("v_mov_b32 v2, 1")
            for k in range(4):
                a("s_mov_b32 s6, %d" % (224 * 128 + k * 8192))
                if k == 3: a("s_mov_b32 s10, -1"); a("s_mov_b32 s11, 0xffff"); a("s_mov_b64 exec, s[10:11]")
                a("buffer_atomic_add v2, v1, s[%d:%d], s6 offen sc1" % (SFL, SFL + 3))
            a("s_mov_b64 exec, -1")
            a.label(L)
            self.a2_pre()
        else:
            self.phi(ACC, 16, T)
            PK = T + 16
            for k in range(16): a("v_cvt_pk_bf16_f32 v%d, v%d, v%d" % (PK + k, ACC + 2 * k, ACC + 2 * k + 1))
            a("s_and_b32 s7, s%d, 1" % WAVE); a("s_cmp_eq_u32 s7, 1")
            a("s_cselect_b32 s6, 0x000f000f, 0"); a("s_mov_b32 s7, s6"); a("s_mov_b64 exec, s[6:7]")
            for k in range(4): a("v_mov_b32 v%d, 0" % (PK + k))
            a("s_cselect_b32 s6, 0, 0xf000f000"); a("s_mov_b32 s7, s6"); a("s_mov_b64 exec, s[6:7]")
            for k in range(4): a("v_mov_b32 v%d, 0" % (PK + 4 + k))
            a("s_mov_b32 s6, 0xe000e000"); a("s_mov_b32 s7, s6"); a("s_mov_b64 exec, s[6:7]")
            for k in range(4): a("v_mov_b32 v%d, 0" % (PK + 12 + k))
            a("s_mov_b32 s6, 0x10001000"); a("s_mov_b32 s7, s6"); a("s_mov_b64 exec, s[6:7]"); a("s_mov_b32 s6, 0x3f803f80")
            for k in range(4): a("v_mov_b32 v%d, s6" % (PK + 12 + k))
            a("s_mov_b64 exec, -1")
            KT = F0
            for je in range(2):
                for jd in range(2):
                    a("v_mfma_f32_16x16x32_bf16 %s, %s, %s, 0" % (vr(KT + 4 * (2 * je + jd), 4), vr(PK + 8 + 4 * je, 4), vr(PK + 4 * jd, 4)))
            RB = XBASE + 16384
            a("s_lshl_b32 s6, s%d, 12" % WAVE); a("s_add_u32 s6, s6, %d" % RB); a("v_lshl_add_u32 v0, v%d, 4, s6" % LANE)
            a("v_bfe_u32 v1, v%d, 2, 2" % LANE); a("v_lshrrev_b32 v2, 4, v%d" % LANE)
            a("s_and_b32 s6, s%d, 2" % WAVE); a("s_lshl_b32 s6, s6, 1"); a("v_add_u32 v1, s6, v1"); a("v_lshl_add_u32 v2, v1, 2, v2")
            a("v_cmp_eq_u32 vcc, 7, v1"); a("v_mov_b32 v3, 28"); a("v_cndmask_b32 v2, v2, v3, vcc")
            for tau in range(4): a("ds_write_b128 v0, %s offset:%d" % (vr(KT + 4 * tau, 4), tau * 1024))
            a("v_lshrrev_b32 v1, 4, v2"); a("v_lshlrev_b32 v1, 11, v1"); a("v_bfe_u32 v3, v2, 2, 2"); a("v_lshl_add_u32 v1, v3, 8, v1")
            a("v_and_b32 v3, 3, v2"); a("v_lshl_add_u32 v1, v3, 2, v1"); a("v_and_b32 v3, 3, v%d" % LANE); a("v_lshl_add_u32 v1, v3, 4, v1")
            a("s_lshr_b32 s6, s%d, 2" % WAVE); a("s_lshl_b32 s6, s6, 12"); a("s_and_b32 s7, s%d, 1" % WAVE); a("s_lshl_b32 s7, s7, 6")
            a("s_add_u32 s6, s6, s7"); a("s_add_u32 s6, s6, %d" % RB); a("v_add_u32 v1, s6, v1")
            Lok = a.newlabel("zok"); Lz = a.newlabel("zp")
            a("s_cmp_lg_u32 s%d, 7" % WAVE); a("s_cbranch_scc1 %s" % Lok)
            a("s_mov_b32 s6, 0"); a("v_mov_b32 v4, 32")
            a.label(Lz)
            a("v_readfirstlane_b32 s7, v5"); a("s_cmp_ge_u32 s7, 16"); a("s_cbranch_scc1 %s" % Lok)
            a("s_sleep 8")
            a("buffer_load_dword v5, v4, s[%d:%d], 0 offen sc1" % (SDBG, SDBG + 3))
            a("s_add_u32 s6, s6, 1"); a("s_waitcnt vmcnt(0)"); a("s_cmp_lt_u32 s6, 0x%x" % POLL_CAP); a("s_cbranch_scc1 %s" % Lz)
            a.label(Lok)
            a("s_waitcnt lgkmcnt(0)"); a("s_barrier")
            R = F1
            for rg in range(4):
                for gp in range(4):
                    a("ds_read_b32 v%d, v1 offset:%d" % (R + rg * 4 + gp, rg * 8192 + (gp >> 1) * 1024 + (gp & 1) * 128))
            a("s_lshl_b32 s6, s%d, 3" % S_HP); a("s_add_u32 s6, s6, s%d" % WAVE); a("s_lshl_b32 s6, s6, 10")
            a("v_lshlrev_b32 v3, 2, v%d" % LANE)
            a("s_waitcnt lgkmcnt(0)")
            for k in (0, 2):
                a("v_pk_add_f32 %s, %s, %s" % (vr(R + k, 2), vr(R + k, 2), vr(R + 4 + k, 2))); a("v_pk_add_f32 %s, %s, %s" % (vr(R + 8 + k, 2), vr(R + 8 + k, 2), vr(R + 12 + k, 2)))
            for k in (0, 2): a("v_pk_add_f32 %s, %s, %s" % (vr(R + k, 2), vr(R + k, 2), vr(R + 8 + k, 2)))
            for k in range(4 if "noat" not in self.opts else 0):
                a.vmop("buffer_atomic_add_f32 v%d, v3, s[%d:%d], s6 offen offset:%d" % (R + k, SKV, SKV + 3, k * 256), "S")
            self.stamp(3)
            a.vmwait_all(); a("s_barrier")
            L = a.newlabel("arr")
            a("s_cmp_lg_u32 s%d, 7" % WAVE); a("s_cbranch_scc1 %s" % L)
            if "one" not in self.opts:
                a("s_lshl_b32 s6, s%d, 8" % S_HP); a("s_add_u32 s6, s6, 65536")
                self.atomic_ret(6, 1, 2, 7, SKV)
                a("s_cmp_lg_u32 s7, 15"); a("s_cbranch_scc1 %s" % L)
            a("s_mov_b32 s6, %d" % (65536 + 24 * 256))
            self.atomic_ret(6, 1, 2, 7, SKV)
            a("s_cmp_lg_u32 s7, %d" % (23 if "one" not in self.opts else 143)); a("s_cbranch_scc1 %s" % L)
            a("v_lshlrev_b32 v1, 7, v%d" % LANE); a("v_mov_b32 v2, 1")
            for k in range(4):
                a("s_mov_b32 s6, %d" % (224 * 128 + k * 8192))
                if k == 3: a("s_mov_b32 s10, -1"); a("s_mov_b32 s11, 0xffff"); a("s_mov_b64 exec, s[10:11]")
                a("buffer_atomic_add v2, v1, s[%d:%d], s6 offen sc1" % (SFL, SFL + 3))
            a("s_mov_b64 exec, -1")
            a.label(L)

    def wo_dma(self, k):
        a = self.a
        a("s_lshl_b32 s6, s%d, 10" % WAVE); a("s_add_u32 m0, s6, %d" % (k * 8192)); a("s_lshl_b32 s6, s9, 7"); a("s_add_u32 s6, s6, %d" % (k * 64 * 896))
        a.vmop("buffer_load_dwordx4 v14, s[%d:%d], s6 offen lds" % (SWO, SWO + 3), "WO")

    def a2_pre(self):
        a = self.a
        S_R0, S_WN = 8, 9
        a("s_sub_u32 s10, s%d, 28" % SLOT)
        a("s_cmp_ge_u32 s10, 16"); a("s_cselect_b32 s6, 2, 0"); a("s_sub_u32 s10, s10, s6")
        a("s_mul_i32 s6, s10, 21846"); a("s_lshr_b32 s6, s6, 16")
        a("s_mul_i32 s7, s6, 3"); a("s_sub_u32 s7, s10, s7")
        a("s_and_b32 s%d, s%d, 1" % (S_R0, XCD)); a("s_lshl_b32 s%d, s%d, 2" % (S_R0, S_R0)); a("s_add_u32 s%d, s7, s%d" % (S_WN, S_R0))
        a("s_sub_u32 s7, s10, 24"); a("s_add_u32 s7, s7, s%d" % S_R0)
        a("s_cmp_ge_u32 s10, 24"); a("s_cselect_b32 s%d, 3, s%d" % (S_WN, S_WN)); a("s_cselect_b32 s6, s7, s6")
        a("s_lshr_b32 s7, s%d, 1" % XCD); a("s_lshl_b32 s7, s7, 3"); a("s_add_u32 s%d, s6, s7" % S_R0)
        self.srd(SWO, P_WO, 401408)
        a("v_lshrrev_b32 v0, 3, v%d" % LANE); a("v_bfe_u32 v14, v%d, 1, 2" % LANE); a("v_lshrrev_b32 v13, 2, v0"); a("v_xor_b32 v14, v14, v13")
        a("s_and_b32 s6, s%d, 1" % WAVE); a("s_lshl_b32 s6, s6, 1"); a("v_xor_b32 v14, s6, v14")
        a("v_and_b32 v13, 1, v%d" % LANE); a("v_lshl_or_b32 v14, v14, 1, v13")
        a("s_lshl_b32 s6, s%d, 3" % WAVE); a("v_add_u32 v0, s6, v0"); a("v_mul_u32_u24 v0, 896, v0")
        a("v_lshl_add_u32 v14, v14, 4, v0")
        for k in range(6): self.wo_dma(k)

    def a2(self):
        a = self.a
        PQ, WR, KVF, ACC, TA = 16, 48, 80, 112, 8
        S_R0, S_WN = 8, 9
        KVL = 57344
        Lend = "A_end"
        self.stamp(4)
        a("s_sub_u32 s10, s%d, 28" % SLOT)
        a("s_and_b32 s6, s10, 30"); a("s_cmp_eq_u32 s6, 14"); a("s_cbranch_scc1 %s" % Lend)
        if "noa2" in self.opts: a("s_branch %s" % Lend)
        self.srd(SOUT, P_OUT, 3670016)
        a("v_and_b32 v1, 15, v%d" % LANE); a("v_lshrrev_b32 v2, 4, v%d" % LANE)
        self.wo_dma(6)
        a("v_bfe_u32 v3, v%d, 2, 2" % LANE); a("v_and_b32 v6, 3, v%d" % LANE)
        a("v_lshl_add_u32 v0, v3, 2, v2"); a("v_lshlrev_b32 v0, 7, v0"); a("v_lshl_add_u32 v0, v3, 5, v0"); a("v_lshl_add_u32 v0, v6, 3, v0")
        a("s_lshr_b32 s6, s%d, 2" % WAVE); a("s_mul_i32 s6, s6, 28672"); a("v_add_u32 v%d, s6, v0" % TA)
        for tl in range(1, 4): a("v_xor_b32 v%d, %d, v%d" % (TA + tl, 32 * tl, TA))
        a("v_lshlrev_b32 v15, 4, v%d" % LANE)
        L = a.newlabel("pw")
        a("s_cmp_lg_u32 s%d, 0" % WAVE); a("s_cbranch_scc1 %s" % L)
        self.poll2(3, 4)
        a.label(L)
        a.vmwait("WO"); a("s_barrier")
        a("s_and_b32 s6, s%d, 3" % WAVE); a("s_lshl_b32 s7, s%d, 2" % S_R0); a("s_add_u32 s6, s6, s7"); a("s_mul_i32 s6, s6, 14336")
        a("s_lshr_b32 s7, s%d, 2" % WAVE); a("s_mul_i32 s7, s7, 7168"); a("s_add_u32 s6, s6, s7"); a("s_add_u32 s7, s6, 3584")
        g0 = [0, 3, 7, 10]
        for hl in range(8):
            a.vmop("buffer_load_dwordx4 %s, v15, s[%d:%d], s%d offen offset:%d %s" % (vr(PQ + hl * 4, 4), SPQ, SPQ + 3, 6 + (hl >> 2), 256 * g0[hl & 3], self.HL), "PQ")
        def wo_read(dst, tile, ph):
            a("ds_read_b64_tr_b16 %s, v%d offset:%d" % (vr(dst, 2), TA + tile, 2048 * ph))
        for ks in range(2):
            for tile in range(4):
                for h2 in range(2): wo_read(WR + (ks * 4 + tile) * 4 + 2 * h2, tile, 2 * ks + h2)
        a("s_lshl_b32 s12, s%d, 13" % WAVE)
        a("s_lshl_b32 s6, s%d, 12" % WAVE); a("s_add_u32 s6, s6, %d" % KVL)
        a("s_cmp_eq_u32 s%d, 6" % WAVE); a("s_cselect_b32 s6, 0, s6"); a("s_cmp_eq_u32 s%d, 7" % WAVE); a("s_cselect_b32 s6, 28672, s6")
        a("v_add_u32 v5, s6, v15")
        a("s_lshr_b32 s7, s%d, 2" % WAVE); a("s_cmp_eq_u32 s7, 1")
        a("s_mov_b32 s6, %d" % KVL); a("s_cselect_b32 s6, %d, s6" % (KVL + 16384)); a("v_add_u32 v3, s6, v15")
        a("s_cselect_b32 s6, 0, %d" % (KVL + 8192)); a("v_add_u32 v4, s6, v15")
        a("s_mov_b32 s6, 28672"); a("s_cselect_b32 s6, s6, %d" % (KVL + 12288)); a("v_add_u32 v6, s6, v15")
        a("s_mov_b32 s10, 0"); a("s_mov_b32 s11, 0xffff0000"); a("s_mov_b32 s13, 0x%x" % EPS)
        a.vmwait("PQ")
        a("s_mov_b64 exec, s[10:11]")
        for hl in range(0, 8, 2): a("v_mov_b32 v%d, 0" % (PQ + hl * 4 + 2)); a("v_mov_b32 v%d, 0" % (PQ + hl * 4 + 3))
        a("s_mov_b64 exec, 0xffff")
        for hl in range(1, 8, 2): a("v_mov_b32 v%d, 0" % (PQ + hl * 4)); a("v_mov_b32 v%d, 0" % (PQ + hl * 4 + 1))
        a("s_mov_b64 exec, -1")
        a("s_waitcnt lgkmcnt(0)")
        self.stamp(5)
        L = a.newlabel("aw")
        a("s_cmp_lg_u32 s%d, 0" % WAVE); a("s_cbranch_scc1 %s" % L)
        self.poll_flag(1, 2, S_F0, 0)
        a.label(L)
        a("s_barrier")
        self.stamp(6)
        a("s_add_u32 s6, s12, 4096")
        for k in range(8):
            a.vmop("buffer_load_dwordx4 %s, v15, s[%d:%d], s%d offen offset:%d %s" % (vr(KVF + 4 * k, 4), SKV, SKV + 3, 12 if k < 4 else 6, 1024 * (k & 3), self.HL), ("KV", k >> 1))
        for fr in range(4):
            a.vmwait(("KV", fr))
            for k in range(4): a("v_cvt_pk_bf16_f32 v%d, v%d, v%d" % (KVF + 8 * fr + k, KVF + 8 * fr + 2 * k, KVF + 8 * fr + 2 * k + 1))
            a("ds_write_b128 v5, %s offset:%d" % (vr(KVF + 8 * fr, 4), fr * 1024))
        if "a2prof" in self.opts: self.stamp(1)
        a("s_waitcnt lgkmcnt(0)"); a("s_barrier")
        if "a2prof" in self.opts: self.stamp(2)
        KB = lambda h: KVF + 8 * (h & 1)
        NN = lambda h: KVF + 16 + 8 * (h & 1)
        Oreg = lambda k: PQ + k
        LEFT = 2
        def kv_read(h):
            ad, off = [(3, 0), (3, 0), (3, 0), (3, 0), (4, 0), (4, 0), (6, 0), (6, 0)][h]
            off = (h * 2048) if h < 4 else (h & 1) * 2048
            return ["ds_read_b128 %s, v%d offset:%d" % (vr(KB(h) + 4 * j, 4), ad, off + 1024 * j) for j in range(2)]
        def m2(h):
            return ["v_mfma_f32_16x16x32_bf16 %s, %s, %s, 0" % (vr(NN(h) + 4 * j, 4), vr(KB(h) + 4 * j, 4), vr(PQ + h * 4, 4)) for j in (1, 0)]
        def valu2(h):
            n = NN(h); out = []
            out.append("v_add_f32 v0, s13, v%d" % (n + 7)); out.append("v_rcp_f32 v0, v0")
            for t in range(0, 8, 2): out.append("v_pk_mul_f32 %s, v[0:1], %s op_sel:[0,0] op_sel_hi:[0,1]" % (vr(n + t, 2), vr(n + t, 2)))
            f0 = 7 * h
            if h & 1 == 0:
                for k in range(3): out.append("v_cvt_pk_bf16_f32 v%d, v%d, v%d" % (Oreg(f0 // 2 + k), n + 2 * k, n + 2 * k + 1))
                out.append("v_mov_b32 v%d, v%d" % (LEFT, n + 6))
            else:
                out.append("v_cvt_pk_bf16_f32 v%d, v%d, v%d" % (Oreg(f0 // 2), LEFT, n))
                for k in range(3): out.append("v_cvt_pk_bf16_f32 v%d, v%d, v%d" % (Oreg(f0 // 2 + 1 + k), n + 1 + 2 * k, n + 2 + 2 * k))
            return out
        def w_read_l(ks):
            out = []
            for tile in range(4):
                for h2 in range(2):
                    ph = 2 * ks + h2; dst = WR + ((ks & 1) * 4 + tile) * 4 + 2 * h2
                    out.append("ds_read_b64_tr_b16 %s, v%d offset:%d" % (vr(dst, 2), TA + tile, 2048 * ph))
            return out
        def m3(ks):
            return ["v_mfma_f32_16x16x32_bf16 %s, %s, %s, %s" % (vr(ACC + 4 * tile, 4), vr(WR + ((ks & 1) * 4 + tile) * 4, 4), vr(Oreg(4 * ks), 4), "0" if ks == 0 else vr(ACC + 4 * tile, 4)) for tile in range(4)]
        for x in kv_read(0) + kv_read(1): a(x)
        a("s_waitcnt lgkmcnt(2)")
        for x in m2(0): a(x)
        for h in range(8):
            a("s_waitcnt lgkmcnt(%d)" % (8 if (h - 3 >= 0 and h - 1 < 7) else 0))
            if h + 1 < 8:
                for x in m2(h + 1): a(x)
            if h + 2 < 8:
                for x in kv_read(h + 2): a(x)
            ks = h - 2
            V = valu2(h)
            if ks >= 0:
                M = m3(ks)
                for i, x in enumerate(M):
                    a(x)
                    for y in V[3 * i:3 * i + 3] if i < 3 else V[9:]: a(y)
                if ks + 2 < 7:
                    for x in w_read_l(ks + 2): a(x)
            else:
                for y in V: a(y)
        a("s_waitcnt lgkmcnt(0)")
        for x in m3(6): a(x)
        if "a2prof" in self.opts: self.stamp(4)
        a("s_lshl_b32 s6, s%d, 11" % WAVE); a("v_add_u32 v5, s6, v15")
        a("s_xor_b32 s6, s%d, 4" % WAVE); a("s_lshl_b32 s6, s6, 11"); a("v_add_u32 v6, s6, v15")
        a("v_lshrrev_b32 v1, 4, v%d" % LANE); a("v_and_b32 v2, 1, v1"); a("v_lshrrev_b32 v1, 1, v1"); a("v_lshl_or_b32 v1, v2, 1, v1")
        a("v_and_b32 v2, 15, v%d" % LANE); a("v_mul_u32_u24 v2, 1792, v2"); a("v_lshl_add_u32 v3, v1, 4, v2")
        a("s_and_b32 s6, s%d, 3" % WAVE); a("s_lshl_b32 s7, s%d, 2" % S_R0); a("s_add_u32 s6, s6, s7"); a("s_mul_i32 s6, s6, %d" % (16 * 1792))
        a("s_lshl_b32 s7, s%d, 7" % S_WN); a("s_add_u32 s6, s6, s7"); a("s_lshr_b32 s10, s%d, 2" % WAVE); a("s_lshl_b32 s7, s10, 6"); a("s_add_u32 s6, s6, s7")
        a("s_barrier")
        Lx1 = a.newlabel("ax1"); Lx2 = a.newlabel("ax2")
        a("s_cmp_eq_u32 s10, 0"); a("s_cbranch_scc1 %s" % Lx1)
        for k in range(2): a("ds_write_b128 v5, %s offset:%d" % (vr(ACC + 4 * k, 4), 1024 * k))
        a("s_nop 3")
        for k in range(8): a("v_mov_b32 v%d, v%d" % (ACC + k, ACC + 8 + k))
        a("s_branch %s" % Lx2)
        a.label(Lx1)
        for k in range(2): a("ds_write_b128 v5, %s offset:%d" % (vr(ACC + 8 + 4 * k, 4), 1024 * k))
        a.label(Lx2)
        a("s_waitcnt lgkmcnt(0)"); a("s_barrier")
        self.stamp(7)
        R = KVF
        for k in range(2): a("ds_read_b128 %s, v6 offset:%d" % (vr(R + 4 * k, 4), 1024 * k))
        a("s_waitcnt lgkmcnt(0)")
        for k in range(0, 8, 2): a("v_pk_add_f32 %s, %s, %s" % (vr(R + k, 2), vr(R + k, 2), vr(ACC + k, 2)))
        for k in range(4): a("v_cvt_pk_bf16_f32 v%d, v%d, v%d" % (R + 8 + k, R + 2 * k, R + 2 * k + 1))
        a("v_permlane16_swap_b32 v%d, v%d" % (R + 8, R + 10)); a("v_permlane16_swap_b32 v%d, v%d" % (R + 9, R + 11))
        thr = [x for x in self.opts if x.startswith("thr")]
        if thr:
            k, T = thr[0][3:].split("_")
            a("s_sub_u32 s7, s%d, s%d" % (TS0 + 2 * int(k), TS0)); a("s_cmp_gt_u32 s7, %d" % int(T)); a("s_cbranch_scc1 %s" % Lend)
        a.vmop("buffer_store_dwordx4 %s, v3, s[%d:%d], s6 offen" % (vr(R + 8, 4), SOUT, SOUT + 3), "S")
        self.stamp(8)
        a.label(Lend)
        self.dump_stamps()
        a("s_endpgm")

    def build(self):
        a = self.a
        a.raw(open("concat_heads__linear_attn_block__ssm_conv_s4d__prompt.s.ref").read().split("; Override launch")[0].rstrip())
        a.raw("; @launch grid=(%d,1,1) block=(512,1,1) lds=%d" % (NWG, LDS))
        a.raw('.amdgcn_target "amdgcn-amd-amdhsa--gfx950"\n.text\n.globl %s\n.p2align 8\n.type %s,@function\n%s:' % (KNAME, KNAME, KNAME))
        a("s_cmp_ge_u32 s2, %d" % NWG); a("s_cbranch_scc1 K_exit")
        a("s_load_dwordx16 s[16:31], s[0:1], 0"); a("s_load_dwordx8 s[32:39], s[0:1], 64"); a("s_load_dwordx2 s[40:41], s[0:1], 96")
        a("s_and_b32 s%d, s2, 7" % XCD); a("s_lshr_b32 s%d, s2, 3" % SLOT)
        a("v_lshrrev_b32 v1, 6, v0"); a("v_and_b32 v7, 63, v0")
        a("v_readfirstlane_b32 s%d, v1" % WAVE)
        a("s_nop 3")
        if "nocpf" not in self.opts:
            Lc = a.newlabel("cpf")
            a("s_cmp_ge_u32 s%d, 2" % SLOT); a("s_cbranch_scc1 %s" % Lc)
            a("s_getpc_b64 s[6:7]")
            a("s_and_b32 s6, s6, 0xffffff00")
            a("s_lshl_b32 s8, s%d, 12" % WAVE)
            a("v_and_b32 v1, 31, v7"); a("v_lshlrev_b32 v1, 7, v1"); a("v_add_u32 v1, s8, v1")
            a("v_min_u32 v1, CODE_END - %s - 4, v1" % KNAME)
            a("global_load_dword v126, v1, s[6:7]")
            a.label(Lc)
        Bl = "K_exit" if "onlya" in self.opts else "B_entry"
        a("s_cmp_lt_u32 s%d, 28" % SLOT); a("s_cbranch_scc1 %s" % Bl)
        if "onlyb" in self.opts: a("s_branch K_exit")
        a("s_setprio 2")
        a("s_cmp_ge_u32 s%d, 44" % SLOT); a("s_cbranch_scc1 Q_entry")
        self.gemm(False)
        a("s_branch A2_entry")
        a.label("Q_entry"); a.vm = []
        self.gemm(True)
        a.label("A2_entry"); a.fence(8); a.vm = []
        self.a2()
        a.label("B_entry"); a.vm = []
        if "onlya" not in self.opts:
            from gen_b import gen_b
            gen_b(self)
        a.label("K_exit")
        a("s_endpgm")
        a.label("CODE_END")
        a.raw('''.section .rodata,"a"
.p2align 6
.amdhsa_kernel %s
  .amdhsa_next_free_vgpr 128
  .amdhsa_next_free_sgpr 102
  .amdhsa_accum_offset 128
  .amdhsa_group_segment_fixed_size 0
  .amdhsa_kernarg_size 104
  .amdhsa_user_sgpr_count 2
  .amdhsa_user_sgpr_kernarg_segment_ptr 1
  .amdhsa_system_sgpr_workgroup_id_x 1
.end_amdhsa_kernel''' % KNAME)
        return a.text()

if __name__ == "__main__":
    stamps = "--stamps" in sys.argv
    out = [x for x in sys.argv[1:] if not x.startswith("--")][0]
    open(out, "w").write(Gen(stamps, [x[2:] for x in sys.argv[1:] if x.startswith("--")]).build())
```

```python
import sys
from asmlib import *

KNAME = "concat_heads__linear_attn_block__ssm_conv_s4d__prompt_kernel"
NWG = 464
LDS = 81920
WS_PQ, WS_UT, WS_KV, WS_FL, WS_TS, WS_KX = 0, 0x200000, 0x400000, 0x480000, 0x500000, 0x600000
LOG2E = 0x3fb8aa3b
EPS = 0x358637bd
POLL_CAP = 1 << 15

XCD, SLOT, WAVE = 3, 4, 5
P_X, P_W, P_WO, P_U, P_LA, P_AI, P_CR, P_CI, P_DT, P_DS, P_OUT, P_DBG, P_WS = 16, 18, 20, 22, 24, 26, 28, 30, 32, 34, 36, 38, 40
S_F0, S_F1, S_FA = 42, 43, 100
SX, SW, SPQ, SKV, SOUT, SDBG, SWO, SUT, SU, SFL = 44, 48, 52, 56, 60, 64, 68, 52, 44, 72
TS0 = 80
LANE = 7

class Gen:
    def __init__(self, stamps=False, opts=()):
        self.a = Asm()
        self.opts = set(opts)
        self.stamps = stamps
        self.SLEEP = 2
        for o in self.opts:
            if o.startswith('sleep'): self.SLEEP = int(o[5:])
        self.HL = "nt" if "nt" in self.opts else ("" if "plain" in self.opts else "sc1")

    def srd(self, d, p, nbytes, off=0):
        a = self.a
        if off:
            a("s_add_u32 s%d, s%d, 0x%x" % (d, p, off)); a("s_addc_u32 s%d, s%d, 0" % (d + 1, p + 1))
        else:
            a("s_mov_b32 s%d, s%d" % (d, p)); a("s_mov_b32 s%d, s%d" % (d + 1, p + 1))
        a("s_mov_b32 s%d, 0x%x" % (d + 2, nbytes)); a("s_mov_b32 s%d, 0x00020000" % (d + 3))

    def stamp(self, k):
        if not self.stamps: return
        self.a("s_memrealtime s[%d:%d]" % (TS0 + 2 * k, TS0 + 2 * k + 1))
        self.a("s_waitcnt lgkmcnt(0)")

    def dump_stamps(self, role='A'):
        if not self.stamps: return
        a = self.a
        a.vmwait_all()
        self.stamp(9)
        amp = [x for x in self.opts if x.startswith("amp")]
        if amp:
            r, k, wg = amp[0][3:].split("_")
            if r == role:
                L = a.newlabel("amp"); Lw = a.newlabel("ampw")
                a("s_cmp_lg_u32 s2, %d" % int(wg)); a("s_cbranch_scc1 %s" % L)
                a("s_sub_u32 s6, s%d, s%d" % (TS0 + 2 * int(k), TS0)); a("s_mul_i32 s6, s6, 3"); a("s_add_u32 s6, s6, s%d" % (TS0 + 18))
                a.label(Lw)
                a("s_sleep 2"); a("s_memrealtime s[10:11]"); a("s_waitcnt lgkmcnt(0)")
                a("s_sub_u32 s7, s10, s6"); a("s_cmp_lt_i32 s7, 0"); a("s_cbranch_scc1 %s" % Lw)
                a.label(L)
            return
        if "hstamps" in self.opts:
            L = a.newlabel("hs")
            a("s_cmp_lg_u32 s%d, 0" % WAVE); a("s_cbranch_scc1 %s" % L)
            wg, pairs, base = (288, [(1, 2), (3, 4), (5, 6), (7, 8), (9, 9)], [36, 40, 44, 48, 52]) if role == "A" else (32, [(1, 2), (3, 4), (5, 9)], [56, 60, 12])
            a("s_cmp_lg_u32 s2, %d" % wg); a("s_cbranch_scc1 %s" % L)
            a("s_mov_b64 exec, 1")
            for (k1, k2), off in zip(pairs, base):
                a("s_sub_u32 s6, s%d, s%d" % (TS0 + 2 * k1, TS0)); a("s_sub_u32 s7, s%d, s%d" % (TS0 + 2 * k2, TS0))
                a("s_mul_i32 s7, s7, 10000"); a("s_add_u32 s6, s6, s7"); a("v_mov_b32 v1, s6"); a("v_mov_b32 v0, %d" % off)
                a("buffer_store_dword v1, v0, s[%d:%d], 0 offen" % (SDBG, SDBG + 3))
            a("s_mov_b64 exec, -1")
            a.label(L)
            return
        self.srd(76, P_WS, 0x100000, WS_TS)
        a("s_lshl_b32 s6, s2, 3"); a("s_add_u32 s6, s6, s%d" % WAVE); a("s_lshl_b32 s6, s6, 6")
        a("v_mov_b32 v0, s6")
        a("s_mov_b64 exec, 1")
        for k in range(10):
            a("v_mov_b32 v1, s%d" % (TS0 + 2 * k))
            a("buffer_store_dword v1, v0, s[76:79], 0 offen offset:%d" % (4 * k))
        a("s_mov_b64 exec, -1")

    def atomic_ret(self, s_off, va, vb, s_dst, srd=None):
        a = self.a
        SDBG = srd if srd is not None else globals()["SDBG"]
        a("v_mov_b32 v%d, s%d" % (va, s_off)); a("v_mov_b32 v%d, 1" % vb)
        a("s_mov_b64 exec, 1")
        a("buffer_atomic_add v%d, v%d, s[%d:%d], 0 offen sc0 sc1" % (vb, va, SDBG, SDBG + 3))
        a("s_mov_b64 exec, -1")
        a("s_waitcnt vmcnt(0)")
        a("v_readfirstlane_b32 s%d, v%d" % (s_dst, vb))

    def poll_flag(self, va, vv, s_old, off=0):
        a = self.a
        L = a.newlabel("poll"); D = a.newlabel("polld")
        a("s_mov_b32 s6, 0"); a("v_mov_b32 v%d, s%d" % (va, S_FA))
        a("s_mov_b64 exec, 1")
        a.label(L)
        a("buffer_load_dword v%d, v%d, s[%d:%d], 0 offen offset:%d sc1" % (vv, va, SFL, SFL + 3, off))
        a("s_add_u32 s6, s6, 1")
        a("s_waitcnt vmcnt(0)")
        a("v_cmp_ne_u32 vcc, s%d, v%d" % (s_old, vv))
        a("s_cbranch_vccnz %s" % D)
        a("s_sleep %d" % self.SLEEP)
        a("s_cmp_lt_u32 s6, 0x%x" % POLL_CAP)
        a("s_cbranch_scc1 %s" % L)
        a.label(D)
        a("s_mov_b64 exec, -1")

    def poll2(self, va, vv):
        a = self.a
        L = a.newlabel("poll"); D = a.newlabel("polld")
        a("s_mov_b32 s6, 0"); a("v_mov_b32 v%d, s%d" % (va, S_FA))
        a("s_mov_b64 exec, 1")
        a.label(L)
        a("buffer_load_dwordx2 %s, v%d, s[%d:%d], 0 offen sc1" % (vr(vv, 2), va, SFL, SFL + 3))
        a("s_add_u32 s6, s6, 1")
        a("s_waitcnt vmcnt(0)")
        a("v_cmp_ne_u64 vcc, s[%d:%d], %s" % (S_F0, S_F1, vr(vv, 2)))
        a("s_cbranch_vccnz %s" % D)
        a("s_sleep %d" % self.SLEEP)
        a("s_cmp_lt_u32 s6, 0x%x" % POLL_CAP)
        a("s_cbranch_scc1 %s" % L)
        a.label(D)
        a("s_mov_b64 exec, -1")

    def phi(self, base, n, tmp):
        a = self.a
        for k in range(0, n, 2): a("v_pk_mul_f32 %s, %s, s[14:15]" % (vr(tmp + k, 2), vr(base + k, 2)))
        for k in range(n):
            a("v_exp_f32_e64 v%d, v%d clamp" % (tmp + k, tmp + k))
            a("v_max_f32 v%d, s13, v%d" % (base + k, base + k))
        for k in range(0, n, 2): a("v_pk_add_f32 %s, %s, %s" % (vr(base + k, 2), vr(base + k, 2), vr(tmp + k, 2)))

    def gemm(self, isq):
        a = self.a
        XA, XW, XR0, XR1, FLV, DA, FA = 1, 2, 3, 4, 12, 6, 8
        FS = 32 if isq else 24
        F0, F1 = 16, 16 + FS
        ACC = 16 + 2 * FS
        XS = 96
        U = 7 if isq else 14
        RING = 4; XBASE = 32768; XRING = 3
        S_WB, S_T, S_RB, S_HP, S_M = 9, 10, 11, 12, 8
        S_X = 76
        Xs = lambda c, q: XS + ((c & 3) * 2 + q) * 4
        a("s_and_b32 s14, s%d, 1" % XCD)
        if isq:
            a("s_sub_u32 s10, s%d, 44" % SLOT)
            a("s_mul_i32 s6, s10, 21846"); a("s_lshr_b32 s6, s6, 16")
            a("s_mul_i32 s7, s6, 3"); a("s_sub_u32 s7, s10, s7"); a("s_lshl_b32 s15, s14, 2"); a("s_add_u32 s%d, s7, s15" % S_HP)
            a("s_lshl_b32 s15, s14, 1"); a("s_add_u32 s15, s15, s7")
            a("s_cmp_ge_u32 s10, 12"); a("s_cselect_b32 s%d, 3, s%d" % (S_HP, S_HP)); a("s_cselect_b32 s6, s15, s6")
            a("s_lshl_b32 s%d, s%d, 7" % (S_WB, S_HP))
        else:
            a("s_sub_u32 s7, s%d, 28" % SLOT); a("s_lshr_b32 s6, s7, 2"); a("s_and_b32 s7, s7, 3"); a("s_lshl_b32 s15, s14, 2"); a("s_add_u32 s%d, s7, s15" % S_HP)
            a("s_mul_i32 s%d, s%d, 112" % (S_WB, S_HP)); a("s_add_u32 s%d, s%d, 896" % (S_WB, S_WB))
        a("s_lshr_b32 s%d, s%d, 1" % (S_RB, XCD)); a("s_lshl_b32 s%d, s%d, 2" % (S_RB, S_RB)); a("s_add_u32 s%d, s%d, s6" % (S_RB, S_RB))
        a("s_lshl_b32 s6, s%d, 3" % S_RB); a("s_add_u32 s6, s6, s%d" % WAVE); a("s_mul_i32 s%d, s6, 14336" % S_X)
        a("s_add_u32 s%d, s%d, 7168" % (S_X + 1, S_X))
        a("s_lshl_b32 s%d, s2, 7" % S_FA)
        a("s_and_b32 s6, s%d, 3" % S_RB); a("s_lshl_b32 s6, s6, 1"); a("s_and_b32 s7, s%d, 3" % S_HP); a("s_add_u32 s6, s6, s7")
        if isq: a("s_add_u32 s6, s6, 4")
        a("s_cmp_ge_u32 s6, 7"); a("s_cselect_b32 s7, 7, 0"); a("s_sub_u32 s6, s6, s7")
        if "norot" in self.opts: a("s_mov_b32 s6, 0")
        a("s_lshl_b32 s69, s6, 7"); a("s_mul_i32 s68, s6, %d" % (64 * 2688))
        t = F0; I, Gq = F0 + 8, F0 + 9
        a("v_and_b32 v%d, 15, v%d" % (I, LANE)); a("v_lshrrev_b32 v%d, 4, v%d" % (Gq, LANE))
        a("v_lshrrev_b32 v%d, 3, v%d" % (t, LANE)); a("v_and_b32 v%d, 7, v%d" % (t + 1, LANE))
        a("v_xor_b32 v%d, v%d, v%d" % (t + 1, t + 1, t))
        a("v_mul_u32_u24 v%d, 896, v%d" % (t + 2, t)); a("v_lshl_add_u32 v%d, v%d, 4, v%d" % (XA, t + 1, t + 2))
        a("s_lshl_b32 s78, s%d, 11" % WAVE); a("s_add_u32 s78, s78, %d" % XBASE)
        a("s_and_b32 s6, s%d, 2" % WAVE); a("s_lshl_b32 s6, s6, 1")
        a("v_or_b32 v%d, s6, v%d" % (t + 4, Gq))
        a("v_lshrrev_b32 v%d, 1, v%d" % (t + 5, I)); a("v_xor_b32 v%d, v%d, v%d" % (t + 5, t + 5, t + 4))
        a("v_and_b32 v%d, 1, v%d" % (t + 6, I)); a("v_lshl_or_b32 v%d, v%d, 1, v%d" % (t + 5, t + 5, t + 6))
        a("v_lshrrev_b32 v%d, 3, v%d" % (t + 6, t + 5))
        a("v_and_b32 v%d, 7, v%d" % (t + 5, t + 5))
        if not isq: a("v_min_u32 v%d, 6, v%d" % (t + 5, t + 5))
        a("s_lshl_b32 s6, s%d, 2" % WAVE); a("v_add_u32 v%d, s6, v%d" % (t + 7, Gq)); a("v_mul_u32_u24 v%d, 2688, v%d" % (t + 7, t + 7))
        a("v_mul_u32_u24 v%d, %d, v%d" % (t + 6, 32 * 2688 if isq else 896, t + 6))
        a("v_lshl_add_u32 v%d, v%d, 4, v%d" % (t + 7, t + 5, t + 7)); a("v_add_u32 v%d, v%d, v%d" % (DA, t + 7, t + 6))
        a("s_lshl_b32 s%d, s%d, 10" % (S_M, WAVE))
        a("v_mov_b32 v0, s%d" % S_FA)
        a("s_waitcnt lgkmcnt(0)")
        self.srd(SX, P_X, 1835008); self.srd(SW, P_W, 1204224)
        self.stamp(0)
        def dma(u):
            if "nodma" in self.opts: return
            a("s_add_u32 m0, s%d, %d" % (S_M, (u % RING) * 8192))
            a("s_add_u32 s%d, s%d, s68" % (S_T, S_WB))
            a.vmop("buffer_load_dwordx4 v%d, s[%d:%d], s%d offen lds" % (DA, SW, SW + 3, S_T), ("W", u))
            a("s_add_u32 s68, s68, %d" % ((64 if isq else 32) * 2688)); a("s_cmp_ge_u32 s68, %d" % (448 * 2688)); a("s_cselect_b32 s68, 0, s68")
        def xload(c):
            if "noxl" in self.opts: return
            for q in range(2):
                a("s_add_u32 m0, s78, %d" % ((c % XRING) * 16384 + q * 1024))
                a("s_add_u32 s%d, s%d, s69" % (S_T, S_X + q))
                a.vmop("buffer_load_dwordx4 v%d, s[%d:%d], s%d offen lds" % (XA, SX, SX + 3, S_T), ("X", c))
            a("s_add_u32 s69, s69, 128"); a("s_cmp_ge_u32 s69, 896"); a("s_cselect_b32 s69, 0, s69")
        self.srd(SKV, P_WS, 65536 + 8192, WS_KV)
        xload(0); dma(0); a("s_barrier")
        if isq:
            xload(1); dma(1); a("s_barrier"); xload(2); dma(2); dma(3)
        else:
            dma(1); xload(1); a("s_barrier"); dma(2); dma(3); xload(2)
        if "pfa" in self.opts:
            Lpf = a.newlabel("pf"); Lpx = a.newlabel("pfx")
            a("s_sub_u32 s6, s%d, 28" % SLOT)
            a("s_bitcmp1_b32 s%d, 0" % WAVE); a("s_cbranch_scc1 %s" % Lpx)
            a("s_lshl_b32 s6, s6, 2"); a("s_lshr_b32 s7, s%d, 1" % WAVE); a("s_add_u32 s6, s6, s7")
            a("s_mul_i32 s6, s6, %d" % (56 * 128)); a("s_add_u32 s6, s6, %d" % (128 * 2688))
            a("v_min_u32 v5, 55, v%d" % LANE); a("v_lshlrev_b32 v5, 7, v5")
            a("buffer_load_dword v127, v5, s[%d:%d], s6 offen" % (SW, SW + 3))
            a("s_branch %s" % Lpf)
            a.label(Lpx)
            a("s_cmp_lg_u32 s%d, 1" % WAVE); a("s_cbranch_scc1 %s" % Lpf)
            a("s_cmp_ge_u32 s6, 16"); a("s_cbranch_scc1 %s" % Lpf)
            a("s_lshl_b32 s7, s%d, 4" % XCD); a("s_add_u32 s6, s6, s7"); a("s_mul_i32 s6, s6, 14336")
            a("v_lshrrev_b32 v5, 2, v%d" % LANE); a("v_mul_u32_u24 v5, 896, v5"); a("v_and_b32 v127, 3, v%d" % LANE); a("v_lshl_add_u32 v5, v127, 7, v5")
            a("buffer_load_dword v127, v5, s[%d:%d], s6 offen offset:384" % (SX, SX + 3))
            a.label(Lpf)
        self.srd(SFL, P_WS, 131072, WS_FL)
        a.vmop("buffer_load_dwordx2 %s, v0, s[%d:%d], 0 offen sc1" % (vr(FLV, 2), SFL, SFL + 3), "FL")
        self.srd(SDBG, P_DBG, 256); self.srd(SPQ, P_WS, 1835008, WS_PQ)
        a("s_lshr_b32 s6, s%d, 1" % WAVE); a("s_lshl_b32 s6, s6, 12"); a("s_add_u32 s6, s6, %d" % XBASE)
        a("v_and_b32 v%d, 7, v%d" % (t, I)); a("v_xor_b32 v%d, v%d, v%d" % (t, t, Gq)); a("v_lshlrev_b32 v%d, 4, v%d" % (t, t)); a("v_lshl_add_u32 v%d, v%d, 7, v%d" % (t, I, t))
        a("v_xor_b32 v%d, 64, v%d" % (t + 1, t)); a("v_add_u32 v%d, s6, v%d" % (XR0, t)); a("v_add_u32 v%d, s6, v%d" % (XR1, t + 1))
        a("v_bfe_u32 v%d, v%d, 2, 2" % (t, LANE)); a("v_and_b32 v%d, 3, v%d" % (t + 1, LANE))
        a("v_and_b32 v%d, 1, v%d" % (t + 2, Gq)); a("v_lshl_or_b32 v%d, v%d, 2, v%d" % (t + 2, t + 2, t))
        a("v_lshl_add_u32 v%d, v%d, 3, v%d" % (t + 3, Gq, t)); a("v_lshlrev_b32 v%d, 8, v%d" % (t + 3, t + 3))
        a("s_and_b32 s7, s%d, 1" % WAVE)
        for tt in range(4):
            if isq:
                a("s_lshl_b32 s6, s7, 6"); a("s_add_u32 s6, s6, %d" % (128 * (tt >> 1) + 32 * (tt & 1))); sh = 3
            else:
                a("s_mul_i32 s6, s7, %d" % (48 if tt < 2 else 56)); a("s_add_u32 s6, s6, %d" % (32 * tt if tt < 2 else 128 + 32 * (tt - 2))); sh = 3
            a("v_lshlrev_b32 v%d, %d, v%d" % (t + 4, sh, t + 1)); a("v_add_u32 v%d, s6, v%d" % (t + 4, t + 4))
            a("v_lshrrev_b32 v%d, 5, v%d" % (t + 5, t + 4)); a("v_xor_b32 v%d, v%d, v%d" % (t + 5, t + 5, t + 2))
            a("v_and_b32 v%d, 31, v%d" % (t + 4, t + 4)); a("v_lshl_or_b32 v%d, v%d, 5, v%d" % (t + 4, t + 5, t + 4))
            a("v_add_u32 v%d, v%d, v%d" % (FA + tt, t + 4, t + 3))
        a("s_mov_b32 s14, 0x%x" % LOG2E); a("s_mov_b32 s15, 0x%x" % LOG2E); a("s_mov_b32 s13, 0x%x" % EPS)
        def xwrite(c):
            if "noxw" in self.opts: return
            for q in range(2): a("ds_write_b128 v%d, %s offset:%d" % (XW, vr(Xs(c, q), 4), (c & 1) * 16384 + q * 1024))
        def freads_l(u):
            out = []
            if "nofr" in self.opts: return out
            Fb = F1 if u & 1 else F0
            c = chunk(u)
            for rt in range(2):
                for kk in ((0, 1) if isq else (u & 1,)):
                    d = Fb + 16 + ((rt * 2 + kk) * 4 if isq else rt * 4)
                    out.append("ds_read_b128 %s, v%d offset:%d" % (vr(d, 4), XR1 if kk else XR0, (c % XRING) * 16384 + rt * 2048))
            for tt in range(4):
                for hh in range(2):
                    out.append("ds_read_b64_tr_b16 %s, v%d offset:%d" % (vr(Fb + 4 * tt + 2 * hh, 2), FA + tt, (u % RING) * 8192 + hh * 1024))
            return out
        def freads(u):
            for x in freads_l(u): a(x)
        def newchunk(u): return isq or (u & 1) == 0
        def chunk(u): return u if isq else u >> 1
        def mfmas_l(u):
            out = []
            if "nomf" in self.opts: return out
            Fb = F1 if u & 1 else F0
            for tt in range(4):
                for rt in range(2):
                    if isq:
                        acc = ACC + (rt * 2 + (tt & 1)) * 4; x = Fb + 16 + (rt * 2 + (tt >> 1)) * 4; first = (u == 0 and tt < 2)
                        out.append("v_mfma_f32_16x16x32_bf16 %s, %s, %s, %s" % (vr(acc, 4), vr(Fb + 4 * tt, 4), vr(x, 4), "0" if first else vr(acc, 4)))
                    else:
                        acc = ACC + (tt * 2 + rt) * 4; x = Fb + 16 + rt * 4; first = (u == 0)
                        out.append("v_mfma_f32_16x16x32_bf16 %s, %s, %s, %s" % (vr(acc, 4), vr(x, 4), vr(Fb + 4 * tt, 4), "0" if first else vr(acc, 4)))
            return out
        if "twice" in self.opts:
            a("s_mov_b32 s78, 0"); Ltw = a.newlabel("tw"); a.label(Ltw)
        a.vmwait(("W", 0), ("X", 0)); a("s_barrier")
        self.stamp(1)
        freads(0)
        for u in range(U):
            if u + 1 < U:
                M = mfmas_l(u); Rd = freads_l(u + 1)
                a("s_waitcnt lgkmcnt(0)")
                for x in M[:2]: a(x)
                a.vmwait(("W", u + 1), ("X", chunk(u + 1)))
                a("s_barrier")
                if u + RING < U: dma(u + RING)
                if newchunk(u + 1) and chunk(u) + XRING < 7: xload(chunk(u) + XRING)
                for k in range(2, 8):
                    for x in Rd[2 * (k - 2):2 * (k - 2) + 2]: a(x)
                    if k < len(M): a(M[k])
                if u == (4 if isq else 10):
                    a.vmwait("FL")
                    Lsn = a.newlabel("snap")
                    a("s_cmp_lg_u32 s%d, 7" % WAVE); a("s_cbranch_scc1 %s" % Lsn)
                    a("v_mov_b32 v0, 32")
                    a("buffer_load_dword v5, v0, s[%d:%d], 0 offen" % (SDBG, SDBG + 3))
                    a.label(Lsn)
            else:
                a("s_waitcnt lgkmcnt(0)")
                for x in mfmas_l(u): a(x)
                a("v_readfirstlane_b32 s%d, v%d" % (S_F0, FLV)); a("v_readfirstlane_b32 s%d, v%d" % (S_F1, FLV + 1))
                a.vmwait_all()
                if not isq:
                    a("s_barrier")
                    self.a2_pre()
        if "twice" in self.opts:
            a("s_add_u32 s78, s78, 1"); a("s_cmp_lt_u32 s78, 2"); a("s_cbranch_scc1 %s" % Ltw)
        self.stamp(2)
        T = XS
        if isq:
            self.phi(ACC, 16, T)
            a("s_lshl_b32 s6, s%d, 2" % S_RB); a("s_lshr_b32 s7, s%d, 1" % WAVE); a("s_add_u32 s6, s6, s7"); a("s_mul_i32 s6, s6, 28672")
            a("s_lshl_b32 s7, s%d, 11" % S_HP); a("s_add_u32 s6, s6, s7")
            a("s_and_b32 s7, s%d, 1" % WAVE); a("s_lshl_b32 s7, s7, 10"); a("s_add_u32 s6, s6, s7"); a("s_add_u32 s7, s6, 14336")
            a("v_lshrrev_b32 v1, 4, v%d" % LANE); a("v_and_b32 v2, 1, v1"); a("v_lshrrev_b32 v1, 1, v1"); a("v_lshl_or_b32 v1, v2, 1, v1")
            a("v_and_b32 v2, 15, v%d" % LANE); a("v_lshlrev_b32 v2, 4, v2"); a("v_lshl_add_u32 v0, v1, 8, v2")
            for rt in range(2):
                d = T + 16 + rt * 4
                for k in range(4): a("v_cvt_pk_bf16_f32 v%d, v%d, v%d" % (d + k, ACC + rt * 8 + 2 * k, ACC + rt * 8 + 2 * k + 1))
            for rt in range(2):
                d = T + 16 + rt * 4
                a("v_permlane16_swap_b32 v%d, v%d" % (d, d + 2)); a("v_permlane16_swap_b32 v%d, v%d" % (d + 1, d + 3))
                a.vmop("buffer_store_dwordx4 %s, v0, s[%d:%d], s%d offen sc1" % (vr(d, 4), SPQ, SPQ + 3, 6 + rt), "S")
            self.stamp(3)
            Lok = a.newlabel("zok"); Lz = a.newlabel("zp")
            a("s_cmp_lg_u32 s%d, 7" % WAVE); a("s_cbranch_scc1 %s" % Lok)
            a("s_mov_b32 s6, 0"); a("v_mov_b32 v4, 32")
            a.label(Lz)
            a("v_readfirstlane_b32 s7, v5"); a("s_cmp_ge_u32 s7, 16"); a("s_cbranch_scc1 %s" % Lok)
            a("s_sleep 8")
            a("buffer_load_dword v5, v4, s[%d:%d], 0 offen sc1" % (SDBG, SDBG + 3))
            a("s_add_u32 s6, s6, 1"); a("s_waitcnt vmcnt(0)"); a("s_cmp_lt_u32 s6, 0x%x" % POLL_CAP); a("s_cbranch_scc1 %s" % Lz)
            a.label(Lok)
            a.vmwait_all(); a("s_barrier")
            Lq7 = a.newlabel("q7")
            a("s_cmp_eq_u32 s%d, 7" % WAVE); a("s_cbranch_scc1 %s" % Lq7)
            self.a2_pre(); a("s_branch A2_entry")
            a.label(Lq7)
            L = a.newlabel("arrq")
            a("s_cmp_lg_u32 s%d, 7" % WAVE); a("s_cbranch_scc1 %s" % L)
            a("s_lshl_b32 s6, s%d, 8" % S_RB); a("s_add_u32 s6, s6, %d" % (65536 + 8 * 256))
            self.atomic_ret(6, 1, 2, 7, SKV)
            a("s_cmp_lg_u32 s7, 6"); a("s_cbranch_scc1 %s" % L)
            a("s_and_b32 s6, s%d, 3" % S_RB); a("s_mul_i32 s7, s6, 6")
            a("v_cmp_le_u32 vcc, 6, v%d" % LANE); a("v_cndmask_b32 v2, 0, 1, vcc")
            a("v_mul_u32_u24 v1, 6, v2"); a("v_sub_u32 v1, v%d, v1" % LANE); a("v_add_u32 v1, s7, v1")
            a("s_lshl_b32 s7, s6, 1"); a("v_add_u32 v3, s7, v%d" % LANE); a("v_and_b32 v3, 3, v3"); a("v_add_u32 v3, 24, v3")
            a("s_lshr_b32 s7, s6, 1"); a("v_mov_b32 v4, s7")
            a("v_cmp_le_u32 vcc, 12, v%d" % LANE); a("v_cndmask_b32 v1, v1, v3, vcc"); a("v_cndmask_b32 v2, v2, v4, vcc")
            a("v_cmp_le_u32 vcc, 14, v1"); a("v_cndmask_b32 v3, 0, 2, vcc"); a("v_add3_u32 v1, v1, v3, 28")
            a("v_lshl_add_u32 v1, v1, 3, v2"); a("v_lshlrev_b32 v1, 7, v1")
            a("s_and_b32 s6, s%d, 6" % XCD); a("s_lshl_b32 s6, s6, 7")
            a("v_mov_b32 v2, 1"); a("s_mov_b64 exec, 0x3fff")
            a("buffer_atomic_add v2, v1, s[%d:%d], s6 offen offset:4 sc1" % (SFL, SFL + 3))
            a("s_mov_b64 exec, -1")
            a("s_mov_b32 s6, %d" % (65536 + 24 * 256))
            self.atomic_ret(6, 1, 2, 7, SKV)
            a("s_cmp_lg_u32 s7, %d" % (23 if "one" not in self.opts else 143)); a("s_cbranch_scc1 %s" % L)
            a("v_lshlrev_b32 v1, 7, v%d" % LANE); a("v_mov_b32 v2, 1")
            for k in range(4):
                a("s_mov_b32 s6, %d" % (224 * 128 + k * 8192))
                if k == 3: a("s_mov_b32 s10, -1"); a("s_mov_b32 s11, 0xffff"); a("s_mov_b64 exec, s[10:11]")
                a("buffer_atomic_add v2, v1, s[%d:%d], s6 offen sc1" % (SFL, SFL + 3))
            a("s_mov_b64 exec, -1")
            a.label(L)
            self.a2_pre()
        else:
            self.phi(ACC, 16, T)
            PK = T + 16
            for k in range(16): a("v_cvt_pk_bf16_f32 v%d, v%d, v%d" % (PK + k, ACC + 2 * k, ACC + 2 * k + 1))
            a("s_and_b32 s7, s%d, 1" % WAVE); a("s_cmp_eq_u32 s7, 1")
            a("s_cselect_b32 s6, 0x000f000f, 0"); a("s_mov_b32 s7, s6"); a("s_mov_b64 exec, s[6:7]")
            for k in range(4): a("v_mov_b32 v%d, 0" % (PK + k))
            a("s_cselect_b32 s6, 0, 0xf000f000"); a("s_mov_b32 s7, s6"); a("s_mov_b64 exec, s[6:7]")
            for k in range(4): a("v_mov_b32 v%d, 0" % (PK + 4 + k))
            a("s_mov_b32 s6, 0xe000e000"); a("s_mov_b32 s7, s6"); a("s_mov_b64 exec, s[6:7]")
            for k in range(4): a("v_mov_b32 v%d, 0" % (PK + 12 + k))
            a("s_mov_b32 s6, 0x10001000"); a("s_mov_b32 s7, s6"); a("s_mov_b64 exec, s[6:7]"); a("s_mov_b32 s6, 0x3f803f80")
            for k in range(4): a("v_mov_b32 v%d, s6" % (PK + 12 + k))
            a("s_mov_b64 exec, -1")
            KT = F0
            for je in range(2):
                for jd in range(2):
                    a("v_mfma_f32_16x16x32_bf16 %s, %s, %s, 0" % (vr(KT + 4 * (2 * je + jd), 4), vr(PK + 8 + 4 * je, 4), vr(PK + 4 * jd, 4)))
            RB = XBASE + 16384
            a("s_lshl_b32 s6, s%d, 12" % WAVE); a("s_add_u32 s6, s6, %d" % RB); a("v_lshl_add_u32 v0, v%d, 4, s6" % LANE)
            a("v_bfe_u32 v1, v%d, 2, 2" % LANE); a("v_lshrrev_b32 v2, 4, v%d" % LANE)
            a("s_and_b32 s6, s%d, 2" % WAVE); a("s_lshl_b32 s6, s6, 1"); a("v_add_u32 v1, s6, v1"); a("v_lshl_add_u32 v2, v1, 2, v2")
            a("v_cmp_eq_u32 vcc, 7, v1"); a("v_mov_b32 v3, 28"); a("v_cndmask_b32 v2, v2, v3, vcc")
            for tau in range(4): a("ds_write_b128 v0, %s offset:%d" % (vr(KT + 4 * tau, 4), tau * 1024))
            a("v_lshrrev_b32 v1, 4, v2"); a("v_lshlrev_b32 v1, 11, v1"); a("v_bfe_u32 v3, v2, 2, 2"); a("v_lshl_add_u32 v1, v3, 8, v1")
            a("v_and_b32 v3, 3, v2"); a("v_lshl_add_u32 v1, v3, 2, v1"); a("v_and_b32 v3, 3, v%d" % LANE); a("v_lshl_add_u32 v1, v3, 4, v1")
            a("s_lshr_b32 s6, s%d, 2" % WAVE); a("s_lshl_b32 s6, s6, 12"); a("s_and_b32 s7, s%d, 1" % WAVE); a("s_lshl_b32 s7, s7, 6")
            a("s_add_u32 s6, s6, s7"); a("s_add_u32 s6, s6, %d" % RB); a("v_add_u32 v1, s6, v1")
            Lok = a.newlabel("zok"); Lz = a.newlabel("zp")
            a("s_cmp_lg_u32 s%d, 7" % WAVE); a("s_cbranch_scc1 %s" % Lok)
            a("s_mov_b32 s6, 0"); a("v_mov_b32 v4, 32")
            a.label(Lz)
            a("v_readfirstlane_b32 s7, v5"); a("s_cmp_ge_u32 s7, 16"); a("s_cbranch_scc1 %s" % Lok)
            a("s_sleep 8")
            a("buffer_load_dword v5, v4, s[%d:%d], 0 offen sc1" % (SDBG, SDBG + 3))
            a("s_add_u32 s6, s6, 1"); a("s_waitcnt vmcnt(0)"); a("s_cmp_lt_u32 s6, 0x%x" % POLL_CAP); a("s_cbranch_scc1 %s" % Lz)
            a.label(Lok)
            a("s_waitcnt lgkmcnt(0)"); a("s_barrier")
            R = F1
            for rg in range(4):
                for gp in range(4):
                    a("ds_read_b32 v%d, v1 offset:%d" % (R + rg * 4 + gp, rg * 8192 + (gp >> 1) * 1024 + (gp & 1) * 128))
            a("s_lshl_b32 s6, s%d, 3" % S_HP); a("s_add_u32 s6, s6, s%d" % WAVE); a("s_lshl_b32 s6, s6, 10")
            a("v_lshlrev_b32 v3, 2, v%d" % LANE)
            a("s_waitcnt lgkmcnt(0)")
            for k in (0, 2):
                a("v_pk_add_f32 %s, %s, %s" % (vr(R + k, 2), vr(R + k, 2), vr(R + 4 + k, 2))); a("v_pk_add_f32 %s, %s, %s" % (vr(R + 8 + k, 2), vr(R + 8 + k, 2), vr(R + 12 + k, 2)))
            for k in (0, 2): a("v_pk_add_f32 %s, %s, %s" % (vr(R + k, 2), vr(R + k, 2), vr(R + 8 + k, 2)))
            for k in range(4 if "noat" not in self.opts else 0):
                a.vmop("buffer_atomic_add_f32 v%d, v3, s[%d:%d], s6 offen offset:%d" % (R + k, SKV, SKV + 3, k * 256), "S")
            self.stamp(3)
            a.vmwait_all(); a("s_barrier")
            L = a.newlabel("arr")
            a("s_cmp_lg_u32 s%d, 7" % WAVE); a("s_cbranch_scc1 %s" % L)
            if "one" not in self.opts:
                a("s_lshl_b32 s6, s%d, 8" % S_HP); a("s_add_u32 s6, s6, 65536")
                self.atomic_ret(6, 1, 2, 7, SKV)
                a("s_cmp_lg_u32 s7, 15"); a("s_cbranch_scc1 %s" % L)
            a("s_mov_b32 s6, %d" % (65536 + 24 * 256))
            self.atomic_ret(6, 1, 2, 7, SKV)
            a("s_cmp_lg_u32 s7, %d" % (23 if "one" not in self.opts else 143)); a("s_cbranch_scc1 %s" % L)
            a("v_lshlrev_b32 v1, 7, v%d" % LANE); a("v_mov_b32 v2, 1")
            for k in range(4):
                a("s_mov_b32 s6, %d" % (224 * 128 + k * 8192))
                if k == 3: a("s_mov_b32 s10, -1"); a("s_mov_b32 s11, 0xffff"); a("s_mov_b64 exec, s[10:11]")
                a("buffer_atomic_add v2, v1, s[%d:%d], s6 offen sc1" % (SFL, SFL + 3))
            a("s_mov_b64 exec, -1")
            a.label(L)

    def wo_dma(self, k):
        a = self.a
        a("s_lshl_b32 s6, s%d, 10" % WAVE); a("s_add_u32 m0, s6, %d" % (k * 8192)); a("s_lshl_b32 s6, s9, 7"); a("s_add_u32 s6, s6, %d" % (k * 64 * 896))
        a.vmop("buffer_load_dwordx4 v14, s[%d:%d], s6 offen lds" % (SWO, SWO + 3), "WO")

    def a2_pre(self):
        a = self.a
        S_R0, S_WN = 8, 9
        a("s_sub_u32 s10, s%d, 28" % SLOT)
        a("s_cmp_ge_u32 s10, 16"); a("s_cselect_b32 s6, 2, 0"); a("s_sub_u32 s10, s10, s6")
        a("s_mul_i32 s6, s10, 21846"); a("s_lshr_b32 s6, s6, 16")
        a("s_mul_i32 s7, s6, 3"); a("s_sub_u32 s7, s10, s7")
        a("s_and_b32 s%d, s%d, 1" % (S_R0, XCD)); a("s_lshl_b32 s%d, s%d, 2" % (S_R0, S_R0)); a("s_add_u32 s%d, s7, s%d" % (S_WN, S_R0))
        a("s_sub_u32 s7, s10, 24"); a("s_add_u32 s7, s7, s%d" % S_R0)
        a("s_cmp_ge_u32 s10, 24"); a("s_cselect_b32 s%d, 3, s%d" % (S_WN, S_WN)); a("s_cselect_b32 s6, s7, s6")
        a("s_lshr_b32 s7, s%d, 1" % XCD); a("s_lshl_b32 s7, s7, 3"); a("s_add_u32 s%d, s6, s7" % S_R0)
        self.srd(SWO, P_WO, 401408)
        a("v_lshrrev_b32 v0, 3, v%d" % LANE); a("v_bfe_u32 v14, v%d, 1, 2" % LANE); a("v_lshrrev_b32 v13, 2, v0"); a("v_xor_b32 v14, v14, v13")
        a("s_and_b32 s6, s%d, 1" % WAVE); a("s_lshl_b32 s6, s6, 1"); a("v_xor_b32 v14, s6, v14")
        a("v_and_b32 v13, 1, v%d" % LANE); a("v_lshl_or_b32 v14, v14, 1, v13")
        a("s_lshl_b32 s6, s%d, 3" % WAVE); a("v_add_u32 v0, s6, v0"); a("v_mul_u32_u24 v0, 896, v0")
        a("v_lshl_add_u32 v14, v14, 4, v0")
        for k in range(6): self.wo_dma(k)

    def a2(self):
        a = self.a
        WO, PQ, KVF, NB = 8, 64, 96, 112
        S_R0, S_WN = 8, 9
        Lend = "A_end"
        self.stamp(4)
        a("s_sub_u32 s10, s%d, 28" % SLOT)
        a("s_and_b32 s6, s10, 30"); a("s_cmp_eq_u32 s6, 14"); a("s_cbranch_scc1 %s" % Lend)
        if "noa2" in self.opts: a("s_branch %s" % Lend)
        self.wo_dma(6)
        self.srd(SOUT, P_OUT, 3670016)
        R0, R2, RC = KVF, KVF + 1, KVF + 2
        a("v_lshrrev_b32 v2, 4, v%d" % LANE); a("v_bfe_u32 v3, v%d, 2, 2" % LANE); a("v_and_b32 v6, 3, v%d" % LANE)
        a("s_and_b32 s6, s%d, 3" % WAVE); a("v_xor_b32 v0, s6, v3"); a("v_lshlrev_b32 v0, 5, v0"); a("v_lshl_add_u32 v0, v6, 3, v0"); a("v_lshl_add_u32 v0, v2, 7, v0")
        a("v_lshl_add_u32 v%d, v3, 9, v0" % R0); a("v_xor_b32 v%d, 64, v%d" % (R2, R0))
        a("v_lshrrev_b32 v1, 1, v3"); a("v_mul_u32_u24 v1, 7168, v1"); a("v_and_b32 v3, 1, v3"); a("v_lshl_add_u32 v1, v3, 9, v1"); a("v_add_u32 v%d, v1, v0" % RC)
        a("v_lshlrev_b32 v5, 4, v%d" % LANE)
        L = a.newlabel("pw")
        a("s_cmp_lg_u32 s%d, 0" % WAVE); a("s_cbranch_scc1 %s" % L)
        self.poll2(3, 0)
        a.label(L)
        a.vmwait("WO"); a("s_barrier")
        a("s_mul_i32 s6, s%d, 57344" % S_R0); a("s_mul_i32 s7, s%d, 1792" % WAVE); a("s_add_u32 s76, s6, s7")
        for rt in range(1, 4): a("s_add_u32 s%d, s76, %d" % (76 + rt, rt * 14336))
        for rt in range(4):
            for h2 in range(2):
                a.vmop("buffer_load_dwordx4 %s, v5, s[%d:%d], s%d offen offset:%d %s" % (vr(PQ + (rt * 2 + h2) * 4, 4), SPQ, SPQ + 3, 76 + rt, 768 * h2, self.HL), "PQ")
        def tr(ks, q, ad, F0): a("ds_read_b64_tr_b16 %s, v%d offset:%d" % (vr(WO + 4 * ks + 2 * q, 2), ad, F0 * 512))
        for wq in range(8):
            ad = R2 if wq & 1 else R0
            tr(wq, 0, ad, 14 * wq); tr(wq, 1, ad, 14 * wq + 4); tr(8 + (wq >> 1), wq & 1, ad, 14 * wq + 8)
        for n in range(2):
            for q in range(2): tr(12 + n, q, RC, 14 * (4 * n + 2 * q) + 12)
        a("s_lshl_b32 s12, s%d, 13" % WAVE)
        a("s_lshl_b32 s6, s%d, 10" % WAVE); a("v_add_u32 v2, s6, v5")
        a("s_lshr_b32 s6, s%d, 1" % WAVE); a("s_lshl_b32 s6, s6, 10"); a("s_and_b32 s7, s%d, 1" % WAVE); a("s_lshl_b32 s7, s7, 3"); a("s_add_u32 s6, s6, s7"); a("s_add_u32 s6, s6, 8192"); a("v_add_u32 v3, s6, v5")
        a("s_lshr_b32 s6, s%d, 2" % WAVE); a("s_lshl_b32 s6, s6, 10"); a("s_and_b32 s7, s%d, 3" % WAVE); a("s_lshl_b32 s7, s7, 2"); a("s_add_u32 s6, s6, s7"); a("s_add_u32 s6, s6, 12288"); a("v_add_u32 v4, s6, v5")
        a("s_mov_b32 s10, 0"); a("s_mov_b32 s11, 0xffff0000"); a("s_mov_b32 s13, 0x%x" % EPS)
        a.vmwait("PQ")
        a("s_mov_b64 exec, s[10:11]")
        for rt in range(4): a("v_mov_b32 v%d, 0" % (PQ + rt * 8 + 2)); a("v_mov_b32 v%d, 0" % (PQ + rt * 8 + 3))
        a("s_mov_b64 exec, 0xffff")
        for rt in range(4): a("v_mov_b32 v%d, 0" % (PQ + rt * 8 + 4)); a("v_mov_b32 v%d, 0" % (PQ + rt * 8 + 5))
        a("s_mov_b64 exec, -1")
        a("s_waitcnt lgkmcnt(0)")
        self.stamp(5)
        L = a.newlabel("aw")
        a("s_cmp_lg_u32 s%d, 0" % WAVE); a("s_cbranch_scc1 %s" % L)
        self.poll_flag(0, 1, S_F0, 0)
        a.label(L)
        a("s_barrier")
        self.stamp(6)
        a("s_add_u32 s6, s12, 4096")
        for k in range(8):
            a.vmop("buffer_load_dwordx4 %s, v5, s[%d:%d], s%d offen offset:%d %s" % (vr(KVF + 4 * k, 4), SKV, SKV + 3, 12 if k < 4 else 6, 1024 * (k & 3), self.HL), ("KV", k >> 1))
        a("v_and_b32 v0, 31, v%d" % LANE); a("v_mul_u32_u24 v0, 1792, v0"); a("v_lshrrev_b32 v1, 5, v%d" % LANE); a("v_lshl_add_u32 v6, v1, 4, v0")
        a("s_lshr_b32 s10, s%d, 2" % WAVE); a("s_lshl_b32 s7, s%d, 1" % S_R0); a("s_add_u32 s7, s7, s10"); a("s_mul_i32 s14, s7, %d" % (32 * 1792))
        a("s_lshl_b32 s7, s%d, 7" % S_WN); a("s_add_u32 s14, s14, s7"); a("s_and_b32 s7, s%d, 3" % WAVE); a("s_lshl_b32 s7, s7, 5"); a("s_add_u32 s14, s14, s7")
        a("s_mul_i32 s15, s10, 28672")
        for fr in range(4):
            a.vmwait(("KV", fr))
            for k in range(4): a("v_cvt_pk_bf16_f32 v%d, v%d, v%d" % (KVF + 4 * fr + k, KVF + 8 * fr + 2 * k, KVF + 8 * fr + 2 * k + 1))
        NN = lambda c: NB + 8 * (c & 1)
        def m2(c):
            h2 = c & 1
            for j in (1, 0): a("v_mfma_f32_16x16x32_bf16 %s, %s, %s, 0" % (vr(NN(c) + 4 * j, 4), vr(KVF + (2 * h2 + j) * 4, 4), vr(PQ + c * 4, 4)))
        m2(0)
        for c in range(8):
            if c + 1 < 8: m2(c + 1)
            n = NN(c); O = PQ + (c >> 1) * 8
            a("v_add_f32 v0, s13, v%d" % (n + 7)); a("v_rcp_f32 v0, v0")
            for t in range(0, 8, 2): a("v_pk_mul_f32 %s, v[0:1], %s op_sel:[0,0] op_sel_hi:[0,1]" % (vr(n + t, 2), vr(n + t, 2)))
            if c & 1 == 0:
                for k in range(3): a("v_cvt_pk_bf16_f32 v%d, v%d, v%d" % (O + k, n + 2 * k, n + 2 * k + 1))
                a("v_mov_b32 v1, v%d" % (n + 6))
            else:
                a("v_cvt_pk_bf16_f32 v%d, v1, v%d" % (O + 3, n))
                for k in range(3): a("v_cvt_pk_bf16_f32 v%d, v%d, v%d" % (O + 4 + k, n + 1 + 2 * k, n + 2 + 2 * k))
                rt = c >> 1
                a("ds_write_b128 v2, %s offset:%d" % (vr(O, 4), rt * 14336)); a("ds_write_b64 v3, %s offset:%d" % (vr(O + 4, 2), rt * 14336)); a("ds_write_b32 v4, v%d offset:%d" % (O + 6, rt * 14336))
        a("v_add_u32 v2, s15, v5")
        a("s_waitcnt lgkmcnt(0)"); a("s_barrier")
        self.stamp(7)
        ACC = KVF
        steps = [(ks, r) for ks in range(14) for r in range(2)]
        rd = lambda i: a("ds_read_b128 %s, v2 offset:%d" % (vr(PQ + 4 * (i & 7), 4), steps[i][1] * 14336 + steps[i][0] * 1024))
        for i in range(7): rd(i)
        for i, (ks, r) in enumerate(steps):
            a("s_waitcnt lgkmcnt(%d)" % min(6, 27 - i))
            c = vr(ACC + 4 * r, 4)
            a("v_mfma_f32_16x16x32_bf16 %s, %s, %s, %s" % (c, vr(WO + 4 * ks, 4), vr(PQ + 4 * (i & 7), 4), "0" if ks == 0 else c))
            if i + 7 < 28: rd(i + 7)
        R = NB
        a("v_cvt_pk_bf16_f32 v%d, v%d, v%d" % (R, ACC, ACC + 1)); a("v_cvt_pk_bf16_f32 v%d, v%d, v%d" % (R + 1, ACC + 2, ACC + 3))
        a("v_cvt_pk_bf16_f32 v%d, v%d, v%d" % (R + 2, ACC + 4, ACC + 5)); a("v_cvt_pk_bf16_f32 v%d, v%d, v%d" % (R + 3, ACC + 6, ACC + 7))
        a("v_permlane16_swap_b32 v%d, v%d" % (R, R + 2)); a("v_permlane16_swap_b32 v%d, v%d" % (R + 1, R + 3))
        a.vmop("buffer_store_dwordx4 %s, v6, s[%d:%d], s14 offen" % (vr(R, 4), SOUT, SOUT + 3), "S")
        self.stamp(8)
        a.label(Lend)
        self.dump_stamps()
        a("s_endpgm")

    def build(self):
        a = self.a
        a.raw(open("concat_heads__linear_attn_block__ssm_conv_s4d__prompt.s.ref").read().split("; Override launch")[0].rstrip())
        a.raw("; @launch grid=(%d,1,1) block=(512,1,1) lds=%d" % (NWG, LDS))
        a.raw('.amdgcn_target "amdgcn-amd-amdhsa--gfx950"\n.text\n.globl %s\n.p2align 8\n.type %s,@function\n%s:' % (KNAME, KNAME, KNAME))
        a("s_cmp_ge_u32 s2, %d" % NWG); a("s_cbranch_scc1 K_exit")
        a("s_load_dwordx16 s[16:31], s[0:1], 0"); a("s_load_dwordx8 s[32:39], s[0:1], 64"); a("s_load_dwordx2 s[40:41], s[0:1], 96")
        a("s_and_b32 s%d, s2, 7" % XCD); a("s_lshr_b32 s%d, s2, 3" % SLOT)
        a("v_lshrrev_b32 v1, 6, v0"); a("v_and_b32 v7, 63, v0")
        a("v_readfirstlane_b32 s%d, v1" % WAVE)
        a("s_nop 3")
        if "cpf" in self.opts:
            Lc = a.newlabel("cpf")
            a("s_cmp_ge_u32 s%d, 2" % SLOT); a("s_cbranch_scc1 %s" % Lc)
            a("s_getpc_b64 s[6:7]")
            a("s_and_b32 s6, s6, 0xffffff00")
            a("s_lshl_b32 s8, s%d, 12" % WAVE)
            a("v_and_b32 v1, 31, v7"); a("v_lshlrev_b32 v1, 7, v1"); a("v_add_u32 v1, s8, v1")
            a("v_min_u32 v1, CODE_END - %s - 4, v1" % KNAME)
            a("global_load_dword v126, v1, s[6:7]")
            a.label(Lc)
        Bl = "K_exit" if "onlya" in self.opts else "B_entry"
        a("s_cmp_lt_u32 s%d, 28" % SLOT); a("s_cbranch_scc1 %s" % Bl)
        if "onlyb" in self.opts: a("s_branch K_exit")
        a("s_setprio 2")
        a("s_cmp_ge_u32 s%d, 44" % SLOT); a("s_cbranch_scc1 Q_entry")
        self.gemm(False)
        a("s_branch A2_entry")
        a.label("Q_entry"); a.vm = []
        self.gemm(True)
        a.label("A2_entry"); a.fence(8); a.vm = []
        self.a2()
        a.label("B_entry"); a.vm = []
        if "onlya" not in self.opts:
            from gen_b import gen_b
            gen_b(self)
        a.label("K_exit")
        a("s_endpgm")
        a.label("CODE_END")
        a.raw('''.section .rodata,"a"
.p2align 6
.amdhsa_kernel %s
  .amdhsa_next_free_vgpr 128
  .amdhsa_next_free_sgpr 102
  .amdhsa_accum_offset 128
  .amdhsa_group_segment_fixed_size 0
  .amdhsa_kernarg_size 104
  .amdhsa_user_sgpr_count 2
  .amdhsa_user_sgpr_kernarg_segment_ptr 1
  .amdhsa_system_sgpr_workgroup_id_x 1
.end_amdhsa_kernel''' % KNAME)
        return a.text()

if __name__ == "__main__":
    stamps = "--stamps" in sys.argv
    out = [x for x in sys.argv[1:] if not x.startswith("--")][0]
    open(out, "w").write(Gen(stamps, [x[2:] for x in sys.argv[1:] if x.startswith("--")]).build())
```
